```python
import torch

def _softmax(x, axis=-1):
    return torch.softmax(x, dim=axis)
def _gelu(x):
    return torch.nn.functional.gelu(x, approximate="tanh")
def _silu(x):
    return torch.nn.functional.silu(x)
def _sigmoid(x):
    return torch.sigmoid(x)
def _layernorm(x, axis=-1, eps=1e-5):
    m = x.mean(dim=axis, keepdim=True)
    v = x.var(dim=axis, keepdim=True, unbiased=False)
    return (x - m) / torch.sqrt(v + eps)
def _scatter_add(tgt, idx, src, axis=0):
    return tgt.clone().index_add_(axis, idx, src)
def _segment_sum(src, seg, n):
    out = torch.zeros((n,) + src.shape[1:], dtype=src.dtype)
    return out.index_add_(0, seg, src)
def _pad(x, pw):
    flat = tuple(v for pair in reversed(pw) for v in pair)
    return torch.nn.functional.pad(x, flat)

kernel_name = 'interleave_layers__spectral_gfnet__grouped_kv_mqa__prompt'

def setup_inputs():

    _w = (lambda a: (lambda t: t.to(torch.bfloat16) if t.is_floating_point() else t)(torch.as_tensor(a)))
    def _A_setup():
        B, S, D = 1, 2048, 576
        Df = D // 2 + 1
        return {
            "x": _w((lambda *s: torch.randn(*s, dtype=torch.bfloat16) * 0.05)(B, S, D)),
            "w_r": _w((lambda *s: torch.randn(*s, dtype=torch.bfloat16) * 1.6)(S, Df) * 0.02),
            "w_i": _w((lambda *s: torch.randn(*s, dtype=torch.bfloat16) * 1.6)(S, Df) * 0.02),
        }
    _A_in = _A_setup()

    def _B_setup():
        B, S, D, H = 1, 2048, 576, 32
        Dh = D // H
        return {
            "x": _w((lambda *s: torch.randn(*s, dtype=torch.bfloat16) * 0.05)(B, S, D)),
            "wq": _w((lambda *s: torch.randn(*s, dtype=torch.bfloat16) * 0.05)(D, H * Dh)),
            "wk": _w((lambda *s: torch.randn(*s, dtype=torch.bfloat16) * 0.05)(D, Dh)),
            "wv": _w((lambda *s: torch.randn(*s, dtype=torch.bfloat16) * 0.05)(D, Dh)),
            "wo": _w((lambda *s: torch.randn(*s, dtype=torch.bfloat16) * 0.05)(H * Dh, D)),
        }
    _B_in = _B_setup()

    return {
        "A_x": _A_in["x"],
        "A_w_r": _A_in["w_r"],
        "A_w_i": _A_in["w_i"],
        "B_x": _B_in["x"],
        "B_wq": _B_in["wq"],
        "B_wk": _B_in["wk"],
        "B_wv": _B_in["wv"],
        "B_wo": _B_in["wo"],
    }

def reference(A_x, A_w_r, A_w_i, B_x, B_wq, B_wk, B_wv, B_wo):
    def _A_ref(x, w_r, w_i):
        B, S, D = x.shape
        X = (lambda x, axes=(-2,-1): torch.fft.rfft2(x.float(), dim=axes))(x, axes=(-2, -1))
        W = w_r + 1j * w_i
        X = X * W
        y = (lambda x, s, axes=(-2,-1): torch.fft.irfft2(x, s=s, dim=axes).to(torch.bfloat16))(X, (S, D), axes=(-2, -1))
        return y

    def _B_ref(x, wq, wk, wv, wo):
        B, S, D = x.shape
        H = 32
        Dh = D // H
        q = (lambda x, *d: x.permute(*d))((x @ wq).reshape(B, S, H, Dh), 0, 2, 1, 3)
        k = x @ wk
        v = x @ wv
        scores = torch.einsum("bhqd,bkd->bhqk", q, k) * (Dh ** -0.5)
        p = _softmax(scores, axis=-1)
        o = torch.einsum("bhqk,bkd->bhqd", p, v)
        return (lambda x, *d: x.permute(*d))(o, 0, 2, 1, 3).reshape(B, S, H * Dh) @ wo

    x = A_x
    x = x + _A_ref(_layernorm(x, axis=-1), A_w_r, A_w_i)
    x = x + _B_ref(_layernorm(x, axis=-1), B_wq, B_wk, B_wv, B_wo)
    x = x + _A_ref(_layernorm(x, axis=-1), A_w_r, A_w_i)
    x = x + _B_ref(_layernorm(x, axis=-1), B_wq, B_wk, B_wv, B_wo)
    return x
```

```python
import re

REG_RE = re.compile(r"^(-|\|)?([vsa])(\d+)\|?$")
RANGE_RE = re.compile(r"^(-|\|)?([vsa])\[(\d+):(\d+)\]\|?$")
TRANS = ("v_exp_f32", "v_log_f32", "v_rcp_f32", "v_rsq_f32", "v_sqrt_f32", "v_sin_f32", "v_cos_f32",
         "v_exp_f16", "v_rcp_iflag_f32")


def regs_of(op):
    op = op.strip()
    m = REG_RE.match(op)
    if m:
        return {(m.group(2), int(m.group(3)))}
    m = RANGE_RE.match(op)
    if m:
        return {(m.group(2), i) for i in range(int(m.group(3)), int(m.group(4)) + 1)}
    if op == "vcc":
        return {("s", "vcc_lo"), ("s", "vcc_hi")}
    if op in ("vcc_lo", "vcc_hi"):
        return {("s", op)}
    if op == "exec":
        return {("s", "exec_lo"), ("s", "exec_hi")}
    if op in ("exec_lo", "exec_hi"):
        return {("s", op)}
    if op == "m0":
        return {("s", "m0")}
    return set()


class Ins:
    __slots__ = ("text", "mn", "ops", "mods", "defs", "uses", "kind", "label", "target", "passes", "srcc", "sdata")

    def __init__(self, text):
        self.text = text
        self.label = None
        self.target = None
        self.passes = 0
        self.srcc = set()
        self.sdata = set()
        self.defs = set()
        self.uses = set()
        t = text.split(";")[0].strip()
        if t.endswith(":") and " " not in t:
            self.label = t[:-1]
            self.mn = None
            self.kind = "label"
            self.ops = []
            self.mods = ""
            return
        if not t or t.startswith("."):
            self.mn = None
            self.kind = "dir"
            self.ops = []
            self.mods = ""
            return
        parts = t.split(None, 1)
        self.mn = mn = parts[0]
        rest = parts[1] if len(parts) > 1 else ""
        toks = []
        depth = 0
        cur = ""
        for ch in rest:
            if ch == "[":
                depth += 1
            if ch == "]":
                depth -= 1
            if ch == "," and depth == 0:
                toks.append(cur.strip())
                cur = ""
            else:
                cur += ch
        if cur.strip():
            toks.append(cur.strip())
        mods = ""
        if toks:
            last = toks[-1].split(None, 1)
            if len(last) > 1:
                toks[-1] = last[0]
                mods = last[1]
        self.ops = toks
        self.mods = mods
        self._classify()

    def _classify(self):
        mn, ops = self.mn, self.ops
        R = lambda i: regs_of(ops[i]) if i < len(ops) else set()
        allr = lambda a: set().union(*[regs_of(o) for o in ops[a:]]) if len(ops) > a else set()
        if mn.startswith("v_mfma"):
            self.kind = "mfma"
            self.defs = R(0)
            self.uses = R(1) | R(2) | R(3)
            self.srcc = R(3)
            if "32x32x16" in mn or "32x32x8" in mn:
                self.passes = 8
            elif "16x16x32" in mn or "16x16x16" in mn:
                self.passes = 4
            else:
                raise ValueError("unknown mfma " + mn)
        elif mn.startswith("v_"):
            self.kind = "valu"
            if mn.startswith("v_cmp"):
                self.defs = R(0)
                self.uses = allr(1)
            elif mn.startswith("v_readfirstlane") or mn.startswith("v_readlane"):
                self.defs = R(0)
                self.uses = allr(1)
            elif mn.startswith("v_permlane") and "swap" in mn:
                self.defs = R(0) | R(1)
                self.uses = R(0) | R(1)
            elif mn.startswith(("v_add_co", "v_sub_co", "v_addc_co", "v_subb_co")):
                self.defs = R(0) | R(1)
                self.uses = allr(2)
            elif mn.startswith("v_cndmask"):
                self.defs = R(0)
                self.uses = allr(1)
                if len(ops) == 3:
                    self.uses |= regs_of("vcc")
            elif mn.startswith(("v_fmac", "v_dot2c", "v_pk_fmac", "v_writelane")):
                self.defs = R(0)
                self.uses = allr(0)
            else:
                self.defs = R(0)
                self.uses = allr(1)
            if "dst_unused:UNUSED_PRESERVE" in self.mods:
                self.uses |= R(0)
        elif mn.startswith("buffer_"):
            self.kind = "vmem"
            lds = re.search(r"\blds\b", self.mods) is not None
            if lds:
                self.uses = allr(0) | {("s", "m0")}
            elif mn.startswith("buffer_load"):
                self.defs = R(0)
                self.uses = allr(1)
                if "d16" in mn:
                    self.uses |= R(0)
            elif mn.startswith("buffer_store"):
                self.uses = allr(0)
                self.sdata = R(0)
            elif mn.startswith("buffer_atomic"):
                self.uses = allr(0)
                if re.search(r"\bsc0\b", self.mods):
                    self.defs = R(0)
            else:
                self.uses = allr(0)
        elif mn.startswith("global_"):
            self.kind = "vmem"
            if mn.startswith("global_load"):
                self.defs = R(0)
                self.uses = allr(1)
            else:
                self.uses = allr(0)
                self.sdata = R(1)
        elif mn.startswith("ds_"):
            self.kind = "ds"
            if mn.startswith(("ds_read", "ds_bpermute", "ds_permute", "ds_swizzle")):
                self.defs = R(0)
                self.uses = allr(1)
            else:
                self.uses = allr(0)
        elif mn.startswith(("s_load", "s_memtime", "s_memrealtime")):
            self.kind = "smem"
            self.defs = R(0)
            self.uses = allr(1)
        elif mn in ("s_branch",) or mn.startswith("s_cbranch"):
            self.kind = "branch"
            self.target = self.ops[0]
            if "vcc" in mn:
                self.uses = regs_of("vcc")
            if "exec" in mn:
                self.uses = regs_of("exec")
        elif mn in ("s_waitcnt", "s_nop", "s_barrier", "s_endpgm", "s_sleep", "s_setprio"):
            self.kind = "ctl"
        elif mn.startswith("s_"):
            self.kind = "salu"
            if mn.startswith(("s_cmp", "s_bitcmp")):
                self.uses = allr(0)
            elif "saveexec" in mn:
                self.defs = R(0) | regs_of("exec")
                self.uses = allr(1) | regs_of("exec")
            elif mn.startswith(("s_addk", "s_mulk")):
                self.defs = R(0)
                self.uses = R(0)
            else:
                self.defs = R(0)
                self.uses = allr(1)
        else:
            raise ValueError("unknown instruction: " + self.text)

    def states(self):
        if self.mn is None:
            return 0
        if self.mn == "s_nop":
            return int(self.ops[0], 0) + 1
        return 1


def is_v(rs):
    return {r for r in rs if r[0] in "va"}


def is_s(rs):
    return {r for r in rs if r[0] == "s"}


def need(p, c):
    n = 0
    pv, ps = is_v(p.defs), is_s(p.defs)
    if p.kind == "valu":
        if c.kind == "mfma" and pv & is_v(c.uses):
            n = max(n, 2)
        if c.kind == "valu":
            if p.mn in TRANS and c.mn not in TRANS and pv & c.uses:
                n = max(n, 1)
            if p.mn in TRANS and c.mn in TRANS and pv & c.uses:
                n = max(n, 1)
            if c.mn.startswith(("v_readfirstlane", "v_readlane")) and pv & c.uses:
                n = max(n, 1)
            if (c.mn.startswith("v_permlane") or "dpp" in c.mn or "quad_perm" in c.mods or "row_" in c.mods) and pv & c.uses:
                n = max(n, 2)
            if ps & is_s(c.uses):
                n = max(n, 4 if c.mn.startswith(("v_readlane", "v_writelane")) else 2)
            if "sdwa" in p.mn and "dst_sel:DWORD" not in p.mods and pv & (c.uses | c.defs):
                n = max(n, 1)
        if c.kind == "vmem" and ps & is_s(c.uses):
            n = max(n, 5)
        if c.kind == "salu" and ps & is_s(c.uses):
            n = max(n, 4)
        if c.kind == "branch" and ps & is_s(c.uses):
            n = max(n, 5)
    if p.kind == "mfma":
        big = p.passes == 8
        if c.kind in ("valu", "vmem", "ds") and pv & (c.uses | c.defs):
            n = max(n, 12 if big else 8)
        if c.kind == "mfma":
            ab = (regs_of(c.ops[1]) | regs_of(c.ops[2]))
            if pv & ab:
                n = max(n, 12 if big else 8)
            if pv & c.srcc:
                if not (pv == c.srcc and p.passes == c.passes):
                    n = max(n, 10 if big else 6)
            elif pv & c.defs:
                n = max(n, 10 if big else 6)
        if c.kind == "valu" and p.srcc & is_v(c.defs):
            n = max(n, 7 if big else 3)
    if p.kind == "vmem" and len(p.sdata) >= 3 and p.sdata & is_v(c.defs):
        n = max(n, 2 if c.kind in ("valu", "mfma") else 1)
    if p.kind == "salu" and ("s", "m0") in p.defs and c.kind == "vmem" and ("s", "m0") in c.uses:
        n = max(n, 1)
    return n


class Prog:
    def __init__(self):
        self.ins = []

    def __call__(self, text):
        for line in text.split("\n"):
            line = line.strip()
            if line:
                self.ins.append(Ins(line))

    def label(self, name):
        self.ins.append(Ins(name + ":"))

    def _preds(self):
        labels = {i.label: n for n, i in enumerate(self.ins) if i.label}
        preds = [[] for _ in self.ins]
        for n, i in enumerate(self.ins):
            if i.kind == "branch":
                if i.target not in labels:
                    raise ValueError("undefined label " + i.target)
                preds[labels[i.target]].append(n)
            if n + 1 < len(self.ins) and i.mn not in ("s_branch", "s_endpgm"):
                preds[n + 1].append(n)
        return preds

    def fix_hazards(self, maxd=13):
        total = 0
        while True:
            preds = self._preds()
            ins = self.ins
            inserts = {}
            for n, c in enumerate(ins):
                if c.mn is None or c.kind in ("ctl",):
                    continue
                worst = 0
                stack = [(p, 0) for p in preds[n]]
                seen = {}
                while stack:
                    p, d = stack.pop()
                    if seen.get(p, 99) <= d:
                        continue
                    seen[p] = d
                    pi = ins[p]
                    if pi.mn is not None:
                        k = need(pi, c)
                        if k > d:
                            worst = max(worst, k - d)
                    nd = d + pi.states()
                    if nd < maxd:
                        for q in preds[p]:
                            stack.append((q, nd))
                if worst:
                    inserts[n] = worst
            if not inserts:
                break
            first = True
            out = []
            last = -99
            for n, c in enumerate(ins):
                if n in inserts and n - last > 16:
                    k = inserts[n]
                    out.append(Ins(f"s_nop {k - 1}"))
                    total += 1
                    last = n
                out.append(c)
            self.ins = out
        return total

    def check_waits(self):
        ins = self.ins
        labels = {i.label: n for n, i in enumerate(ins) if i.label}
        succ = []
        for n, i in enumerate(ins):
            s = []
            if i.kind == "branch":
                s.append(labels[i.target])
            if n + 1 < len(ins) and i.mn not in ("s_branch", "s_endpgm"):
                s.append(n + 1)
            succ.append(s)
        state = [None] * len(ins)
        state[0] = ({}, {}, frozenset())
        work = [0]
        errors = {}
        while work:
            n = work.pop()
            vm, lg, sm = state[n]
            vm, lg, sm = dict(vm), dict(lg), set(sm)
            i = ins[n]
            if i.mn is not None:
                touched = i.uses | i.defs
                for tag, d in (("vmcnt", vm), ("lgkmcnt", lg)):
                    for op in d:
                        dd = ins[op].defs
                        hit = dd & (i.uses if (i.kind in ("vmem", "ds") and op != n and False) else touched)
                        if hit and not (i.kind == "vmem" and "d16" in i.mn and ins[op].kind == "vmem" and not (dd & (i.uses - i.defs))):
                            errors[(n, op)] = f"{tag}: line {n} '{i.text}' touches {sorted(hit)[:3]} of in-flight '{ins[op].text}'"
                for r in sm:
                    if r in touched:
                        errors[(n, r)] = f"smem: line {n} '{i.text}' touches in-flight {r}"
                if i.mn == "s_waitcnt":
                    t = " ".join(i.ops) + " " + i.mods
                    m = re.search(r"vmcnt\((\d+)\)", t)
                    if m:
                        k = int(m.group(1))
                        vm = {op: c for op, c in vm.items() if c < k}
                    m = re.search(r"lgkmcnt\((\d+)\)", t)
                    if m:
                        k = int(m.group(1))
                        if k == 0:
                            lg = {}
                            sm = set()
                        else:
                            lg = {op: c for op, c in lg.items() if c < k}
                elif i.kind == "vmem":
                    vm = {op: min(c + 1, 64) for op, c in vm.items()}
                    if i.defs:
                        vm[n] = 0
                elif i.kind == "ds":
                    lg = {op: min(c + 1, 16) for op, c in lg.items()}
                    if i.defs:
                        lg[n] = 0
                elif i.kind == "smem":
                    sm |= i.defs
            for s in succ[n]:
                if state[s] is None:
                    state[s] = (vm, lg, frozenset(sm))
                    work.append(s)
                else:
                    ovm, olg, osm = state[s]
                    nvm = dict(ovm)
                    for op, c in vm.items():
                        nvm[op] = min(c, nvm.get(op, 99))
                    nlg = dict(olg)
                    for op, c in lg.items():
                        nlg[op] = min(c, nlg.get(op, 99))
                    nsm = osm | frozenset(sm)
                    if nvm != ovm or nlg != olg or nsm != osm:
                        state[s] = (nvm, nlg, nsm)
                        work.append(s)
        return list(errors.values())

    def max_regs(self):
        mv = ms = 0
        for i in self.ins:
            for r in i.defs | i.uses:
                if r[0] == "v":
                    mv = max(mv, r[1] + 1)
                elif r[0] == "s" and isinstance(r[1], int):
                    ms = max(ms, r[1] + 1)
        return mv, ms

    def text(self):
        out = []
        for i in self.ins:
            out.append(i.text if (i.label or i.kind == "dir") else "  " + i.text)
        return "\n".join(out) + "\n"
```

```python
from gen_common import *

RES = 244
KA = 208
SA, SB, OA, OB = 16, 32, 48, 136
PA_, PB_ = 152, 160
K1, K2 = 168, 172
V0, V1 = 176, 180
QA1, QA2, QB1, QB2 = 184, 188, 192, 196
AK1, AK2, AV = 198, 199, 200
L_REDX = 0
L_OX = 0
S_XIN, S_KV, S_OB, S_FB = S_X, S_X + 1, S_X + 2, S_X + 4
QSCALE = "0x3eae1a93"


def xtile_bases(e, va, vb):
    e(f"s_and_b32 s50, s{S_WAVE}, 1")
    e(f"v_and_b32 v4, 1, v{V_GQ}")
    e("v_xor_b32 v4, s50, v4")
    e(f"v_lshlrev_b32 v5, 9, v{V_GQ}")
    e("v_lshl_add_u32 v5, v4, 7, v5")
    e(f"v_lshl_add_u32 v5, v{V_R16}, 3, v5")
    e(f"v_add_u32 v{va}, {L_XT2}, v5")
    e(f"v_xor_b32 v{vb}, 128, v{va}")


def p2(e):
    e(f"s_mul_i32 s54, s{S_QB}, 36864")
    e(f"s_add_u32 s54, s54, s{S_XIN}")
    e(f"v_lshlrev_b32 v60, 4, v{V_LANE}")
    for m in range(5):
        skip = None
        if m == 4:
            skip = e.L("p2dma")
            e(f"s_cmp_ge_u32 s{S_WAVE}, 4")
            e(f"s_cbranch_scc1 {skip}")
        e(f"s_add_u32 s50, s{S_WAVE}, {8*m}")
        e("s_lshl_b32 s50, s50, 10")
        e(f"s_add_u32 m0, s50, {L_XT2}")
        e("s_add_u32 s50, s50, s54")
        e(f"buffer_load_dwordx4 v60, {srd(SRD_WS)}, s50 offen sc1 lds")
        if skip:
            e.label(skip)
    e(f"s_lshr_b32 s55, s{S_WAVE}, 1")
    e("s_mul_i32 s56, s55, 5")
    e("s_cmp_eq_u32 s55, 3")
    e("s_cselect_b32 s56, 14, s56")
    e(f"s_add_u32 s57, s{S_HG}, 36")
    e("s_mul_i32 s57, s57, 18")
    e("s_add_u32 s57, s57, s56")
    e("s_lshl_b32 s57, s57, 10")
    e(f"s_add_u32 s57, s57, {WQF}")
    for st in range(5):
        if st == 4:
            e("s_add_u32 s57, s57, 4096")
            e(f"buffer_load_dwordx4 {vr(KA+16,4)}, v60, {srd(SRD_WS)}, s57 offen sc1")
        else:
            o = f" offset:{st*1024}" if st else ""
            e(f"buffer_load_dwordx4 {vr(KA+4*st,4)}, v60, {srd(SRD_WS)}, s57 offen{o} sc1")
    e(f"s_mul_i32 s58, s{S_HG}, 9")
    e(f"s_add_u32 s57, s58, s{S_WAVE}")
    e(f"s_mul_i32 s57, s57, 18432")
    e(f"s_add_u32 s57, s57, {WQF}")
    e.load_a_frags(SRD_WS, 57, G_A, flags="sc1", vlane16=60)
    nx = e.L("p2nx")
    e(f"s_cmp_ge_u32 s{S_WAVE}, 2")
    e(f"s_cbranch_scc1 {nx}")
    e("s_add_u32 s57, s58, 8")
    e(f"s_mul_i32 s57, s57, 18432")
    e(f"s_add_u32 s57, s57, {WQF}")
    e.load_a_frags(SRD_WS, 57, G_AX, flags="sc1", vlane16=60)
    e(f"s_waitcnt vmcnt(36)")
    w2 = e.L("p2w")
    e(f"s_branch {w2}")
    e.label(nx)
    e(f"s_waitcnt vmcnt(18)")
    e.label(w2)
    e(f"v_mov_b32 v4, {L_FLAG}")
    e("v_mov_b32 v5, 0")
    e("ds_write_b32 v4, v5")
    e("s_barrier")
    e.stamp("p2 loaded")
    xtile_bases(e, 56, 57)
    e("s_lshl_b32 s50, s56, 11")
    e("v_add_u32 v58, s50, v56")
    for st in range(5):
        e(f"ds_read_b64 {vr(16+4*st,2)}, v58 offset:{st*2048}")
        e(f"ds_read_b64 {vr(18+4*st,2)}, v58 offset:{st*2048+256}")
    e("v_mov_b32 v9, 0")
    e("v_mov_b32 v10, 0")
    e("v_mov_b32 v11, 0")
    e("v_mov_b32 v12, 0")
    e("v_mov_b32 v13, 0")
    e("s_waitcnt lgkmcnt(0)")
    e("v_mov_b32 v14, v16")
    nodc = e.L("ssdc")
    e("s_cmp_lg_u32 s55, 0")
    e(f"s_cbranch_scc1 {nodc}")
    e("v_and_b32 v15, 0xffff, v16")
    e(f"v_cmp_eq_u32 vcc, 0, v{V_GQ}")
    e("v_cndmask_b32 v14, v16, v15, vcc")
    e.label(nodc)
    e("v_dot2c_f32_bf16 v9, v14, v14")
    for r in range(17, 32):
        e(f"v_dot2c_f32_bf16 v9, v{r}, v{r}")
    vt, mdone = e.L("vtype"), e.L("kvm")
    e(f"s_bitcmp1_b32 s{S_HG}, 0")
    e(f"s_cbranch_scc1 {vt}")
    for st in range(4):
        e(f"v_mfma_f32_16x16x32_bf16 v[10:13], {vr(KA+4*st,4)}, {vr(16+4*st,4)}, v[10:13]")
    e(f"s_branch {mdone}")
    e.label(vt)
    for st in range(4):
        e(f"v_mfma_f32_16x16x32_bf16 v[10:13], {vr(16+4*st,4)}, {vr(KA+4*st,4)}, v[10:13]")
    e.label(mdone)
    no5, vt5 = e.L("no5"), e.L("vt5")
    e("s_cmp_ge_u32 s55, 2")
    e(f"s_cbranch_scc1 {no5}")
    for r in range(32, 36):
        e(f"v_dot2c_f32_bf16 v9, v{r}, v{r}")
    e(f"s_bitcmp1_b32 s{S_HG}, 0")
    e(f"s_cbranch_scc1 {vt5}")
    e(f"v_mfma_f32_16x16x32_bf16 v[10:13], {vr(KA+16,4)}, v[32:35], v[10:13]")
    e(f"s_branch {no5}")
    e.label(vt5)
    e(f"v_mfma_f32_16x16x32_bf16 v[10:13], v[32:35], {vr(KA+16,4)}, v[10:13]")
    e.label(no5)
    e.sum_over_gq(9, 14)
    e(f"s_lshl_b32 s50, s{S_WAVE}, 10")
    e("v_add_u32 v4, s50, v60")
    e(f"ds_write_b128 v4, v[10:13] offset:{L_REDX}")
    e(f"s_lshl_b32 s50, s{S_WAVE}, 6")
    e(f"s_add_u32 s50, s50, {L_SS}")
    e(f"v_lshlrev_b32 v5, 2, v{V_R16}")
    e("v_add_u32 v5, s50, v5")
    e("ds_write_b32 v5, v9")
    e("s_waitcnt lgkmcnt(0)")
    e("s_barrier")
    notfin = e.L("notfin")
    e(f"s_add_u32 s{S_GT}, s{S_GT}, 16")
    e(f"s_cmp_lg_u32 s{S_WAVE}, 7")
    e(f"s_cbranch_scc1 {notfin}")
    kv_finalize(e)
    e.label(notfin)
    e(f"s_and_b32 s50, s{S_WAVE}, 1")
    e("s_lshl_b32 s50, s50, 6")
    e(f"s_add_u32 s50, s50, {L_SS}")
    e(f"v_lshlrev_b32 v4, 2, v{V_R16}")
    e("v_add_u32 v4, s50, v4")
    e("v_xor_b32 v5, 64, v4")
    for kq in range(4):
        e(f"ds_read_b32 v{6+kq}, v4 offset:{kq*128}")
        e(f"ds_read_b32 v{10+kq}, v5 offset:{kq*128}")
    e("s_waitcnt lgkmcnt(0)")
    e("v_add_f32 v6, v6, v7")
    e("v_add_f32 v8, v8, v9")
    e("v_add_f32 v10, v10, v11")
    e("v_add_f32 v12, v12, v13")
    e("v_add_f32 v58, v6, v8")
    e("v_add_f32 v59, v10, v12")
    e.inv_sigma(58, 4, scale=QSCALE)
    e.inv_sigma(59, 4, scale=QSCALE)
    e("s_waitcnt vmcnt(0)")
    l1, l0, qd = e.L("q_l1"), e.L("q_l0"), e.L("q_done")
    e(f"s_cmp_eq_u32 s{S_LAYER}, 0")
    e(f"s_cbranch_scc1 {l0}")
    e.make_srd(SRD_T, S_FI, 36 * 18432)
    e(f"s_mul_i32 s58, s{S_HG}, 9")
    e(f"s_add_u32 s59, s58, s{S_WAVE}")
    e("s_mul_i32 s59, s59, 18432")
    e("s_add_u32 s58, s58, 8")
    e("s_mul_i32 s58, s58, 18432")

    def fi_main(ks):
        e(f"s_add_u32 s50, s59, {ks*1024}")
        e(f"buffer_load_dwordx4 {vr(G_A+4*ks,4)}, v60, {srd(SRD_T)}, s50 offen")

    def fi_both(ks):
        fi_main(ks)
        e(f"s_add_u32 s50, s58, {ks*1024}")
        e(f"buffer_load_dwordx4 {vr(G_AX+4*ks,4)}, v60, {srd(SRD_T)}, s50 offen")
    noex, gd = e.L("q1_noex"), e.L("q1_gd")
    e(f"s_cmp_ge_u32 s{S_WAVE}, 2")
    e(f"s_cbranch_scc1 {noex}")
    e.g144("x", 56, 57, True, fi_both)
    e(f"s_branch {gd}")
    e.label(noex)
    e.g144("x", 56, 57, False, fi_main)
    e.label(gd)
    e(f"s_branch {qd}")
    e.label(l0)
    e.g144_both("x", 56, 57)
    e.label(qd)
    e.stamp("q gemm")
    q_stage(e)
    r1, rdone = e.L("res1"), e.L("resdone")
    e(f"s_cmp_lg_u32 s{S_LAYER}, 0")
    e(f"s_cbranch_scc1 {r1}")
    e("s_waitcnt vmcnt(0)")
    e(f"s_mul_i32 s50, s{S_HG}, 36")
    e(f"s_lshl_b32 s51, s{S_WAVE}, 2")
    e("s_add_u32 s51, s51, s50")
    e("s_lshl_b32 s51, s51, 8")
    e(f"s_add_u32 s51, s51, {L_XT2}")
    e("s_add_u32 s52, s50, 32")
    e("s_lshl_b32 s52, s52, 8")
    e(f"s_add_u32 s52, s52, {L_XT2}")
    e(f"s_and_b32 s53, s{S_WAVE}, 1")
    e(f"v_lshrrev_b32 v4, 1, v{V_GQ}")
    e("v_xor_b32 v5, s53, v4")
    e(f"v_lshlrev_b32 v6, 8, v{V_GQ}")
    e(f"v_lshl_add_u32 v6, v{V_R16}, 3, v6")
    e("v_lshl_add_u32 v7, v5, 7, v6")
    e("v_xor_b32 v8, 128, v7")
    e("v_add_u32 v9, s51, v7")
    e("v_add_u32 v10, s51, v8")
    e("v_add_u32 v11, s52, v7")
    e(f"ds_read_b64 {vr(RES,2)}, v9")
    e(f"ds_read_b64 {vr(RES+2,2)}, v10")
    e(f"ds_read_b64 {vr(RES+4,2)}, v11")
    e("s_waitcnt lgkmcnt(0)")
    e(f"s_branch {rdone}")
    e.label(r1)
    e("s_waitcnt vmcnt(0)")
    e.g144_both("x", 56, 57)
    for t in range(3):
        a = G_ACC + 4 * t
        e(f"v_cvt_pk_bf16_f32 v{RES+2*t}, v{a}, v{a+1}")
        e(f"v_cvt_pk_bf16_f32 v{RES+2*t+1}, v{a+2}, v{a+3}")
    e.label(rdone)
    e("s_waitcnt lgkmcnt(0)")
    e("s_barrier")
    e(f"s_and_b32 s50, s{S_WAVE}, 3")
    e("s_mul_i32 s50, s50, 72")
    e(f"s_add_u32 s50, s50, {L_QL}")
    e(f"v_and_b32 v4, 31, v{V_LANE}")
    e(f"v_mul_u32_u24 v4, {QL_PITCH}, v4")
    e("v_add_u32 v4, s50, v4")
    e(f"v_lshrrev_b32 v5, 5, v{V_LANE}")
    e("v_lshl_add_u32 v5, v5, 4, v4")
    e(f"ds_read2_b32 {vr(QA1,2)}, v5 offset0:0 offset1:1")
    e(f"ds_read2_b32 {vr(QA1+2,2)}, v5 offset0:2 offset1:3")
    e(f"ds_read2_b32 {vr(QB1,2)}, v5 offset0:9 offset1:10")
    e(f"ds_read2_b32 {vr(QB1+2,2)}, v5 offset0:11 offset1:12")
    e(f"ds_read_b32 v{QA2}, v4 offset:32")
    e(f"ds_read_b32 v{QB2}, v4 offset:68")
    e(f"v_cmp_gt_u32 vcc, 32, v{V_LANE}")
    e("v_mov_b32 v6, 0")
    e("s_waitcnt lgkmcnt(0)")
    e(f"v_cndmask_b32 v{QA2}, v6, v{QA2}, vcc")
    e(f"v_cndmask_b32 v{QB2}, v6, v{QB2}, vcc")


def kv_finalize(e):
    e(f"s_and_b32 s51, s{S_QB}, 31")
    e("s_lshr_b32 s52, s51, 2")
    e(f"s_mul_i32 s52, s52, {CHUNK}")
    e("s_and_b32 s51, s51, 3")
    e(f"s_lshr_b32 s53, s{S_QB}, 5")
    e("s_lshl_b32 s53, s53, 2")
    e("s_add_u32 s51, s51, s53")
    e(f"s_add_u32 s52, s52, s{S_KV}")
    for nt in range(2):
        for kq in range(4):
            e(f"ds_read_b128 {vr(16+4*kq,4)}, v60 offset:{L_REDX + (2*kq+nt)*1024}")
        vt, sdone = e.L("fin_v"), e.L("fin_sd")
        e(f"s_bitcmp1_b32 s{S_HG}, 0")
        e(f"s_cbranch_scc1 {vt}")
        e(f"v_lshlrev_b32 v4, 2, v{V_R16}")
        e(f"v_add_u32 v4, {L_SS + nt*64}, v4")
        for kq in range(4):
            e(f"ds_read_b32 v{32+kq}, v4 offset:{kq*128}")
        e("s_waitcnt lgkmcnt(0)")
        e("v_add_f32 v32, v32, v33")
        e("v_add_f32 v34, v34, v35")
        e("v_add_f32 v32, v32, v34")
        e.inv_sigma(32, 4)
        e("v_mov_b32 v33, v32")
        e("v_mov_b32 v34, v32")
        e("v_mov_b32 v35, v32")
        e(f"s_branch {sdone}")
        e.label(vt)
        e(f"v_lshlrev_b32 v4, 4, v{V_GQ}")
        e(f"v_add_u32 v4, {L_SS + nt*64}, v4")
        for kq in range(4):
            e(f"ds_read_b128 {vr(36+4*kq,4)}, v4 offset:{kq*128}")
        e("s_waitcnt lgkmcnt(0)")
        for r in range(4):
            e(f"v_add_f32 v{36+r}, v{36+r}, v{40+r}")
            e(f"v_add_f32 v{44+r}, v{44+r}, v{48+r}")
            e(f"v_add_f32 v{32+r}, v{36+r}, v{44+r}")
            e.inv_sigma(32 + r, 4)
        e.label(sdone)
        for r in range(4):
            e(f"v_add_f32 v{16+r}, v{16+r}, v{20+r}")
            e(f"v_add_f32 v{24+r}, v{24+r}, v{28+r}")
            e(f"v_add_f32 v{16+r}, v{16+r}, v{24+r}")
            e(f"v_mul_f32 v{16+r}, v{16+r}, v{32+r}")
        d = 52 + 2 * nt
        e(f"v_cvt_pk_bf16_f32 v{d}, v16, v17")
        e(f"v_cvt_pk_bf16_f32 v{d+1}, v18, v19")
        h0, h1, h2, h3, hd = [e.L(f"kvst{i}") for i in range(5)]
        e(f"s_cmp_eq_u32 s{S_HG}, 1")
        e(f"s_cbranch_scc1 {h1}")
        e(f"s_cmp_eq_u32 s{S_HG}, 2")
        e(f"s_cbranch_scc1 {h2}")
        e(f"s_cmp_eq_u32 s{S_HG}, 3")
        e(f"s_cbranch_scc1 {h3}")
        e("s_lshl_b32 s53, s51, 10")
        e("s_add_u32 s53, s53, s52")
        e(f"v_lshrrev_b32 v4, 1, v{V_GQ}")
        e("v_lshlrev_b32 v4, 9, v4")
        e(f"v_lshl_add_u32 v4, v{V_R16}, 4, v4")
        e(f"v_and_b32 v5, 1, v{V_GQ}")
        e("v_lshl_add_u32 v4, v5, 3, v4")
        e(f"buffer_store_dwordx2 {vr(d,2)}, v4, {srd(SRD_WS)}, s53 offen offset:{nt*256} sc1")
        e(f"s_branch {hd}")
        e.label(h2)
        e("s_lshl_b32 s53, s51, 7")
        e("s_add_u32 s53, s53, s52")
        e(f"s_add_u32 s53, s53, {K2_OFF}")
        e(f"v_lshlrev_b32 v4, 2, v{V_R16}")
        e("s_mov_b64 exec, 0xffff")
        e(f"buffer_store_dword v{d}, v4, {srd(SRD_WS)}, s53 offen offset:{nt*64} sc1")
        e("s_mov_b64 exec, -1")
        e(f"s_branch {hd}")
        e.label(h1)
        e(f"s_mul_i32 s53, s51, {VT}")
        e("s_add_u32 s53, s53, s52")
        e(f"s_add_u32 s53, s53, {V_OFF + nt*608}")
        e(f"v_and_b32 v5, 1, v{V_GQ}")
        e("v_mul_u32_u24 v4, 304, v5")
        e(f"v_lshl_add_u32 v4, v{V_R16}, 4, v4")
        e(f"v_lshrrev_b32 v5, 1, v{V_GQ}")
        e("v_lshl_add_u32 v4, v5, 3, v4")
        e(f"buffer_store_dwordx2 {vr(d,2)}, v4, {srd(SRD_WS)}, s53 offen sc1")
        e(f"s_branch {hd}")
        e.label(h3)
        e(f"s_mul_i32 s53, s51, {VT}")
        e("s_add_u32 s53, s53, s52")
        e(f"s_add_u32 s53, s53, {V_OFF + nt*608 + 256}")
        e(f"v_and_b32 v5, 1, v{V_GQ}")
        e("v_mul_u32_u24 v4, 304, v5")
        e(f"v_lshl_add_u32 v4, v{V_R16}, 4, v4")
        e(f"v_lshrrev_b32 v5, 1, v{V_GQ}")
        e("v_lshl_add_u32 v4, v5, 3, v4")
        e("v_mov_b32 v6, 0x3f803f80")
        e(f"v_cmp_eq_u32 vcc, 2, v{V_R16}")
        e(f"v_cndmask_b32 v{d}, v{d}, v6, vcc")
        e(f"v_cndmask_b32 v{d+1}, v{d+1}, v6, vcc")
        e(f"v_cmp_gt_u32 vcc, 3, v{V_R16}")
        e("s_and_saveexec_b64 s[62:63], vcc")
        e(f"buffer_store_dwordx2 {vr(d,2)}, v4, {srd(SRD_WS)}, s53 offen sc1")
        e("s_mov_b64 exec, s[62:63]")
        e.label(hd)
    e("s_waitcnt vmcnt(0)")
    e("s_and_b32 s48, s2, 15")
    e("s_lshl_b32 s48, s48, 8")
    e("v_mov_b32 v4, s48")
    e("v_mov_b32 v5, 1")
    e("s_mov_b64 exec, 1")
    e(f"buffer_atomic_add v5, v4, {srd(SRD_WS)}, 0 offen sc1")
    e("s_mov_b64 exec, -1")


def q_stage(e):
    accA, accB, accX = G_ACC, G_ACC + 4, G_ACC + 8
    e(f"s_and_b32 s50, s{S_WAVE}, 1")
    e("s_lshl_b32 s51, s50, 4")
    e(f"v_add_u32 v4, s51, v{V_R16}")
    e("v_xor_b32 v5, 16, v4")
    e(f"v_mul_u32_u24 v4, {QL_PITCH}, v4")
    e(f"v_mul_u32_u24 v5, {QL_PITCH}, v5")
    e(f"v_lshlrev_b32 v6, 3, v{V_GQ}")
    e(f"v_add_u32 v6, {L_QL}, v6")
    e("v_add_u32 v4, v4, v6")
    e("v_add_u32 v5, v5, v6")
    e(f"s_lshl_b32 s52, s{S_WAVE}, 5")
    e("v_add_u32 v7, s52, v4")
    e("v_add_u32 v8, s52, v5")
    for r in range(4):
        e(f"v_mul_f32 v{accA+r}, v{accA+r}, v58")
        e(f"v_mul_f32 v{accB+r}, v{accB+r}, v59")
    e(f"v_cvt_pk_bf16_f32 v10, v{accA}, v{accA+1}")
    e(f"v_cvt_pk_bf16_f32 v11, v{accA+2}, v{accA+3}")
    e(f"v_cvt_pk_bf16_f32 v12, v{accB}, v{accB+1}")
    e(f"v_cvt_pk_bf16_f32 v13, v{accB+2}, v{accB+3}")
    e("ds_write_b64 v7, v[10:11]")
    e("ds_write_b64 v8, v[12:13]")
    nx = e.L("qs_nx")
    e(f"s_cmp_ge_u32 s{S_WAVE}, 2")
    e(f"s_cbranch_scc1 {nx}")
    for r in range(4):
        e(f"v_mul_f32 v{accX+r}, v{accX+r}, v58")
    e(f"v_cvt_pk_bf16_f32 v14, v{accX}, v{accX+1}")
    e(f"v_cvt_pk_bf16_f32 v15, v{accX+2}, v{accX+3}")
    e("ds_write_b64 v4, v[14:15] offset:256")
    e.label(nx)


def max16(e, s, dst):
    e(f"v_max3_f32 v{dst}, v{s}, v{s+1}, v{s+2}")
    for r in range(3, 15, 2):
        e(f"v_max3_f32 v{dst}, v{dst}, v{s+r}, v{s+r+1}")
    e(f"v_max_f32 v{dst}, v{dst}, v{s+15}")


def set_m(e, m, q2):
    e(f"v_sub_f32 v{m}, 0, v{m}")
    e(f"v_cvt_pk_bf16_f32 v4, v{m}, v{m}")
    e("v_lshlrev_b32 v4, 16, v4")
    e(f"v_sub_f32 v5, v{m}, v4")
    e("v_cvt_pk_bf16_f32 v4, v4, v5")
    e(f"v_cmp_gt_u32 vcc, 32, v{V_LANE}")
    e("v_mov_b32 v5, 0")
    e(f"v_cndmask_b32 v{q2+1}, v5, v4, vcc")


def qk(e, s, q1, q2):
    e(f"v_mfma_f32_32x32x16_bf16 {vr(s,16)}, {vr(K1,4)}, {vr(q1,4)}, 0")
    e(f"v_mfma_f32_32x32x8_bf16 {vr(s,16)}, {vr(K2,2)}, {vr(q2,2)}, {vr(s,16)}")


def cross_half_max(e, v):
    e(f"v_mov_b32 v4, v{v}")
    e(f"v_permlane32_swap_b32 v4, v{v}")
    e(f"v_max_f32 v{v}, v{v}, v4")


def half(e, s_exp, p_out, s_new, q1, q2, o_acc, p_in, pre, mid_k, pre_pv, mid_v):
    ex = lambda r: e(f"v_exp_f32 v{s_exp+r}, v{s_exp+r}")
    cv = lambda k: e(f"v_cvt_pk_bf16_f32 v{p_out+k}, v{s_exp+2*k}, v{s_exp+2*k+1}")
    if pre:
        e(pre)
    e(f"v_mfma_f32_32x32x16_bf16 {vr(s_new,16)}, {vr(K1,4)}, {vr(q1,4)}, 0")
    ex(0); ex(1)
    e(f"v_mfma_f32_32x32x8_bf16 {vr(s_new,16)}, {vr(K2,2)}, {vr(q2,2)}, {vr(s_new,16)}")
    for x in mid_k:
        e(x)
    ex(2); ex(3); cv(0); ex(4); ex(5); cv(1)
    if pre_pv:
        e(pre_pv)
    e(f"v_mfma_f32_32x32x16_bf16 {vr(o_acc,16)}, {vr(V0,4)}, {vr(p_in,4)}, {vr(o_acc,16)}")
    ex(6); ex(7); cv(2); ex(8); ex(9); cv(3)
    e(f"v_mfma_f32_32x32x16_bf16 {vr(o_acc,16)}, {vr(V1,4)}, {vr(p_in+4,4)}, {vr(o_acc,16)}")
    for x in mid_v:
        e(x)
    ex(10); ex(11); cv(4); ex(12); ex(13); cv(5); ex(14); ex(15); cv(6); cv(7)


def attention(e):
    kvload, mainl = e.L("kvload"), e.L("attn_main")
    e(f"s_mov_b32 s{S_FB}, 0")
    e.label(kvload)
    e(f"v_lshlrev_b32 v4, 4, v{V_LANE}")
    for m in range(19):
        skip = None
        if m == 18:
            skip = e.L("kvd")
            e(f"s_cmp_ge_u32 s{S_WAVE}, 4")
            e(f"s_cbranch_scc1 {skip}")
        e(f"s_add_u32 s50, s{S_WAVE}, {8*m}")
        e("s_lshl_b32 s50, s50, 10")
        e("s_mov_b32 m0, s50")
        e(f"s_add_u32 s50, s50, s{S_KV}")
        e(f"buffer_load_dwordx4 v4, {srd(SRD_WS)}, s50 offen sc1 lds")
        if skip:
            e.label(skip)
    e(f"s_lshr_b32 s51, s{S_WAVE}, 2")
    e("s_lshl_b32 s52, s51, 12")
    e(f"v_lshlrev_b32 v{AK1}, 4, v{V_LANE}")
    e(f"v_add_u32 v{AK1}, s52, v{AK1}")
    e("s_lshl_b32 s52, s51, 9")
    e(f"s_add_u32 s52, s52, {K2_OFF}")
    e(f"v_and_b32 v5, 31, v{V_LANE}")
    e(f"v_lshlrev_b32 v{AK2}, 2, v5")
    e(f"v_add_u32 v{AK2}, s52, v{AK2}")
    e(f"s_mul_i32 s52, s51, {4*VT}")
    e(f"s_add_u32 s52, s52, {V_OFF}")
    e("v_subrev_u32 v6, 16, v5")
    e("v_cmp_gt_u32 vcc, 19, v5")
    e("v_cndmask_b32 v6, v6, v5, vcc")
    e(f"v_lshrrev_b32 v7, 5, v{V_LANE}")
    e("v_mul_u32_u24 v7, 304, v7")
    e("v_lshl_add_u32 v7, v6, 4, v7")
    e(f"v_add_u32 v{AV}, s52, v7")
    e(f"v_mov_b32 v{K2+1}, 0x3f803f80")
    e(f"v_mov_b32 v{QA2+1}, 0")
    e(f"v_mov_b32 v{QB2+1}, 0")
    e("s_waitcnt vmcnt(0)")
    e("s_barrier")
    e.stamp("kv loaded")
    wo_prefetch(e, main=True, extra=False)
    fbmax, haveM = e.L("fbmax"), e.L("haveM")
    e(f"s_cmp_lg_u32 s{S_FB}, 0")
    e(f"s_cbranch_scc1 {fbmax}")
    e(f"v_lshlrev_b32 v8, 4, v{V_LANE}")
    e("v_lshlrev_b32 v9, 2, v5")
    e(f"ds_read_b128 {vr(K1,4)}, v8")
    e(f"ds_read_b32 v{K2}, v9 offset:{K2_OFF}")
    e("s_waitcnt lgkmcnt(0)")
    qk(e, SA, QA1, QA2)
    qk(e, SB, QB1, QB2)
    max16(e, SA, 10)
    max16(e, SB, 11)
    cross_half_max(e, 10)
    cross_half_max(e, 11)
    e(f"s_branch {haveM}")
    e.label(fbmax)
    fl = e.L("fbloop")
    e("v_mov_b32 v10, 0xff800000")
    e("v_mov_b32 v11, 0xff800000")
    e(f"v_mov_b32 v8, v{AK1}")
    e(f"v_mov_b32 v9, v{AK2}")
    e("s_mov_b32 s52, 0")
    e.label(fl)
    for t in range(4):
        e(f"ds_read_b128 {vr(K1,4)}, v8 offset:{t*1024}")
        e(f"ds_read_b32 v{K2}, v9 offset:{t*128}")
        e("s_waitcnt lgkmcnt(0)")
        qk(e, SA, QA1, QA2)
        qk(e, SB, QB1, QB2)
        max16(e, SA, 12)
        max16(e, SB, 13)
        e("v_max_f32 v10, v10, v12")
        e("v_max_f32 v11, v11, v13")
    e(f"v_add_u32 v8, {CHUNK}, v8")
    e(f"v_add_u32 v9, {CHUNK}, v9")
    e("s_add_u32 s52, s52, 1")
    e("s_cmp_lt_u32 s52, 8")
    e(f"s_cbranch_scc1 {fl}")
    cross_half_max(e, 10)
    cross_half_max(e, 11)
    e(f"s_lshl_b32 s52, s{S_WAVE}, 9")
    e(f"s_add_u32 s52, s52, {L_QL}")
    e(f"v_lshlrev_b32 v8, 3, v{V_LANE}")
    e("v_add_u32 v9, s52, v8")
    e("ds_write_b64 v9, v[10:11]")
    e("s_waitcnt lgkmcnt(0)")
    e("s_barrier")
    e(f"s_xor_b32 s52, s{S_WAVE}, 4")
    e("s_lshl_b32 s52, s52, 9")
    e(f"s_add_u32 s52, s52, {L_QL}")
    e("v_add_u32 v9, s52, v8")
    e("ds_read_b64 v[12:13], v9")
    e("s_waitcnt lgkmcnt(0)")
    e("v_max_f32 v10, v10, v12")
    e("v_max_f32 v11, v11, v13")
    e.label(haveM)
    set_m(e, 10, QA2)
    set_m(e, 11, QB2)
    for r in range(16):
        e(f"v_mov_b32 v{OA+r}, 0")
        e(f"v_mov_b32 v{OB+r}, 0")
    for r in range(8):
        e(f"v_mov_b32 v{PB_+r}, 0")
        e(f"v_mov_b32 v{V0+r}, 0")
    e(f"ds_read_b128 {vr(K1,4)}, v{AK1}")
    e(f"ds_read_b32 v{K2}, v{AK2}")
    e("s_waitcnt lgkmcnt(0)")
    qk(e, SA, QA1, QA2)
    e("s_mov_b32 s52, 0")
    e("s_nop 12")
    e(".p2align 6")
    e.label(mainl)
    for t in range(4):
        nk = (t + 1) * 1024 if t < 3 else CHUNK
        nk2 = (t + 1) * 128 if t < 3 else CHUNK
        half(e, SA, PA_, SB, QB1, QB2, OB, PB_, None,
             [f"ds_read_b128 {vr(K1,4)}, v{AK1} offset:{nk}", f"ds_read_b32 v{K2}, v{AK2} offset:{nk2}"],
             None,
             [f"ds_read_b128 {vr(V0,4)}, v{AV} offset:{t*VT}", f"ds_read_b128 {vr(V1,4)}, v{AV} offset:{t*VT+608}"])
        half(e, SB, PB_, SA, QA1, QA2, OA, PA_, "s_waitcnt lgkmcnt(2)", [], "s_waitcnt lgkmcnt(0)", [])
    e(f"v_add_u32 v{AK1}, {CHUNK}, v{AK1}")
    e(f"v_add_u32 v{AK2}, {CHUNK}, v{AK2}")
    e(f"v_add_u32 v{AV}, {CHUNK}, v{AV}")
    e("s_add_u32 s52, s52, 1")
    e("s_cmp_lt_u32 s52, 8")
    e(f"s_cbranch_scc1 {mainl}")
    e(f"v_mfma_f32_32x32x16_bf16 {vr(OB,16)}, {vr(V0,4)}, {vr(PB_,4)}, {vr(OB,16)}")
    e(f"v_mfma_f32_32x32x16_bf16 {vr(OB,16)}, {vr(V1,4)}, {vr(PB_+4,4)}, {vr(OB,16)}")
    e.stamp("attn loop")
    nofl = e.L("nofl")
    e("s_mov_b32 s53, 0x5d000000")
    e(f"v_cmp_nlt_f32 vcc, v{OA+10}, s53")
    e(f"v_cmp_nlt_f32 s[54:55], v{OB+10}, s53")
    e("s_or_b64 vcc, vcc, s[54:55]")
    e("s_cmp_eq_u32 vcc_lo, 0")
    e(f"s_cbranch_scc1 {nofl}")
    e(f"v_mov_b32 v4, {L_FLAG}")
    e("v_mov_b32 v5, 1")
    e("ds_write_b32 v4, v5")
    e.label(nofl)
    e("s_waitcnt lgkmcnt(0)")
    e("s_barrier")
    e(f"s_mul_i32 s50, s{S_WAVE}, 3072")
    e(f"v_lshlrev_b32 v4, 4, v{V_LANE}")
    e(f"v_add_u32 v5, s50, v4")
    e(f"s_xor_b32 s50, s{S_WAVE}, 4")
    e("s_mul_i32 s50, s50, 3072")
    e(f"v_add_u32 v6, s50, v4")
    e(f"v_mov_b32 v7, {L_FLAG}")
    e("ds_read_b32 v8, v7")
    g1, gd = e.L("give1"), e.L("gived")
    e(f"s_cmp_ge_u32 s{S_WAVE}, 4")
    e(f"s_cbranch_scc1 {g1}")
    for q in range(3):
        e(f"ds_write_b128 v5, {vr(OB+4*q,4)} offset:{L_OX + q*1024}")
    e(f"s_branch {gd}")
    e.label(g1)
    for q in range(3):
        e(f"ds_write_b128 v5, {vr(OA+4*q,4)} offset:{L_OX + q*1024}")
    for r in range(12):
        e(f"v_mov_b32 v{OA+r}, v{OB+r}")
    e.label(gd)
    e("s_waitcnt lgkmcnt(0)")
    e(f"v_readfirstlane_b32 s50, v8")
    e("s_barrier")
    fbgo = e.L("fbgo")
    e(f"s_cmp_lg_u32 s{S_FB}, 0")
    e(f"s_cbranch_scc1 {fbgo}")
    e("s_cmp_eq_u32 s50, 0")
    e(f"s_cbranch_scc1 {fbgo}")
    e(f"s_mov_b32 s{S_FB}, 1")
    e(f"s_branch {kvload}")
    e.label(fbgo)
    for q in range(3):
        e(f"ds_read_b128 {vr(16+4*q,4)}, v6 offset:{L_OX + q*1024}")
    e("s_waitcnt lgkmcnt(0)")
    for r in range(11):
        e(f"v_add_f32 v{OA+r}, v{OA+r}, v{16+r}")
    e(f"v_mov_b32 v8, v{OA+10}")
    e(f"v_permlane32_swap_b32 v8, v{OA+10}")
    e("v_rcp_f32 v8, v8")
    for r in range(10):
        e(f"v_mul_f32 v{OA+r}, v{OA+r}, v8")
    for k in range(5):
        e(f"v_cvt_pk_bf16_f32 v{16+k}, v{OA+2*k}, v{OA+2*k+1}")
    e(f"s_lshr_b32 s51, s{S_WAVE}, 2")
    e(f"s_and_b32 s52, s{S_WAVE}, 3")
    e(f"s_mul_i32 s53, s{S_QB}, 36864")
    e(f"s_add_u32 s53, s53, s{S_OB}")
    e(f"v_bfe_u32 v4, v{V_LANE}, 4, 1")
    e("v_mul_u32_u24 v4, 18432, v4")
    e(f"v_lshl_add_u32 v4, v{V_R16}, 4, v4")
    e(f"v_lshrrev_b32 v5, 5, v{V_LANE}")
    e("v_lshl_add_u32 v5, v5, 8, v4")
    e(f"s_lshl_b32 s54, s{S_HG}, 2")
    e("s_add_u32 s54, s54, s52")
    e("s_lshl_b32 s54, s54, 10")
    e("s_lshl_b32 s55, s51, 9")
    e("s_add_u32 s54, s54, s55")
    e("s_add_u32 s54, s54, s53")
    e(f"buffer_store_dwordx4 v[16:19], v5, {srd(SRD_WS)}, s54 offen sc1")
    e(f"s_lshl_b32 s54, s{S_HG}, 3")
    e("s_lshl_b32 s55, s52, 1")
    e("s_add_u32 s54, s54, s55")
    e("s_add_u32 s54, s54, s51")
    e("s_lshr_b32 s55, s54, 4")
    e("s_add_u32 s55, s55, 16")
    e("s_lshl_b32 s55, s55, 10")
    e("s_bfe_u32 s56, s54, 0x20002")
    e("s_lshl_b32 s56, s56, 8")
    e("s_add_u32 s55, s55, s56")
    e("s_and_b32 s56, s54, 3")
    e("s_lshl_b32 s56, s56, 2")
    e("s_add_u32 s55, s55, s56")
    e("s_add_u32 s55, s55, s53")
    e("s_mov_b32 exec_hi, 0")
    e(f"buffer_store_dword v20, v4, {srd(SRD_WS)}, s55 offen sc1")
    e("s_mov_b64 exec, -1")


def wo_prefetch(e, main=True, extra=False):
    e(f"s_cmp_eq_u32 s{S_LAYER}, 0")
    e.sel(58, WOF, WO2)
    e(f"v_lshlrev_b32 v60, 4, v{V_LANE}")
    e(f"s_mul_i32 s59, s{S_HG}, 9")
    if main:
        e(f"s_add_u32 s57, s59, s{S_WAVE}")
        e("s_mul_i32 s57, s57, 18432")
        e("s_add_u32 s57, s57, s58")
        e.load_a_frags(SRD_WS, 57, G_A, flags="sc1", vlane16=60)
    if extra:
        nx = e.L("wo_nx")
        e(f"s_cmp_ge_u32 s{S_WAVE}, 2")
        e(f"s_cbranch_scc1 {nx}")
        e("s_add_u32 s57, s59, 8")
        e("s_mul_i32 s57, s57, 18432")
        e("s_add_u32 s57, s57, s58")
        e.load_a_frags(SRD_WS, 57, G_AX, flags="sc1", vlane16=60)
        e.label(nx)


def p4(e):
    e(f"s_mul_i32 s54, s{S_QB}, 36864")
    e(f"s_add_u32 s54, s54, s{S_OB}")
    e(f"v_lshlrev_b32 v60, 4, v{V_LANE}")
    for m in range(5):
        skip = None
        if m == 4:
            skip = e.L("p4dma")
            e(f"s_cmp_ge_u32 s{S_WAVE}, 4")
            e(f"s_cbranch_scc1 {skip}")
        e(f"s_add_u32 s50, s{S_WAVE}, {8*m}")
        e("s_lshl_b32 s50, s50, 10")
        e("s_mov_b32 m0, s50")
        e("s_add_u32 s50, s50, s54")
        e(f"buffer_load_dwordx4 v60, {srd(SRD_WS)}, s50 offen sc1 lds")
        if skip:
            e.label(skip)
    for t in range(3):
        a = G_ACC + 4 * t
        e(f"v_lshlrev_b32 v{a}, 16, v{RES+2*t}")
        e(f"v_and_b32 v{a+1}, 0xffff0000, v{RES+2*t}")
        e(f"v_lshlrev_b32 v{a+2}, 16, v{RES+2*t+1}")
        e(f"v_and_b32 v{a+3}, 0xffff0000, v{RES+2*t+1}")
    e(f"s_and_b32 s50, s{S_WAVE}, 1")
    e("s_mul_i32 s50, s50, 18432")
    e(f"v_lshlrev_b32 v56, 4, v{V_LANE}")
    e("v_add_u32 v57, 18432, v56")
    e("v_subrev_u32 v57, s50, v57")
    e("v_add_u32 v56, s50, v56")
    e("s_waitcnt vmcnt(0)")
    e("s_barrier")
    e.stamp("p4 loaded")
    e.g144_both("frag", 56, 57, zero_init=False)
    e.stamp("p4 gemm")


def out_epilogue(e):
    accA, accB, accX = G_ACC, G_ACC + 4, G_ACC + 8
    e.make_srd(SRD_A, S_OUT, XBYTES)
    e(f"s_and_b32 s50, s{S_WAVE}, 1")
    e("s_lshl_b32 s51, s50, 4")
    e(f"s_lshl_b32 s52, s{S_QB}, 5")
    e("s_add_u32 s51, s51, s52")
    e(f"v_add_u32 v4, s51, v{V_R16}")
    e("v_xor_b32 v5, 16, v4")
    e("v_mul_u32_u24 v4, 1152, v4")
    e("v_mul_u32_u24 v5, 1152, v5")
    e(f"v_lshl_add_u32 v4, v{V_GQ}, 3, v4")
    e(f"v_lshl_add_u32 v5, v{V_GQ}, 3, v5")
    e(f"s_mul_i32 s53, s{S_HG}, 288")
    e(f"s_lshl_b32 s54, s{S_WAVE}, 5")
    e("s_add_u32 s54, s54, s53")
    e("s_add_u32 s55, s53, 256")
    e(f"v_cvt_pk_bf16_f32 v10, v{accA}, v{accA+1}")
    e(f"v_cvt_pk_bf16_f32 v11, v{accA+2}, v{accA+3}")
    e(f"buffer_store_dwordx2 v[10:11], v4, {srd(SRD_A)}, s54 offen")
    e(f"v_cvt_pk_bf16_f32 v12, v{accB}, v{accB+1}")
    e(f"v_cvt_pk_bf16_f32 v13, v{accB+2}, v{accB+3}")
    e(f"buffer_store_dwordx2 v[12:13], v5, {srd(SRD_A)}, s54 offen")
    nx = e.L("oe_nx")
    e(f"s_cmp_ge_u32 s{S_WAVE}, 2")
    e(f"s_cbranch_scc1 {nx}")
    e(f"v_cvt_pk_bf16_f32 v14, v{accX}, v{accX+1}")
    e(f"v_cvt_pk_bf16_f32 v15, v{accX+2}, v{accX+3}")
    e(f"buffer_store_dwordx2 v[14:15], v4, {srd(SRD_A)}, s55 offen")
    e.label(nx)
```

```python
from asmlib import Prog
from layout import *

S_AX, S_WR, S_WI = 4, 6, 8
S_WQ, S_WK, S_WV, S_WO = 12, 14, 16, 18
S_OUT, S_DBG, S_WS = 20, 22, 24
S_WAVE, S_QB = 26, 27
SRD_WS, SRD_A, SRD_B, SRD_T = 28, 32, 36, 40
S_HG, S_LAYER, S_GT, S_GRP = 44, 45, 46, 47
S_T = 48
S_FT, S_FI, S_TW = 66, 68, 70
S_X = 72

V_TID, V_LANE, V_R16, V_GQ = 0, 1, 2, 3

G_A = 64
G_AX = 136
G_B = 16
G_ACC = 40

SPIN_LIMIT = 60000


def srd(r):
    return f"s[{r}:{r+3}]"


def sp(r):
    return f"s[{r}:{r+1}]"


def vr(r, n=1):
    return f"v{r}" if n == 1 else f"v[{r}:{r+n-1}]"


class Gen(Prog):
    def __init__(self):
        super().__init__()
        self.uid = 0

    profile = False
    nstamp = 0

    def stamp(self, name=""):
        if not self.profile:
            return
        k = self.nstamp
        self.nstamp += 1
        self.stamp_names = getattr(self, "stamp_names", []) + [name]
        self("s_memrealtime s[62:63]")
        if name == "start":
            self("s_memtime s[100:101]")
        self("s_waitcnt lgkmcnt(0)")
        self(f"s_mov_b32 s{80+k}, s62")

    def dump_stamps(self):
        if not self.profile:
            return
        e = self
        sk = e.L("nost")
        e(f"s_cmp_lg_u32 s{S_WAVE}, 0")
        e(f"s_cbranch_scc1 {sk}")
        e("s_lshl_b32 s48, s2, 7")
        e(f"s_add_u32 s48, s48, {PROF}")
        e("v_mov_b32 v4, 0")
        e("s_mov_b64 exec, 1")
        e("s_memtime s[62:63]")
        e("s_waitcnt lgkmcnt(0)")
        e("s_sub_u32 s62, s62, s100")
        e("v_mov_b32 v5, s62")
        e(f"buffer_store_dword v5, v4, {srd(SRD_WS)}, s48 offen offset:124")
        for k in range(self.nstamp):
            e(f"v_mov_b32 v5, s{80+k}")
            e(f"buffer_store_dword v5, v4, {srd(SRD_WS)}, s48 offen offset:{4*k}")
        e("s_waitcnt vmcnt(0)")
        e("s_mov_b64 exec, -1")
        e.label(sk)

    def L(self, base):
        self.uid += 1
        return f"L_{base}_{self.uid}"

    def sel(self, dst, a, b):
        self(f"s_mov_b32 s{dst}, {b}")
        self(f"s_cselect_b32 s{dst}, {a}, s{dst}")

    def make_srd(self, r, base, size):
        self(f"s_mov_b32 s{r}, s{base}")
        self(f"s_mov_b32 s{r+1}, s{base+1}")
        self(f"s_mov_b32 s{r+2}, {size}")
        self(f"s_mov_b32 s{r+3}, 0x20000")

    def prologue(self):
        e = self
        e("s_cmp_ge_u32 s2, 256")
        e("s_cbranch_scc1 L_end")
        e("s_load_dwordx4 s[4:7], s[0:1], 0")
        e("s_load_dwordx2 s[8:9], s[0:1], 16")
        e("s_load_dwordx8 s[12:19], s[0:1], 32")
        e("s_load_dwordx4 s[20:23], s[0:1], 64")
        e("s_load_dwordx2 s[24:25], s[0:1], 80")
        e(f"v_and_b32 v{V_LANE}, 63, v0")
        e("v_lshrrev_b32 v4, 6, v0")
        e(f"v_and_b32 v{V_R16}, 15, v0")
        e(f"v_lshrrev_b32 v{V_GQ}, 4, v{V_LANE}")
        e(f"v_readfirstlane_b32 s{S_WAVE}, v4")
        e("s_and_b32 s48, s2, 7")
        e("s_lshr_b32 s49, s2, 3")
        e("s_lshl_b32 s48, s48, 3")
        e("s_lshr_b32 s50, s49, 2")
        e(f"s_add_u32 s{S_QB}, s48, s50")
        e(f"s_and_b32 s{S_HG}, s49, 3")
        e(f"s_mov_b32 s{S_GT}, 0")
        e(f"s_mov_b32 s{S_GRP}, 0")
        e(f"s_mov_b32 s{S_LAYER}, 0")
        for reg, sym in ((S_FT, "TAB_FT"), (S_FI, "TAB_FI"), (S_TW, "TAB_TW")):
            e(f"s_getpc_b64 {sp(reg)}")
            e(f"s_add_u32 s{reg}, s{reg}, {sym}@rel32@lo+4")
            e(f"s_addc_u32 s{reg+1}, s{reg+1}, {sym}@rel32@hi+12")
        e("s_waitcnt lgkmcnt(0)")
        self.make_srd(SRD_WS, S_WS, WS_END)

    def arrive(self, group=False, go_check=False):
        e = self
        e("s_waitcnt vmcnt(0) lgkmcnt(0)")
        e("s_barrier")
        e.stamp("drained")
        if group:
            e(f"s_add_u32 s{S_GRP}, s{S_GRP}, 4")
        else:
            e(f"s_add_u32 s{S_GT}, s{S_GT}, 16")
        skip = e.L("arr")
        e(f"s_cmp_lg_u32 s{S_WAVE}, 0")
        e(f"s_cbranch_scc1 {skip}")
        if go_check:
            lp, ok = e.L("go"), e.L("gook")
            self.make_srd(SRD_A, S_DBG, 256)
            e("v_mov_b32 v4, 0")
            e("s_mov_b32 s48, 0")
            e.label(lp)
            e(f"buffer_load_dword v5, v4, {srd(SRD_A)}, 0 offen sc1")
            e("s_waitcnt vmcnt(0)")
            e("v_cmp_eq_u32 vcc, 0, v5")
            e("s_add_u32 s48, s48, 1")
            e(f"s_cmp_gt_u32 s48, {SPIN_LIMIT}")
            e(f"s_cbranch_scc1 {ok}")
            e(f"s_cbranch_vccz {ok}")
            e("s_sleep 1")
            e(f"s_branch {lp}")
            e.label(ok)
        if group:
            e(f"s_lshl_b32 s48, s{S_QB}, 8")
            e(f"s_add_u32 s48, s48, {CNT + CNT_GROUP}")
        else:
            e("s_and_b32 s48, s2, 15")
            e("s_lshl_b32 s48, s48, 8")
            if CNT:
                e(f"s_add_u32 s48, s48, {CNT}")
        e("v_mov_b32 v4, s48")
        e("v_mov_b32 v5, 1")
        e("s_mov_b64 exec, 1")
        e(f"buffer_atomic_add v5, v4, {srd(SRD_WS)}, 0 offen sc1")
        e("s_mov_b64 exec, -1")
        e.label(skip)

    def wait(self, group=False):
        e = self
        done, lp = e.L("wdone"), e.L("poll")
        e(f"s_cmp_lg_u32 s{S_WAVE}, 0")
        e(f"s_cbranch_scc1 {done}")
        if group:
            e(f"s_lshl_b32 s48, s{S_QB}, 8")
            e(f"s_add_u32 s48, s48, {CNT + CNT_GROUP}")
            e("v_mov_b32 v4, s48")
            tgt = S_GRP
        else:
            e(f"v_lshlrev_b32 v4, 8, v{V_R16}")
            if CNT:
                e(f"v_add_u32 v4, {CNT}, v4")
            tgt = S_GT
        e("s_mov_b32 s48, 0")
        e.label(lp)
        e(f"buffer_load_dword v5, v4, {srd(SRD_WS)}, 0 offen sc1")
        e("s_waitcnt vmcnt(0)")
        e(f"v_cmp_gt_u32 vcc, s{tgt}, v5")
        e("s_add_u32 s48, s48, 1")
        e(f"s_cmp_gt_u32 s48, {SPIN_LIMIT}")
        e(f"s_cbranch_scc1 {done}")
        e(f"s_cbranch_vccz {done}")
        e("s_sleep 1")
        e(f"s_branch {lp}")
        e.label(done)
        e("s_barrier")

    def load_a_frags(self, srdreg, s_tile_base, dst, ksteps=range(18), flags="", vlane16=None):
        e = self
        cur = None
        for ks in ksteps:
            hi = ks // 4
            if hi != cur:
                e(f"s_add_u32 s49, s{s_tile_base}, {hi * 4096}")
                cur = hi
            off = (ks % 4) * 1024
            o = f" offset:{off}" if off else ""
            e(f"buffer_load_dwordx4 {vr(dst + 4*ks, 4)}, v{vlane16}, {srd(srdreg)}, s49 offen{o} {flags}".rstrip())

    def g144(self, bmode, vbA, vbB, extra, after_step=None, zero_init=True):
        e = self
        accA, accB, accX = G_ACC, G_ACC + 4, G_ACC + 8

        def rd(ks):
            b = G_B + 8 * (ks % 3)
            if bmode == "frag":
                e(f"ds_read_b128 {vr(b,4)}, v{vbA} offset:{ks*1024}")
                e(f"ds_read_b128 {vr(b+4,4)}, v{vbB} offset:{ks*1024}")
                return 2
            e(f"ds_read_b64 {vr(b,2)}, v{vbA} offset:{ks*2048}")
            e(f"ds_read_b64 {vr(b+2,2)}, v{vbA} offset:{ks*2048+256}")
            e(f"ds_read_b64 {vr(b+4,2)}, v{vbB} offset:{ks*2048}")
            e(f"ds_read_b64 {vr(b+6,2)}, v{vbB} offset:{ks*2048+256}")
            return 4
        per = 2 if bmode == "frag" else 4
        rd(0)
        rd(1)
        for ks in range(18):
            if ks + 2 < 18:
                rd(ks + 2)
            left = min(2, 17 - ks) * per
            e(f"s_waitcnt lgkmcnt({left})")
            b = G_B + 8 * (ks % 3)
            a = G_A + 4 * ks
            cA = "0" if (ks == 0 and zero_init) else vr(accA, 4)
            cB = "0" if (ks == 0 and zero_init) else vr(accB, 4)
            cX = "0" if (ks == 0 and zero_init) else vr(accX, 4)
            e(f"v_mfma_f32_16x16x32_bf16 {vr(accA,4)}, {vr(a,4)}, {vr(b,4)}, {cA}")
            e(f"v_mfma_f32_16x16x32_bf16 {vr(accB,4)}, {vr(a,4)}, {vr(b+4,4)}, {cB}")
            if extra:
                e(f"v_mfma_f32_16x16x32_bf16 {vr(accX,4)}, {vr(G_AX+4*ks,4)}, {vr(b,4)}, {cX}")
            if after_step:
                after_step(ks)

    def g144_both(self, bmode, vbA, vbB, after_step=None, zero_init=True):
        e = self
        noex, done = e.L("g_noex"), e.L("g_done")
        e(f"s_cmp_ge_u32 s{S_WAVE}, 2")
        e(f"s_cbranch_scc1 {noex}")
        self.g144(bmode, vbA, vbB, True, after_step, zero_init)
        e(f"s_branch {done}")
        e.label(noex)
        self.g144(bmode, vbA, vbB, False, after_step, zero_init)
        e.label(done)

    def sum_over_gq(self, v, t):
        e = self
        e(f"v_mov_b32 v{t}, v{v}")
        e(f"v_permlane16_swap_b32 v{t}, v{v}")
        e(f"v_add_f32 v{v}, v{v}, v{t}")
        e(f"v_mov_b32 v{t}, v{v}")
        e(f"v_permlane32_swap_b32 v{t}, v{v}")
        e(f"v_add_f32 v{v}, v{v}, v{t}")

    def bf16_round(self, v, t):
        e = self
        e(f"v_cvt_pk_bf16_f32 v{t}, v{v}, v{v}")
        e(f"v_lshlrev_b32 v{v}, 16, v{t}")

    def inv_sigma(self, v, t, scale=None):
        e = self
        e(f"v_mul_f32 v{v}, 0x3ae38e39, v{v}")
        self.bf16_round(v, t)
        e(f"v_add_f32 v{v}, 0x3727c5ac, v{v}")
        self.bf16_round(v, t)
        e(f"v_sqrt_f32 v{v}, v{v}")
        self.bf16_round(v, t)
        e(f"v_rcp_f32 v{v}, v{v}")
        if scale is not None:
            e(f"v_mul_f32 v{v}, {scale}, v{v}")

    def xhat_epilogue(self, s_xdst, s_part):
        e = self
        accA, accB, accX = G_ACC, G_ACC + 4, G_ACC + 8
        e(f"s_mul_i32 s50, s{S_QB}, 144")
        e(f"s_mul_i32 s51, s{S_HG}, 36")
        e("s_add_u32 s50, s50, s51")
        e(f"s_lshl_b32 s51, s{S_WAVE}, 2")
        e("s_add_u32 s51, s51, s50")
        e("s_lshl_b32 s51, s51, 8")
        e(f"s_add_u32 s51, s51, s{s_xdst}")
        e("s_add_u32 s52, s50, 32")
        e("s_lshl_b32 s52, s52, 8")
        e(f"s_add_u32 s52, s52, s{s_xdst}")
        e(f"s_and_b32 s53, s{S_WAVE}, 1")
        e(f"v_lshrrev_b32 v4, 1, v{V_GQ}")
        e(f"v_xor_b32 v5, s53, v4")
        e(f"v_lshlrev_b32 v6, 8, v{V_GQ}")
        e(f"v_lshl_add_u32 v6, v{V_R16}, 3, v6")
        e("v_lshl_add_u32 v7, v5, 7, v6")
        e("v_xor_b32 v8, 128, v7")
        e(f"v_mul_f32 v9, v{accA}, v{accA}")
        e(f"v_mul_f32 v10, v{accB}, v{accB}")
        e(f"v_mul_f32 v11, v{accA+1}, v{accA+1}")
        e(f"v_mul_f32 v12, v{accB+1}, v{accB+1}")
        nodc = e.L("nodc")
        e(f"s_or_b32 s53, s{S_HG}, s{S_WAVE}")
        e("s_cmp_lg_u32 s53, 0")
        e(f"s_cbranch_scc1 {nodc}")
        e(f"v_cmp_eq_u32 vcc, 0, v{V_GQ}")
        e("v_mov_b32 v13, 0")
        e("v_cndmask_b32 v11, v11, v13, vcc")
        e("v_cndmask_b32 v12, v12, v13, vcc")
        e.label(nodc)
        e("v_add_f32 v9, v9, v11")
        e("v_add_f32 v10, v10, v12")
        for r in (2, 3):
            e(f"v_fmac_f32 v9, v{accA+r}, v{accA+r}")
            e(f"v_fmac_f32 v10, v{accB+r}, v{accB+r}")
        e(f"v_cvt_pk_bf16_f32 v14, v{accA}, v{accA+1}")
        e(f"v_cvt_pk_bf16_f32 v15, v{accA+2}, v{accA+3}")
        e(f"buffer_store_dwordx2 v[14:15], v7, {srd(SRD_WS)}, s51 offen sc1")
        e(f"v_cvt_pk_bf16_f32 v52, v{accB}, v{accB+1}")
        e(f"v_cvt_pk_bf16_f32 v53, v{accB+2}, v{accB+3}")
        e(f"buffer_store_dwordx2 v[52:53], v8, {srd(SRD_WS)}, s51 offen sc1")
        self.sum_over_gq(9, 13)
        self.sum_over_gq(10, 13)
        e(f"s_and_b32 s53, s{S_WAVE}, 1")
        e(f"s_lshl_b32 s54, s{S_WAVE}, 7")
        e("s_lshl_b32 s55, s53, 6")
        e("s_add_u32 s54, s54, s55")
        e(f"v_lshlrev_b32 v11, 2, v{V_R16}")
        e(f"v_add_u32 v11, s54, v11")
        e("v_xor_b32 v12, 64, v11")
        e(f"v_add_u32 v11, {L_STAT}, v11")
        e(f"v_add_u32 v12, {L_STAT}, v12")
        e("ds_write_b32 v11, v9")
        e("ds_write_b32 v12, v10")
        noex = e.L("ep_noex")
        e(f"s_cmp_ge_u32 s{S_WAVE}, 2")
        e(f"s_cbranch_scc1 {noex}")
        e(f"v_mul_f32 v9, v{accX}, v{accX}")
        for r in (1, 2, 3):
            e(f"v_fmac_f32 v9, v{accX+r}, v{accX+r}")
        e(f"v_cvt_pk_bf16_f32 v54, v{accX}, v{accX+1}")
        e(f"v_cvt_pk_bf16_f32 v55, v{accX+2}, v{accX+3}")
        e(f"buffer_store_dwordx2 v[54:55], v7, {srd(SRD_WS)}, s52 offen sc1")
        self.sum_over_gq(9, 13)
        e(f"v_lshlrev_b32 v11, 2, v{V_R16}")
        e(f"v_add_u32 v11, s55, v11")
        e(f"v_add_u32 v11, {L_STAT + 8*128}, v11")
        e("ds_write_b32 v11, v9")
        e.label(noex)
        e("s_waitcnt lgkmcnt(0)")
        e("s_barrier")
        fin = e.L("ep_fin")
        e(f"s_cmp_lg_u32 s{S_WAVE}, 0")
        e(f"s_cbranch_scc1 {fin}")
        e(f"v_and_b32 v4, 31, v{V_LANE}")
        e("v_lshlrev_b32 v4, 2, v4")
        e(f"v_add_u32 v14, {L_STAT}, v4")
        for t in range(9):
            e(f"ds_read_b32 v{5+t}, v14 offset:{t*128}")
        e("s_waitcnt lgkmcnt(0)")
        for t in range(1, 9):
            e(f"v_add_f32 v5, v5, v{5+t}")
        e(f"s_lshl_b32 s50, s{S_HG}, 13")
        e(f"s_lshl_b32 s51, s{S_QB}, 7")
        e("s_add_u32 s50, s50, s51")
        e(f"s_add_u32 s50, s50, s{s_part}")
        e("s_mov_b32 exec_hi, 0")
        e(f"buffer_store_dword v5, v4, {srd(SRD_WS)}, s50 offen sc1")
        e("s_mov_b64 exec, -1")
        e.label(fin)
```

```python
from gen_common import *

SQ = 100
MASK = 102
TW1, TW2, TW3 = 104, 118, 132
WREG = 146
XOLD = 154
POOL0, POOLN = 16, 24
ADDR = 170
REGION = 288 * 8
COLBUF = 8 * REGION
L_EX = 8192
L_OUT = L_EX + 2 * COLBUF


class Pool:
    def __init__(self):
        self.free = [POOL0 + 2 * i for i in range(POOLN)]
    def get(self):
        return self.free.pop(0)
    def put(self, r):
        assert r not in self.free
        self.free.append(r)


def P(r):
    return f"v[{r}:{r+1}]"


class FFT:
    def __init__(self, e):
        self.e = e
        self.pool = Pool()

    def add(self, a, b, free=()):
        d = self._dst(free); self.e(f"v_pk_add_f32 {P(d)}, {P(a)}, {P(b)}"); return d
    def sub(self, a, b, free=()):
        d = self._dst(free); self.e(f"v_pk_add_f32 {P(d)}, {P(a)}, {P(b)} neg_lo:[0,1] neg_hi:[0,1]"); return d
    def addmi(self, a, b, free=()):
        d = self._dst(free); self.e(f"v_pk_add_f32 {P(d)}, {P(a)}, {P(b)} op_sel:[0,1] op_sel_hi:[1,0] neg_hi:[0,1]"); return d
    def addpi(self, a, b, free=()):
        d = self._dst(free); self.e(f"v_pk_add_f32 {P(d)}, {P(a)}, {P(b)} op_sel:[0,1] op_sel_hi:[1,0] neg_lo:[0,1]"); return d
    def addrot(self, a, b, sign, free=()):
        return self.addmi(a, b, free) if sign < 0 else self.addpi(a, b, free)
    def fma_s(self, q, p, neg=False, free=()):
        d = self._dst(free)
        m = " neg_lo:[1,0,0] neg_hi:[1,0,0]" if neg else ""
        self.e(f"v_pk_fma_f32 {P(d)}, {P(q)}, {P(SQ)}, {P(p)}{m}"); return d
    def fma_srot(self, q, p, sign, free=()):
        d = self._dst(free)
        m = "neg_hi:[1,0,0]" if sign < 0 else "neg_lo:[1,0,0]"
        self.e(f"v_pk_fma_f32 {P(d)}, {P(q)}, {P(SQ)}, {P(p)} op_sel:[1,0,0] op_sel_hi:[0,1,1] {m}"); return d
    def cmul(self, a, w, conj=False):
        t = self.pool.get()
        self.e(f"v_pk_mul_f32 {P(t)}, {P(a)}, {P(w)} op_sel:[0,0] op_sel_hi:[1,0]")
        m = "neg_hi:[1,0,0]" if conj else "neg_lo:[1,0,0]"
        self.e(f"v_pk_fma_f32 {P(t)}, {P(a)}, {P(w)}, {P(t)} op_sel:[1,1,0] op_sel_hi:[0,1,1] {m}")
        self.pool.put(a)
        return t
    def _dst(self, free):
        d = self.pool.get()
        for r in free:
            self.pool.put(r)
        return d

    def dft4(self, u, sign):
        p0 = self.add(u[0], u[2]); p1 = self.sub(u[0], u[2], free=(u[0], u[2]))
        p2 = self.add(u[1], u[3]); p3 = self.sub(u[1], u[3], free=(u[1], u[3]))
        y0 = self.add(p0, p2); y2 = self.sub(p0, p2, free=(p0, p2))
        y1 = self.addrot(p1, p3, sign); y3 = self.addrot(p1, p3, -sign, free=(p1, p3))
        return [y0, y1, y2, y3]

    def dft8(self, z, sign):
        a = []; b = []
        for j in range(4):
            a.append(self.add(z[j], z[j+4])); b.append(self.sub(z[j], z[j+4], free=(z[j], z[j+4])))
        ev = self.dft4(a, sign)
        p0 = self.addrot(b[0], b[2], sign); p1 = self.addrot(b[0], b[2], -sign, free=(b[0], b[2]))
        t1 = self.addrot(b[1], b[1], sign, free=(b[1],))
        t3 = self.addrot(b[3], b[3], -sign, free=(b[3],))
        q2 = self.sub(t1, t3); q3 = self.add(t1, t3, free=(t1, t3))
        x1 = self.fma_s(q2, p0); x5 = self.fma_s(q2, p0, neg=True, free=(q2, p0))
        x3 = self.fma_srot(q3, p1, sign); x7 = self.fma_srot(q3, p1, -sign, free=(q3, p1))
        return [ev[0], x1, ev[1], x3, ev[2], x5, ev[3], x7]

    def twiddle(self, z, tw, conj):
        return [z[0]] + [self.cmul(z[k], tw + 2*(k-1), conj) for k in range(1, 8)]

    def write(self, z, addr, offs, b128=False):
        if b128:
            raise NotImplementedError
        for r, o in zip(z, offs):
            self.e(f"ds_write_b64 v{addr}, {P(r)} offset:{o}")
            self.pool.put(r)

    def read(self, addr, offs):
        z = [self.pool.get() for _ in offs]
        for r, o in zip(z, offs):
            self.e(f"ds_read_b64 {P(r)}, v{addr} offset:{o}")
        self.e("s_waitcnt lgkmcnt(0)")
        return z


def sfilter_prefetch(e):
    e.make_srd(SRD_T, S_TW, 7 * (256 + 32 + 4) * 8)
    e("v_and_b32 v4, 255, v0")
    e("v_lshlrev_b32 v5, 3, v4")
    e("v_and_b32 v6, 31, v0")
    e("v_lshlrev_b32 v6, 3, v6")
    e("v_and_b32 v7, 3, v0")
    e("v_lshlrev_b32 v7, 3, v7")
    for k in range(7):
        e(f"s_mov_b32 s50, {k * 2048}")
        e(f"buffer_load_dwordx2 {P(TW1+2*k)}, v5, {srd(SRD_T)}, s50 offen")
    for k in range(7):
        e(f"s_mov_b32 s50, {7*2048 + k * 256}")
        e(f"buffer_load_dwordx2 {P(TW2+2*k)}, v6, {srd(SRD_T)}, s50 offen")
    for k in range(7):
        e(f"s_mov_b32 s50, {7*2048 + 7*256 + k * 32}")
        e(f"buffer_load_dwordx2 {P(TW3+2*k)}, v7, {srd(SRD_T)}, s50 offen")


def sfilter(e, s_xin, s_xout, s_part):
    A = ADDR
    e("v_lshlrev_b32 v4, 4, v0")
    for hg in range(4):
        e(f"s_add_u32 s50, s{s_part}, {hg * 8192}")
        e(f"buffer_load_dwordx4 {vr(16+4*hg,4)}, v4, {srd(SRD_WS)}, s50 offen sc1")
    e(f"s_lshr_b32 s51, s{S_WAVE}, 2")
    e("v_and_b32 v5, 255, v0")
    e("v_lshrrev_b32 v6, 5, v5")
    e("v_mul_u32_u24 v6, 36864, v6")
    e("v_lshrrev_b32 v7, 4, v5")
    e("v_and_b32 v7, 1, v7")
    e("s_lshr_b32 s52, s2, 1")
    e("s_and_b32 s52, s52, 1")
    e("v_xor_b32 v7, s52, v7")
    e("v_lshl_add_u32 v6, v7, 7, v6")
    e("v_and_b32 v7, 15, v5")
    e("v_lshl_add_u32 v6, v7, 3, v6")
    e("s_lshl_b32 s53, s2, 8")
    e("s_lshl_b32 s54, s51, 2")
    e("s_add_u32 s53, s53, s54")
    e(f"s_add_u32 s53, s53, s{s_xin}")
    for j in range(8):
        e(f"s_add_u32 s50, s53, {j * 8 * 36864}")
        e(f"buffer_load_dword v{32+j}, v6, {srd(SRD_WS)}, s50 offen sc1")
    e("s_lshl_b32 s54, s2, 1")
    e("s_add_u32 s54, s54, s51")
    e("s_lshl_b32 s54, s54, 13")
    e(f"s_add_u32 s54, s54, {WT}")
    e("v_lshlrev_b32 v8, 5, v5")
    e(f"buffer_load_dwordx4 {vr(WREG,4)}, v8, {srd(SRD_WS)}, s54 offen sc1")
    e(f"buffer_load_dwordx4 {vr(WREG+4,4)}, v8, {srd(SRD_WS)}, s54 offen offset:16 sc1")
    e(f"v_mov_b32 v{SQ}, 0x3f3504f3")
    e(f"v_mov_b32 v{SQ+1}, 0x3f3504f3")
    e(f"v_mov_b32 v{MASK}, 1.0")
    e("s_lshl_b32 s55, s2, 1")
    e("s_or_b32 s55, s55, s51")
    e("s_cmp_eq_u32 s55, 0")
    e("s_cselect_b32 s56, 0, 1.0")
    e(f"v_mov_b32 v{MASK+1}, s56")
    e(f"s_mul_i32 s57, s51, {COLBUF}")
    e(f"s_add_u32 s57, s57, {L_EX}")
    e(f"v_lshlrev_b32 v{A}, 3, v5")
    e(f"v_add_u32 v{A}, s57, v{A}")
    e("v_lshrrev_b32 v9, 5, v5")
    e(f"v_mul_u32_u24 v9, {REGION}, v9")
    e("v_add_u32 v9, s57, v9")
    e("v_and_b32 v10, 31, v5")
    e(f"v_lshl_add_u32 v{A+1}, v10, 3, v9")
    e("v_lshrrev_b32 v11, 2, v10")
    e("v_mul_u32_u24 v11, 288, v11")
    e("v_add_u32 v11, v11, v9")
    e("v_and_b32 v12, 3, v5")
    e(f"v_lshl_add_u32 v{A+2}, v12, 3, v11")
    e(f"v_lshl_add_u32 v{A+3}, v12, 6, v11")
    e("s_waitcnt vmcnt(10)")
    e.stamp("f part")
    for r in range(4):
        e(f"v_add_f32 v{16+r}, v{16+r}, v{20+r}")
        e(f"v_add_f32 v{24+r}, v{24+r}, v{28+r}")
    for r in range(4):
        e(f"v_add_f32 v{16+r}, v{16+r}, v{24+r}")
    for r in range(4):
        e.inv_sigma(16 + r, 13, scale="0x3a000000")
    e("v_lshlrev_b32 v4, 4, v0")
    e("ds_write_b128 v4, v[16:19]")
    e("s_waitcnt lgkmcnt(0)")
    e("s_barrier")
    e("v_lshlrev_b32 v4, 2, v5")
    for j in range(8):
        e(f"ds_read_b32 v{40+j}, v4 offset:{j*1024}")
    e("s_waitcnt vmcnt(2)")
    e.stamp("f x")
    for j in range(8):
        e(f"v_lshlrev_b32 v{XOLD+2*j}, 16, v{32+j}")
        e(f"v_and_b32 v{XOLD+2*j+1}, 0xffff0000, v{32+j}")
    e("s_waitcnt lgkmcnt(0)")
    f = FFT(e)
    z = []
    safe = [16, 18, 20, 22, 24, 26, 28, 30]
    for j in range(8):
        f.pool.free.remove(safe[j])
        e(f"v_pk_mul_f32 {P(safe[j])}, {P(XOLD+2*j)}, v[{40+2*(j//2)}:{41+2*(j//2)}] op_sel:[0,{j%2}] op_sel_hi:[1,{j%2}]")
        z.append(safe[j])
    nm = e.L("nomask")
    e("s_cmp_lg_u32 s55, 0")
    e(f"s_cbranch_scc1 {nm}")
    for j in range(8):
        e(f"v_pk_mul_f32 {P(z[j])}, {P(z[j])}, {P(MASK)}")
    e.label(nm)
    z = f.dft8(z, -1); z = f.twiddle(z, TW1, False)
    f.write(z, A, [k * REGION for k in range(8)])
    e("s_waitcnt lgkmcnt(0)")
    e("s_barrier")
    z = f.read(A + 1, [j * 256 for j in range(8)])
    z = f.dft8(z, -1); z = f.twiddle(z, TW2, False)
    f.write(z, A + 1, [k * 288 for k in range(8)])
    z = f.read(A + 2, [j * 32 for j in range(8)])
    z = f.dft8(z, -1); z = f.twiddle(z, TW3, False)
    f.write(z, A + 2, [k * 32 for k in range(8)])
    z = f.read(A + 3, [e_ * 32 + t * 8 for e_ in range(2) for t in range(4)])
    z = f.dft4(z[:4], -1) + f.dft4(z[4:], -1)
    e.stamp("f fwd")
    e("s_waitcnt vmcnt(0)")
    wt = f.pool.get()
    for i in range(8):
        e(f"v_lshlrev_b32 v{wt}, 16, v{WREG+i}")
        e(f"v_and_b32 v{wt+1}, 0xffff0000, v{WREG+i}")
        z[i] = f.cmul(z[i], wt)
    f.pool.put(wt)
    z = f.dft4(z[:4], +1) + f.dft4(z[4:], +1)
    f.write(z, A + 3, [e_ * 32 + t * 8 for e_ in range(2) for t in range(4)])
    z = f.read(A + 2, [k * 32 for k in range(8)])
    z = f.twiddle(z, TW3, True); z = f.dft8(z, +1)
    f.write(z, A + 2, [j * 32 for j in range(8)])
    z = f.read(A + 1, [k * 288 for k in range(8)])
    z = f.twiddle(z, TW2, True); z = f.dft8(z, +1)
    f.write(z, A + 1, [j * 256 for j in range(8)])
    e("s_waitcnt lgkmcnt(0)")
    e("s_barrier")
    z = f.read(A, [k * REGION for k in range(8)])
    z = f.twiddle(z, TW1, True); z = f.dft8(z, +1)
    e.stamp("f inv")
    e("v_lshlrev_b32 v4, 3, v5")
    e("s_lshl_b32 s54, s51, 2")
    e(f"s_add_u32 s54, s54, {L_OUT}")
    e("v_add_u32 v4, s54, v4")
    for j in range(8):
        e(f"v_pk_fma_f32 {P(z[j])}, {P(z[j])}, {P(MASK)}, {P(XOLD+2*j)}")
        e(f"v_cvt_pk_bf16_f32 v{z[j]}, v{z[j]}, v{z[j]+1}")
        e(f"ds_write_b32 v4, v{z[j]} offset:{j*2048}")
    e("s_waitcnt lgkmcnt(0)")
    e("s_barrier")
    e("v_lshlrev_b32 v4, 4, v0")
    e(f"ds_read_b128 v[16:19], v4 offset:{L_OUT}")
    e(f"ds_read_b128 v[20:23], v4 offset:{L_OUT + 8192}")
    e("v_lshrrev_b32 v6, 4, v0")
    e("v_mul_u32_u24 v6, 36864, v6")
    e("v_lshrrev_b32 v7, 3, v0")
    e("v_and_b32 v7, 1, v7")
    e("v_xor_b32 v7, s52, v7")
    e("v_lshl_add_u32 v6, v7, 7, v6")
    e("v_and_b32 v7, 7, v0")
    e("v_lshl_add_u32 v6, v7, 4, v6")
    e("s_lshl_b32 s53, s2, 8")
    e(f"s_add_u32 s53, s53, s{s_xout}")
    e(f"s_add_u32 s50, s53, {32 * 36864}")
    e("s_waitcnt lgkmcnt(0)")
    e(f"buffer_store_dwordx4 v[16:19], v6, {srd(SRD_WS)}, s53 offen sc1")
    e(f"buffer_store_dwordx4 v[20:23], v6, {srd(SRD_WS)}, s50 offen sc1")
```

```python
from gen_common import *

def p0(e):
    e.make_srd(SRD_A, S_AX, XBYTES)
    e(f"s_lshl_b32 s50, s{S_QB}, 5")
    e(f"v_add_u32 v4, s50, v{V_R16}")
    e("v_mul_u32_u24 v4, 1152, v4")
    e(f"v_lshl_add_u32 v4, v{V_GQ}, 4, v4")
    for m in range(5):
        skip = None
        if m == 4:
            skip = e.L("p0dma")
            e(f"s_cmp_ge_u32 s{S_WAVE}, 4")
            e(f"s_cbranch_scc1 {skip}")
        e(f"s_add_u32 s50, s{S_WAVE}, {8*m}")
        e("s_cmp_ge_u32 s50, 18")
        e("s_cselect_b32 s51, 18, 0")
        e("s_cselect_b32 s52, 18432, 0")
        e("s_sub_u32 s51, s50, s51")
        e("s_lshl_b32 s51, s51, 6")
        e("s_add_u32 s51, s51, s52")
        e("s_lshl_b32 m0, s50, 10")
        e(f"buffer_load_dwordx4 v4, {srd(SRD_A)}, s51 offen lds")
        if skip:
            e.label(skip)
    e.make_srd(SRD_T, S_FT, 36 * 18432)
    e(f"v_lshlrev_b32 v5, 4, v{V_LANE}")
    e(f"s_mul_i32 s56, s{S_HG}, 9")
    e(f"s_add_u32 s57, s56, s{S_WAVE}")
    e("s_mul_i32 s57, s57, 18432")
    e.load_a_frags(SRD_T, 57, G_A, vlane16=5)
    nx = e.L("p0nx")
    e(f"s_cmp_ge_u32 s{S_WAVE}, 2")
    e(f"s_cbranch_scc1 {nx}")
    e("s_add_u32 s57, s56, 8")
    e("s_mul_i32 s57, s57, 18432")
    e.load_a_frags(SRD_T, 57, G_AX, vlane16=5)
    e.label(nx)
    e.make_srd(SRD_A, S_WR, S * 289 * 2)
    e.make_srd(SRD_B, S_WI, S * 289 * 2)
    e("s_lshr_b32 s50, s2, 2")
    e("s_and_b32 s51, s2, 3")
    e("s_lshr_b32 s52, s50, 3")
    e("s_and_b32 s53, s50, 7")
    e("s_lshl_b32 s53, s53, 3")
    e("s_add_u32 s52, s52, s53")
    e(f"v_and_b32 v6, 7, v{V_LANE}")
    e("v_lshlrev_b32 v7, 6, v6")
    e("v_add_u32 v7, s52, v7")
    e("v_mul_u32_u24 v7, 578, v7")
    e("s_mul_i32 s54, s51, 72")
    e(f"v_lshrrev_b32 v8, 3, v{V_LANE}")
    e("s_lshl_b32 s55, s50, 7")
    e(f"s_add_u32 s55, s55, {WT}")
    e("v_mov_b32 v218, 0")
    e("v_mov_b32 v219, 0")
    wt_done = e.L("wtdone")
    for rnd in range(2):
        if rnd == 1:
            e(f"s_cmp_lg_u32 s{S_WAVE}, 0")
            e(f"s_cbranch_scc1 {wt_done}")
            e("s_add_u32 s58, s54, 64")
        else:
            e(f"s_lshl_b32 s58, s{S_WAVE}, 3")
            e("s_add_u32 s58, s58, s54")
        d = 208 + 4 * rnd
        d2 = 220 + 4 * rnd
        a = 216 + 2 * rnd
        e(f"v_add_u32 v9, s58, v8")
        e("v_cmp_eq_u32 vcc, 0, v9")
        e("v_mov_b32 v10, 288")
        e("v_cndmask_b32 v10, v9, v10, vcc")
        e(f"v_lshl_add_u32 v{a}, v10, 1, v7")
        e("v_lshlrev_b32 v9, 13, v9")
        e(f"v_lshl_add_u32 v{a+1}, v6, 4, v9")
        for f3 in range(4):
            e(f"s_mov_b32 s59, {f3 * 512 * 578}")
            e(f"buffer_load_ushort v{d+f3}, v{a}, {srd(SRD_A)}, s59 offen")
            e(f"buffer_load_ushort v{d2+f3}, v{a}, {srd(SRD_B)}, s59 offen")
    e.label(wt_done)
    nz = e.L("nozero")
    e("s_cmp_lg_u32 s2, 0")
    e(f"s_cbranch_scc1 {nz}")
    e("v_mov_b32 v12, 0")
    e("v_mov_b32 v13, 0")
    e("v_mov_b32 v14, 0")
    e("v_mov_b32 v15, 0")
    e("v_lshlrev_b32 v9, 4, v0")
    for k in range(3):
        e(f"s_mov_b32 s59, {CNT + 8192*k}")
        e(f"buffer_store_dwordx4 v[12:15], v9, {srd(SRD_WS)}, s59 offen sc1")
    e.label(nz)
    e.stamp("p0 issued")
    e("s_waitcnt vmcnt(0)")
    e("s_barrier")
    e.stamp("p0 loaded")
    ng = e.L("nogo")
    e(f"s_or_b32 s50, s2, s{S_WAVE}")
    e("s_cmp_lg_u32 s50, 0")
    e(f"s_cbranch_scc1 {ng}")
    e.make_srd(SRD_A, S_DBG, 256)
    e("v_mov_b32 v9, 0")
    e("v_mov_b32 v10, 1")
    e("s_mov_b64 exec, 1")
    e(f"buffer_store_dword v10, v9, {srd(SRD_A)}, 0 offen sc1")
    e("s_mov_b64 exec, -1")
    e.label(ng)
    for r in range(4):
        e(f"v_lshl_or_b32 v{208+r}, v{220+r}, 16, v{208+r}")
    e(f"buffer_store_dwordx4 v[208:211], v217, {srd(SRD_WS)}, s55 offen sc1")
    w1 = e.L("wt1")
    e(f"s_cmp_lg_u32 s{S_WAVE}, 0")
    e(f"s_cbranch_scc1 {w1}")
    for r in range(4):
        e(f"v_lshl_or_b32 v{212+r}, v{224+r}, 16, v{212+r}")
    e(f"buffer_store_dwordx4 v[212:215], v219, {srd(SRD_WS)}, s55 offen sc1")
    e.label(w1)
    e(f"s_and_b32 s50, s{S_WAVE}, 1")
    e("s_mul_i32 s50, s50, 18432")
    e(f"v_lshlrev_b32 v56, 4, v{V_LANE}")
    e("v_add_u32 v57, 18432, v56")
    e("v_subrev_u32 v57, s50, v57")
    e("v_add_u32 v56, s50, v56")
    e.g144_both("frag", 56, 57)
    e.stamp("p0 gemm")
    e(f"s_mov_b32 s{S_X}, {X0}")
    e(f"s_mov_b32 s{S_X+1}, {PART0}")
    e.xhat_epilogue(S_X, S_X + 1)
```

```python
from gen_common import *

PA = 64
PB = 16
PACC = 140
TILE = 18432


def krow_to_j(e, ks_sgpr, dst):
    lo, done = e.L("jlo"), e.L("jdone")
    e(f"s_cmp_ge_u32 s{ks_sgpr}, 16")
    e(f"s_cbranch_scc0 {lo}")
    e(f"s_sub_u32 s58, s{ks_sgpr}, 16")
    e("s_lshl_b32 s58, s58, 4")
    e("v_lshrrev_b32 v13, 1, v12")
    e("v_add_u32 v13, s58, v13")
    e("v_mul_u32_u24 v13, 18, v13")
    e("v_and_b32 v14, 1, v12")
    e(f"v_add3_u32 v{dst}, v13, v14, 16")
    e(f"s_branch {done}")
    e.label(lo)
    e(f"s_lshl_b32 s58, s{ks_sgpr}, 1")
    e("v_lshrrev_b32 v13, 4, v12")
    e("v_add_u32 v13, s58, v13")
    e("v_mul_u32_u24 v13, 18, v13")
    e("v_bfe_u32 v14, v12, 2, 1")
    e("v_lshl_add_u32 v13, v14, 3, v13")
    e("v_bfe_u32 v14, v12, 3, 1")
    e("v_lshl_add_u32 v13, v14, 2, v13")
    e("v_and_b32 v14, 3, v12")
    e(f"v_add_u32 v{dst}, v13, v14")
    e.label(done)


def job_geometry(e, s_job):
    e(f"s_mul_hi_u32 s61, s{s_job}, {((1 << 32) + 4) // 5}")
    e("s_mul_i32 s60, s61, 5")
    e(f"s_sub_u32 s60, s{s_job}, s60")
    e(f"s_lshr_b32 s57, s{S_WAVE}, 1")
    e("s_lshl_b32 s56, s60, 2")
    e("s_add_u32 s57, s57, s56")
    e(f"s_and_b32 s56, s{S_WAVE}, 1")
    e(f"v_lshrrev_b32 v12, 2, v{V_R16}")
    e("v_lshlrev_b32 v12, 3, v12")
    e(f"v_and_b32 v13, 3, v{V_R16}")
    e("v_add_u32 v12, v12, v13")
    e("s_lshl_b32 s55, s56, 2")
    e("v_add_u32 v12, s55, v12")


def main_loop_and_store(e, mode, s_dst):
    def rd(kk):
        b = PB + 16 * (kk % 3)
        for T in range(4):
            if mode == "tr":
                base0, base1 = (8, 9) if T < 2 else (10, 11)
                off = (T % 2) * TILE + kk * 1024
                e(f"ds_read_b64_tr_b16 {vr(b+4*T,2)}, v{base0} offset:{off}")
                e(f"ds_read_b64_tr_b16 {vr(b+4*T+2,2)}, v{base1} offset:{off}")
            else:
                base = 8 if T < 2 else 10
                e(f"ds_read_b128 {vr(b+4*T,4)}, v{base} offset:{(T % 2) * TILE + kk * 1024}")
    per = 8 if mode == "tr" else 4
    rd(0)
    for kk in range(18):
        if kk + 1 < 18:
            rd(kk + 1)
            e(f"s_waitcnt lgkmcnt({per})")
        else:
            e("s_waitcnt lgkmcnt(0)")
        b = PB + 16 * (kk % 3)
        for T in range(4):
            c = "0" if kk == 0 else vr(PACC + 4*T, 4)
            e(f"v_mfma_f32_16x16x32_bf16 {vr(PACC+4*T,4)}, {vr(PA+4*kk,4)}, {vr(b+4*T,4)}, {c}")
    e(f"v_lshlrev_b32 v4, 4, v{V_LANE}")
    e("s_lshl_b32 s55, s56, 3")
    e("v_add_u32 v4, s55, v4")
    e("s_lshl_b32 s54, s61, 2")
    e("s_mul_i32 s54, s54, 18")
    e("s_add_u32 s54, s54, s57")
    e("s_lshl_b32 s54, s54, 10")
    e(f"s_add_u32 s54, s54, s{s_dst}")
    for T in range(4):
        e(f"v_cvt_pk_bf16_f32 v{PACC+4*T}, v{PACC+4*T}, v{PACC+4*T+1}")
        e(f"v_cvt_pk_bf16_f32 v{PACC+4*T+1}, v{PACC+4*T+2}, v{PACC+4*T+3}")
        e(f"buffer_store_dwordx2 {vr(PACC+4*T,2)}, v4, {srd(SRD_WS)}, s54 offen sc1")
        if T < 3:
            e(f"s_add_u32 s54, s54, {TILE}")


def prep_q(e, s_job):
    job_geometry(e, s_job)
    e(f"v_lshrrev_b32 v4, 1, v{V_LANE}")
    e("v_bfe_u32 v5, v4, 3, 1")
    e("v_lshlrev_b32 v5, 2, v5")
    e("v_xor_b32 v4, v4, v5")
    e(f"v_and_b32 v5, 1, v{V_LANE}")
    e("v_lshlrev_b32 v5, 4, v5")
    kvjob, staged = e.L("kvjob"), e.L("staged")
    e("s_cmp_eq_u32 s61, 9")
    e(f"s_cbranch_scc1 {kvjob}")
    e.make_srd(SRD_A, S_WQ, D * D * 2)
    e("v_mul_u32_u24 v6, 1152, v4")
    e("v_add_u32 v6, v6, v5")
    e("s_lshl_b32 s54, s61, 7")
    for m in range(9):
        e(f"s_add_u32 s50, s{S_WAVE}, {8*m}")
        e(f"s_mul_hi_u32 s51, s50, {((1 << 32) + 17) // 18}")
        e("s_mul_i32 s52, s51, 18")
        e("s_sub_u32 s52, s50, s52")
        e(f"s_mul_i32 s52, s52, {32 * 1152}")
        e("s_lshl_b32 s53, s51, 5")
        e("s_add_u32 s52, s52, s53")
        e("s_add_u32 s52, s52, s54")
        e("s_lshl_b32 m0, s50, 10")
        e(f"buffer_load_dwordx4 v6, {srd(SRD_A)}, s52 offen lds")
    e(f"s_branch {staged}")
    e.label(kvjob)
    e.make_srd(SRD_A, S_WK, D * DH * 2)
    e.make_srd(SRD_B, S_WV, D * DH * 2)
    e("v_mul_u32_u24 v6, 36, v4")
    e("v_add_u32 v6, v6, v5")
    for m in range(9):
        useb, nxt = e.L("kvb"), e.L("kvn")
        e(f"s_add_u32 s50, s{S_WAVE}, {8*m}")
        e(f"s_mul_hi_u32 s51, s50, {((1 << 32) + 17) // 18}")
        e("s_mul_i32 s52, s51, 18")
        e("s_sub_u32 s52, s50, s52")
        e(f"s_mul_i32 s52, s52, {32 * 36}")
        e("s_lshr_b32 s53, s51, 1")
        e("s_lshl_b32 s53, s53, 5")
        e("s_add_u32 s52, s52, s53")
        e("v_add_u32 v7, s52, v6")
        e("s_lshl_b32 m0, s50, 10")
        e("s_bitcmp1_b32 s51, 0")
        e(f"s_cbranch_scc1 {useb}")
        e(f"buffer_load_dwordx4 v7, {srd(SRD_A)}, 0 offen lds")
        e(f"s_branch {nxt}")
        e.label(useb)
        e(f"buffer_load_dwordx4 v7, {srd(SRD_B)}, 0 offen lds")
        e.label(nxt)
    e.label(staged)
    idle = e.L("pq_idle")
    e.make_srd(SRD_T, S_FT, 36 * TILE)
    e("s_cmp_ge_u32 s57, 18")
    e(f"s_cbranch_scc1 {idle}")
    e("s_lshl_b32 s55, s57, 5")
    e("v_add_u32 v13, s55, v12")
    e("v_lshrrev_b32 v14, 4, v13")
    e(f"v_mul_u32_u24 v14, {TILE}, v14")
    e("v_and_b32 v13, 15, v13")
    e(f"v_lshl_add_u32 v13, v{V_GQ}, 4, v13")
    e("v_lshl_add_u32 v14, v13, 4, v14")
    e("s_mov_b32 s59, 0")
    e.load_a_frags(SRD_T, 59, PA, vlane16=14)
    e.label(idle)
    e("s_waitcnt vmcnt(0)")
    e("s_barrier")
    fin = e.L("pq_fin")
    e("s_cmp_ge_u32 s57, 18")
    e(f"s_cbranch_scc1 {fin}")
    nodc = e.L("pq_nodc")
    e("s_or_b32 s55, s57, s56")
    e("s_cmp_lg_u32 s55, 0")
    e(f"s_cbranch_scc1 {nodc}")
    e(f"v_cmp_eq_u32 vcc, 1, v{V_R16}")
    e("v_mov_b32 v13, 0")
    for r in range(72):
        e(f"v_cndmask_b32 v{PA+r}, v{PA+r}, v13, vcc")
    e.label(nodc)
    e(f"v_lshrrev_b32 v4, 2, v{V_R16}")
    e(f"v_and_b32 v5, 3, v{V_R16}")
    e(f"v_and_b32 v6, 1, v{V_GQ}")
    e(f"v_lshl_add_u32 v7, v{V_GQ}, 3, v4")
    e("v_lshl_add_u32 v8, v6, 2, v7")
    e("v_xor_b32 v9, 4, v8")
    e("v_lshlrev_b32 v8, 5, v8")
    e("v_lshlrev_b32 v9, 5, v9")
    e("v_lshl_add_u32 v8, v5, 3, v8")
    e("v_lshl_add_u32 v9, v5, 3, v9")
    e(f"v_add_u32 v10, {2*TILE}, v8")
    e(f"v_add_u32 v11, {2*TILE}, v9")
    e(f"s_mov_b32 s62, {WQF}")
    main_loop_and_store(e, "tr", 62)
    e.label(fin)


def prep_o(e, s_job, identity, s_dstoff):
    job_geometry(e, s_job)
    if not identity:
        e.make_srd(SRD_T, S_FT, 36 * TILE)
        e(f"v_lshlrev_b32 v6, 4, v{V_LANE}")
        e("s_lshl_b32 s54, s61, 2")
        e(f"s_mul_i32 s54, s54, {TILE}")
        for m in range(9):
            e(f"s_add_u32 s50, s{S_WAVE}, {8*m}")
            e("s_lshl_b32 s52, s50, 10")
            e("s_mov_b32 m0, s52")
            e("s_add_u32 s52, s52, s54")
            e(f"buffer_load_dwordx4 v6, {srd(SRD_T)}, s52 offen lds")
    else:
        e("v_mov_b32 v16, 0")
        e("v_mov_b32 v17, 0")
        e("v_mov_b32 v18, 0")
        e("v_mov_b32 v19, 0")
        e("v_lshlrev_b32 v6, 4, v0")
        for m in range(9):
            if m % 8 == 0 and m:
                e("v_add_u32 v6, 65536, v6")
            e(f"ds_write_b128 v6, v[16:19] offset:{(m % 8) * 8192}")
        e("s_waitcnt lgkmcnt(0)")
        e("s_barrier")
        skip = e.L("idskip")
        e(f"s_cmp_ge_u32 s{S_WAVE}, 4")
        e(f"s_cbranch_scc1 {skip}")
        e(f"s_lshr_b32 s50, s{S_WAVE}, 1")
        e("s_lshl_b32 s51, s61, 1")
        e("s_add_u32 s50, s50, s51")
        e("s_lshl_b32 s50, s50, 10")
        e(f"s_mul_i32 s51, s{S_WAVE}, {TILE}")
        e("s_add_u32 s50, s50, s51")
        e(f"s_and_b32 s51, s{S_WAVE}, 1")
        e("s_lshl_b32 s51, s51, 1")
        e(f"v_lshrrev_b32 v7, 3, v{V_R16}")
        e("v_add_u32 v7, s51, v7")
        e(f"v_lshl_add_u32 v8, v7, 4, v{V_R16}")
        e("v_lshlrev_b32 v8, 4, v8")
        e(f"v_and_b32 v9, 7, v{V_R16}")
        e("v_lshl_add_u32 v8, v9, 1, v8")
        e("v_add_u32 v8, s50, v8")
        e("v_mov_b32 v9, 0x3f80")
        e(f"v_cmp_eq_u32 vcc, 0, v{V_GQ}")
        e("s_and_saveexec_b64 s[52:53], vcc")
        e("ds_write_b16 v8, v9")
        e("s_mov_b64 exec, s[52:53]")
        e.label(skip)
    idle = e.L("po_idle")
    e("s_cmp_ge_u32 s57, 18")
    e(f"s_cbranch_scc1 {idle}")
    krow_to_j(e, 57, 15)
    e.make_srd(SRD_A, S_WO, D * D * 2)
    e("v_mul_u32_u24 v14, 1152, v15")
    e(f"v_lshl_add_u32 v14, v{V_GQ}, 4, v14")
    for kk in range(18):
        e(f"buffer_load_dwordx4 {vr(PA+4*kk,4)}, v14, {srd(SRD_A)}, 0 offen offset:{kk*64}")
    e.label(idle)
    e("s_waitcnt vmcnt(0) lgkmcnt(0)")
    e("s_barrier")
    fin = e.L("po_fin")
    e("s_cmp_ge_u32 s57, 18")
    e(f"s_cbranch_scc1 {fin}")
    e(f"v_lshlrev_b32 v8, 4, v{V_LANE}")
    e(f"v_add_u32 v10, {2*TILE}, v8")
    main_loop_and_store(e, "frag", s_dstoff)
    e.label(fin)


def prep_phase1(e):
    q, o, done = e.L("prepq"), e.L("prepo"), e.L("prepdone")
    e("s_sub_u32 s63, s2, 144")
    e("s_cmp_lt_u32 s63, 50")
    e(f"s_cbranch_scc1 {q}")
    e("s_cmp_lt_u32 s63, 95")
    e(f"s_cbranch_scc1 {o}")
    e(f"s_branch {done}")
    e.label(q)
    prep_q(e, 63)
    e(f"s_branch {done}")
    e.label(o)
    e("s_sub_u32 s63, s63, 50")
    e(f"s_mov_b32 s{S_X+3}, {WOF}")
    prep_o(e, 63, False, S_X + 3)
    e.label(done)


def prep_phase5(e):
    done = e.L("prep5done")
    e("s_sub_u32 s63, s2, 144")
    e("s_cmp_ge_u32 s63, 45")
    e(f"s_cbranch_scc1 {done}")
    e(f"s_mov_b32 s{S_X+3}, {WO2}")
    prep_o(e, 63, True, S_X + 3)
    e.label(done)
```

```python
S, D, H, DH = 2048, 576, 32, 18
NWG = 256
XBYTES = S * D * 2

CNT = 0
CNT_GROUP = 4096
CNT_BYTES = 24576
X0 = 0x10000
X1 = X0 + XBYTES
X2 = X1 + XBYTES
X3 = X2 + XBYTES
PART0 = X3 + XBYTES
PART2 = PART0 + 32768
WT = PART2 + 32768
WQF = WT + XBYTES
WOF = WQF + 40 * 18432
WO2 = WOF + 36 * 18432
KVB = 151552
KV0 = WO2 + 36 * 18432
KV1 = KV0 + KVB
O0 = KV1 + KVB
O1 = O0 + XBYTES
PROF = O1 + XBYTES
WS_END = PROF + 131072

CHUNK = 18944
K2_OFF = 8192
V_OFF = 9216
VT = 1216

LDS_BYTES = 163840
L_XT2 = 113664
L_MISC = KVB
L_QL = L_MISC
QL_PITCH = 296
L_RED = L_MISC
L_SS = L_MISC + 9728
L_INV = L_SS + 512
L_FLAG = L_INV + 128
L_STAT = L_SS
```

```python
import math, struct

def f2u(x):
    return struct.unpack("<I", struct.pack("<f", x))[0]

def bf16(x):
    u = f2u(x)
    return (u + 0x7fff + ((u >> 16) & 1)) >> 16

def tables():
    c = math.sqrt(2 / 576)
    s = [".p2align 8"]
    vals = [bf16(c * math.cos(2 * math.pi * n / 576)) if n % 288 != 144 else 0 for n in range(576)]
    vals += [bf16(1 / 24), bf16(-1 / 24)]
    for n, v in enumerate(vals):
        s.append(f".set C{n}, {v}")
    s.append(r"""
.altmacro
.macro emit2 a, b
.short C\a, C\b
.endm
.macro ftp k, off, d
emit2 %((\k*(\d)+\off)%576), %((\k*((\d)+1)+\off)%576)
.endm
.macro fip k, d
emit2 %((\k)*\d%576), %(((\k)*\d+144)%576)
.endm
.type TAB_FT,@object
TAB_FT:
.set mtg, 0
.rept 36
.set ks, 0
.rept 18
.set l, 0
.rept 64
.set f, 16*mtg + (l & 15)
.if f == 0
.short C576, C577, C576, C577, C576, C577, C576, C577
.elseif f == 1
.short C576, C576, C576, C576, C576, C576, C576, C576
.else
.set d0, 32*ks + 8*(l >> 4)
.set kk, f >> 1
.set off, 144*(f & 1)
ftp kk, off, d0
ftp kk, off, d0+2
ftp kk, off, d0+4
ftp kk, off, d0+6
.endif
.set l, l+1
.endr
.set ks, ks+1
.endr
.set mtg, mtg+1
.endr
.size TAB_FT, 663552
.type TAB_FI,@object
TAB_FI:
.set mtg, 0
.rept 36
.set ks, 0
.rept 18
.set l, 0
.rept 64
.set d, 16*mtg + (l & 15)
.set k0, 16*ks + 4*(l >> 4)
.if k0 == 0
emit2 %(576+(d&1)), 576
.else
fip k0, d
.endif
fip k0+1, d
fip k0+2, d
fip k0+3, d
.set l, l+1
.endr
.set ks, ks+1
.endr
.set mtg, mtg+1
.endr
.size TAB_FI, 663552
.noaltmacro
""")
    s.append(".p2align 8\n.type TAB_TW,@object\nTAB_TW:")
    def emit(vals):
        for i in range(0, len(vals), 8):
            s.append(".long " + ",".join(hex(v) for v in vals[i:i+8]))
    for n, m in ((2048, 256), (256, 32), (32, 4)):
        v = []
        for k in range(1, 8):
            for t in range(m):
                a = -2 * math.pi * ((t * k) % n) / n
                v += [f2u(math.cos(a)), f2u(math.sin(a))]
        emit(v)
    s.append(f".size TAB_TW, {7 * (256 + 32 + 4) * 8}")
    return "\n".join(s) + "\n"
```

```python
import sys
from gen_common import *
import gen_p0, gen_fft, gen_prep, gen_attn, tables

NAME = "interleave_layers__spectral_gfnet__grouped_kv_mqa__prompt_kernel"

HEADER = """; Kernarg layout (88 bytes, ptrs only, base s[0:1]):
; @launch grid=(256,1,1) block=(512,1,1) lds=163840
.amdgcn_target "amdgcn-amd-amdhsa--gfx950"
.text
.globl {n}
.p2align 8
.type {n},@function
{n}:
"""

FOOTER = """.section .rodata,"a"
.p2align 6
.amdhsa_kernel {n}
  .amdhsa_next_free_vgpr {v}
  .amdhsa_next_free_sgpr {s}
  .amdhsa_accum_offset {v}
  .amdhsa_group_segment_fixed_size 0
  .amdhsa_kernarg_size 88
  .amdhsa_user_sgpr_count 2
  .amdhsa_user_sgpr_kernarg_segment_ptr 1
  .amdhsa_system_sgpr_workgroup_id_x 1
  .amdhsa_float_denorm_mode_32 3
.end_amdhsa_kernel
"""


def build(stop=99, profile=False):
    e = Gen()
    e.profile = profile
    A = gen_attn

    def halt(k):
        if stop == k:
            e("s_branch L_fin")

    def tw_prefetch():
        sk = e.L("twpre")
        e("s_cmp_ge_u32 s2, 144")
        e(f"s_cbranch_scc1 {sk}")
        gen_fft.sfilter_prefetch(e)
        e.label(sk)

    e.prologue()
    e.stamp('start')
    gen_p0.p0(e)
    e.stamp('p0 done')
    e.arrive(go_check=True)
    tw_prefetch()
    e.wait()
    e.stamp('bar0')
    halt(0)
    e.label("L_layer")
    nof, sdone, p5 = e.L("nofft"), e.L("sdone"), e.L("prep5")
    e("s_cmp_ge_u32 s2, 144")
    e(f"s_cbranch_scc1 {nof}")
    e(f"s_cmp_eq_u32 s{S_LAYER}, 0")
    e.sel(S_X, X0, X2)
    e.sel(S_X+1, X1, X3)
    e.sel(S_X+2, PART0, PART2)
    gen_fft.sfilter(e, S_X, S_X + 1, S_X + 2)
    e(f"s_branch {sdone}")
    e.label(nof)
    e("s_waitcnt vmcnt(0)")
    e(f"s_cmp_lg_u32 s{S_LAYER}, 0")
    e(f"s_cbranch_scc1 {p5}")
    gen_prep.prep_phase1(e)
    e(f"s_branch {sdone}")
    e.label(p5)
    gen_prep.prep_phase5(e)
    e.label(sdone)
    e.stamp('s done')
    e.arrive()
    e.wait()
    e.stamp('bar1')
    halt(1)
    e(f"s_cmp_eq_u32 s{S_LAYER}, 0")
    e.sel(A.S_XIN, X1, X3)
    e.sel(A.S_KV, KV0, KV1)
    e.sel(A.S_OB, O0, O1)
    A.p2(e)
    e.stamp('p2 done')
    e.wait()
    e.stamp('bar2')
    halt(2)
    A.attention(e)
    e.stamp('attn done')
    e.arrive(group=True)
    A.wo_prefetch(e, main=False, extra=True)
    e.wait(group=True)
    e.stamp('bar3')
    halt(3)
    A.p4(e)
    last = e.L("last")
    e(f"s_cmp_lg_u32 s{S_LAYER}, 0")
    e(f"s_cbranch_scc1 {last}")
    e(f"s_mov_b32 s{S_X}, {X2}")
    e(f"s_mov_b32 s{S_X+1}, {PART2}")
    e.xhat_epilogue(S_X, S_X + 1)
    e.stamp('p4 done')
    e.arrive()
    tw_prefetch()
    e.wait()
    e.stamp('bar4')
    halt(4)
    e(f"s_mov_b32 s{S_LAYER}, 1")
    e("s_branch L_layer")
    e.label(last)
    A.out_epilogue(e)
    e.label("L_fin")
    e.dump_stamps()
    e.label("L_end")
    e("s_endpgm")
    n = e.fix_hazards()
    errs = e.check_waits()
    for x in errs[:40]:
        print("WAITCHECK:", x, file=sys.stderr)
    mv, ms = e.max_regs()
    print(f"instructions={sum(1 for i in e.ins if i.mn)} nops_inserted={n} vgpr={mv} sgpr={ms} waiterrs={len(errs)}", file=sys.stderr)
    assert mv <= 256 and ms <= 102
    if profile:
        open("stamps.txt", "w").write("\n".join(e.stamp_names))
    return HEADER.format(n=NAME) + e.text() + FOOTER.format(n=NAME, v=256, s=102) + tables.tables()


if __name__ == "__main__":
    stop = int(sys.argv[2]) if len(sys.argv) > 2 else 99
    prof = len(sys.argv) > 3 and sys.argv[3] == "prof"
    open(sys.argv[1], "w").write(build(stop, prof))
```

```python
from asmlib import Prog
from layout import *

S_AX, S_WR, S_WI = 4, 6, 8
S_WQ, S_WK, S_WV, S_WO = 12, 14, 16, 18
S_OUT, S_DBG, S_WS = 20, 22, 24
S_WAVE, S_QB = 26, 27
SRD_WS, SRD_A, SRD_B, SRD_T = 28, 32, 36, 40
S_HG, S_LAYER, S_GT, S_GRP = 44, 45, 46, 47
S_T = 48
S_FT, S_FI, S_TW = 66, 68, 70
S_X = 72

V_TID, V_LANE, V_R16, V_GQ = 0, 1, 2, 3

G_A = 64
G_AX = 136
G_B = 16
G_ACC = 40

SPIN_LIMIT = 60000


def srd(r):
    return f"s[{r}:{r+3}]"


def sp(r):
    return f"s[{r}:{r+1}]"


def vr(r, n=1):
    return f"v{r}" if n == 1 else f"v[{r}:{r+n-1}]"


class Gen(Prog):
    def __init__(self):
        super().__init__()
        self.uid = 0

    profile = False
    nstamp = 0

    def stamp(self, name=""):
        if not self.profile:
            return
        k = self.nstamp
        self.nstamp += 1
        assert k < 32
        self.stamp_names = getattr(self, "stamp_names", []) + [name]
        sk = self.L("st")
        self(f"s_cmp_lg_u32 s{S_WAVE}, 0")
        self(f"s_cbranch_scc1 {sk}")
        self("s_memrealtime s[96:97]")
        self("s_lshl_b32 s98, s2, 8")
        self(f"s_lshl_b32 s99, s{S_LAYER}, 7")
        self("s_add_u32 s98, s98, s99")
        self(f"s_add_u32 s98, s98, {PROF + 4*k}")
        self("s_waitcnt lgkmcnt(0)")
        self("v_mov_b32 v255, s96")
        self("v_mov_b32 v254, 0")
        self("s_mov_b64 exec, 1")
        self(f"buffer_store_dword v255, v254, {srd(SRD_WS)}, s98 offen")
        self("s_mov_b64 exec, -1")
        self.label(sk)

    def cyc_begin(self):
        if self.profile:
            self("s_memtime s[92:93]")
            self("s_memrealtime s[94:95]")
            self("s_waitcnt lgkmcnt(0)")

    def cyc_end(self, slot):
        if not self.profile:
            return
        e = self
        e("s_memtime s[96:97]")
        e("s_memrealtime s[98:99]")
        e("s_waitcnt lgkmcnt(0)")
        e("s_sub_u32 s96, s96, s92")
        e("s_sub_u32 s98, s98, s94")
        e("v_mov_b32 v254, s96")
        e("v_mov_b32 v255, s98")
        e("s_lshl_b32 s96, s2, 7")
        e(f"s_lshl_b32 s97, s{S_LAYER}, 6")
        e("s_add_u32 s96, s96, s97")
        e(f"s_lshl_b32 s97, s{S_WAVE}, 3")
        e("s_add_u32 s96, s96, s97")
        e(f"s_add_u32 s96, s96, {PROF + 65536}")
        e("v_mov_b32 v253, 0")
        e("s_mov_b64 exec, 1")
        e(f"buffer_store_dwordx2 v[254:255], v253, {srd(SRD_WS)}, s96 offen")
        e("s_mov_b64 exec, -1")

    def dump_stamps(self):
        self.stamp("end")

    def L(self, base):
        self.uid += 1
        return f"L_{base}_{self.uid}"

    def sel(self, dst, a, b):
        self(f"s_mov_b32 s{dst}, {b}")
        self(f"s_cselect_b32 s{dst}, {a}, s{dst}")

    def make_srd(self, r, base, size):
        self(f"s_mov_b32 s{r}, s{base}")
        self(f"s_mov_b32 s{r+1}, s{base+1}")
        self(f"s_mov_b32 s{r+2}, {size}")
        self(f"s_mov_b32 s{r+3}, 0x20000")

    def prologue(self):
        e = self
        e("s_cmp_ge_u32 s2, 256")
        e("s_cbranch_scc1 L_end")
        e("s_load_dwordx4 s[4:7], s[0:1], 0")
        e("s_load_dwordx2 s[8:9], s[0:1], 16")
        e("s_load_dwordx8 s[12:19], s[0:1], 32")
        e("s_load_dwordx4 s[20:23], s[0:1], 64")
        e("s_load_dwordx2 s[24:25], s[0:1], 80")
        e(f"v_and_b32 v{V_LANE}, 63, v0")
        e("v_lshrrev_b32 v4, 6, v0")
        e(f"v_and_b32 v{V_R16}, 15, v0")
        e(f"v_lshrrev_b32 v{V_GQ}, 4, v{V_LANE}")
        e(f"v_readfirstlane_b32 s{S_WAVE}, v4")
        e("s_and_b32 s48, s2, 7")
        e("s_lshr_b32 s49, s2, 3")
        e("s_lshl_b32 s48, s48, 3")
        e("s_lshr_b32 s50, s49, 2")
        e(f"s_add_u32 s{S_QB}, s48, s50")
        e(f"s_and_b32 s{S_HG}, s49, 3")
        e(f"s_mov_b32 s{S_GT}, 0")
        e(f"s_mov_b32 s{S_GRP}, 0")
        e(f"s_mov_b32 s{S_LAYER}, 0")
        for reg, sym in ((S_FT, "TAB_FT"), (S_FI, "TAB_FI"), (S_TW, "TAB_TW")):
            e(f"s_getpc_b64 {sp(reg)}")
            e(f"s_add_u32 s{reg}, s{reg}, {sym}@rel32@lo+4")
            e(f"s_addc_u32 s{reg+1}, s{reg+1}, {sym}@rel32@hi+12")
        e("s_waitcnt lgkmcnt(0)")
        self.make_srd(SRD_WS, S_WS, WS_END)

    def arrive(self, group=False, go_check=False):
        e = self
        e("s_waitcnt vmcnt(0) lgkmcnt(0)")
        e("s_barrier")
        e.stamp("drained")
        if group:
            e(f"s_add_u32 s{S_GRP}, s{S_GRP}, 4")
        else:
            e(f"s_add_u32 s{S_GT}, s{S_GT}, 16")
        skip = e.L("arr")
        e(f"s_cmp_lg_u32 s{S_WAVE}, 0")
        e(f"s_cbranch_scc1 {skip}")
        if go_check:
            lp, ok = e.L("go"), e.L("gook")
            self.make_srd(SRD_A, S_DBG, 256)
            e("v_mov_b32 v4, 0")
            e("s_mov_b32 s48, 0")
            e.label(lp)
            e(f"buffer_load_dword v5, v4, {srd(SRD_A)}, 0 offen sc1")
            e("s_waitcnt vmcnt(0)")
            e("v_cmp_eq_u32 vcc, 0, v5")
            e("s_add_u32 s48, s48, 1")
            e(f"s_cmp_gt_u32 s48, {SPIN_LIMIT}")
            e(f"s_cbranch_scc1 {ok}")
            e(f"s_cbranch_vccz {ok}")
            e("s_sleep 1")
            e(f"s_branch {lp}")
            e.label(ok)
        if group:
            e(f"s_lshl_b32 s48, s{S_QB}, 8")
            e(f"s_add_u32 s48, s48, {CNT + CNT_GROUP}")
        else:
            e("s_and_b32 s48, s2, 15")
            e("s_lshl_b32 s48, s48, 8")
            if CNT:
                e(f"s_add_u32 s48, s48, {CNT}")
        e("v_mov_b32 v4, s48")
        e("v_mov_b32 v5, 1")
        e("s_mov_b64 exec, 1")
        e(f"buffer_atomic_add v5, v4, {srd(SRD_WS)}, 0 offen sc1")
        e("s_mov_b64 exec, -1")
        e.label(skip)

    def wait(self, group=False):
        e = self
        done, lp = e.L("wdone"), e.L("poll")
        e(f"s_cmp_lg_u32 s{S_WAVE}, 0")
        e(f"s_cbranch_scc1 {done}")
        if group:
            e(f"s_lshl_b32 s48, s{S_QB}, 8")
            e(f"s_add_u32 s48, s48, {CNT + CNT_GROUP}")
            e("v_mov_b32 v4, s48")
            tgt = S_GRP
        else:
            e(f"v_lshlrev_b32 v4, 8, v{V_R16}")
            if CNT:
                e(f"v_add_u32 v4, {CNT}, v4")
            tgt = S_GT
        e("s_mov_b32 s48, 0")
        e.label(lp)
        e(f"buffer_load_dword v5, v4, {srd(SRD_WS)}, 0 offen sc1")
        e("s_waitcnt vmcnt(0)")
        e(f"v_cmp_gt_u32 vcc, s{tgt}, v5")
        e("s_add_u32 s48, s48, 1")
        e(f"s_cmp_gt_u32 s48, {SPIN_LIMIT}")
        e(f"s_cbranch_scc1 {done}")
        e(f"s_cbranch_vccz {done}")
        e("s_sleep 1")
        e(f"s_branch {lp}")
        e.label(done)
        e("s_barrier")

    def load_a_frags(self, srdreg, s_tile_base, dst, ksteps=range(18), flags="", vlane16=None):
        e = self
        cur = None
        for ks in ksteps:
            hi = ks // 4
            if hi != cur:
                e(f"s_add_u32 s49, s{s_tile_base}, {hi * 4096}")
                cur = hi
            off = (ks % 4) * 1024
            o = f" offset:{off}" if off else ""
            e(f"buffer_load_dwordx4 {vr(dst + 4*ks, 4)}, v{vlane16}, {srd(srdreg)}, s49 offen{o} {flags}".rstrip())

    def g144(self, bmode, vbA, vbB, extra, after_step=None, zero_init=True):
        e = self
        accA, accB, accX = G_ACC, G_ACC + 4, G_ACC + 8

        def rd(ks):
            b = G_B + 8 * (ks % 3)
            if bmode == "frag":
                e(f"ds_read_b128 {vr(b,4)}, v{vbA} offset:{ks*1024}")
                e(f"ds_read_b128 {vr(b+4,4)}, v{vbB} offset:{ks*1024}")
                return 2
            e(f"ds_read_b64 {vr(b,2)}, v{vbA} offset:{ks*2048}")
            e(f"ds_read_b64 {vr(b+2,2)}, v{vbA} offset:{ks*2048+256}")
            e(f"ds_read_b64 {vr(b+4,2)}, v{vbB} offset:{ks*2048}")
            e(f"ds_read_b64 {vr(b+6,2)}, v{vbB} offset:{ks*2048+256}")
            return 4
        per = 2 if bmode == "frag" else 4
        rd(0)
        rd(1)
        for ks in range(18):
            if ks + 2 < 18:
                rd(ks + 2)
            left = min(2, 17 - ks) * per
            e(f"s_waitcnt lgkmcnt({left})")
            b = G_B + 8 * (ks % 3)
            a = G_A + 4 * ks
            cA = "0" if (ks == 0 and zero_init) else vr(accA, 4)
            cB = "0" if (ks == 0 and zero_init) else vr(accB, 4)
            cX = "0" if (ks == 0 and zero_init) else vr(accX, 4)
            e(f"v_mfma_f32_16x16x32_bf16 {vr(accA,4)}, {vr(a,4)}, {vr(b,4)}, {cA}")
            e(f"v_mfma_f32_16x16x32_bf16 {vr(accB,4)}, {vr(a,4)}, {vr(b+4,4)}, {cB}")
            if extra:
                e(f"v_mfma_f32_16x16x32_bf16 {vr(accX,4)}, {vr(G_AX+4*ks,4)}, {vr(b,4)}, {cX}")
            if after_step:
                after_step(ks)

    def g144_both(self, bmode, vbA, vbB, after_step=None, zero_init=True):
        e = self
        noex, done = e.L("g_noex"), e.L("g_done")
        e(f"s_cmp_ge_u32 s{S_WAVE}, 2")
        e(f"s_cbranch_scc1 {noex}")
        self.g144(bmode, vbA, vbB, True, after_step, zero_init)
        e(f"s_branch {done}")
        e.label(noex)
        self.g144(bmode, vbA, vbB, False, after_step, zero_init)
        e.label(done)

    def sum_over_gq(self, v, t):
        e = self
        e(f"v_mov_b32 v{t}, v{v}")
        e(f"v_permlane16_swap_b32 v{t}, v{v}")
        e(f"v_add_f32 v{v}, v{v}, v{t}")
        e(f"v_mov_b32 v{t}, v{v}")
        e(f"v_permlane32_swap_b32 v{t}, v{v}")
        e(f"v_add_f32 v{v}, v{v}, v{t}")

    def bf16_round(self, v, t):
        e = self
        e(f"v_cvt_pk_bf16_f32 v{t}, v{v}, v{v}")
        e(f"v_lshlrev_b32 v{v}, 16, v{t}")

    def inv_sigma(self, v, t, scale=None):
        e = self
        e(f"v_mul_f32 v{v}, 0x3ae38e39, v{v}")
        self.bf16_round(v, t)
        e(f"v_add_f32 v{v}, 0x3727c5ac, v{v}")
        self.bf16_round(v, t)
        e(f"v_sqrt_f32 v{v}, v{v}")
        self.bf16_round(v, t)
        e(f"v_rcp_f32 v{v}, v{v}")
        if scale is not None:
            e(f"v_mul_f32 v{v}, {scale}, v{v}")

    def xhat_epilogue(self, s_xdst, s_part):
        e = self
        accA, accB, accX = G_ACC, G_ACC + 4, G_ACC + 8
        e(f"s_mul_i32 s50, s{S_QB}, 144")
        e(f"s_mul_i32 s51, s{S_HG}, 36")
        e("s_add_u32 s50, s50, s51")
        e(f"s_lshl_b32 s51, s{S_WAVE}, 2")
        e("s_add_u32 s51, s51, s50")
        e("s_lshl_b32 s51, s51, 8")
        e(f"s_add_u32 s51, s51, s{s_xdst}")
        e("s_add_u32 s52, s50, 32")
        e("s_lshl_b32 s52, s52, 8")
        e(f"s_add_u32 s52, s52, s{s_xdst}")
        e(f"s_and_b32 s53, s{S_WAVE}, 1")
        e(f"v_lshrrev_b32 v4, 1, v{V_GQ}")
        e(f"v_xor_b32 v5, s53, v4")
        e(f"v_lshlrev_b32 v6, 8, v{V_GQ}")
        e(f"v_lshl_add_u32 v6, v{V_R16}, 3, v6")
        e("v_lshl_add_u32 v7, v5, 7, v6")
        e("v_xor_b32 v8, 128, v7")
        e(f"v_mul_f32 v9, v{accA}, v{accA}")
        e(f"v_mul_f32 v10, v{accB}, v{accB}")
        e(f"v_mul_f32 v11, v{accA+1}, v{accA+1}")
        e(f"v_mul_f32 v12, v{accB+1}, v{accB+1}")
        nodc = e.L("nodc")
        e(f"s_or_b32 s53, s{S_HG}, s{S_WAVE}")
        e("s_cmp_lg_u32 s53, 0")
        e(f"s_cbranch_scc1 {nodc}")
        e(f"v_cmp_eq_u32 vcc, 0, v{V_GQ}")
        e("v_mov_b32 v13, 0")
        e("v_cndmask_b32 v11, v11, v13, vcc")
        e("v_cndmask_b32 v12, v12, v13, vcc")
        e.label(nodc)
        e("v_add_f32 v9, v9, v11")
        e("v_add_f32 v10, v10, v12")
        for r in (2, 3):
            e(f"v_fmac_f32 v9, v{accA+r}, v{accA+r}")
            e(f"v_fmac_f32 v10, v{accB+r}, v{accB+r}")
        e(f"v_cvt_pk_bf16_f32 v14, v{accA}, v{accA+1}")
        e(f"v_cvt_pk_bf16_f32 v15, v{accA+2}, v{accA+3}")
        e(f"buffer_store_dwordx2 v[14:15], v7, {srd(SRD_WS)}, s51 offen sc1")
        e(f"v_cvt_pk_bf16_f32 v52, v{accB}, v{accB+1}")
        e(f"v_cvt_pk_bf16_f32 v53, v{accB+2}, v{accB+3}")
        e(f"buffer_store_dwordx2 v[52:53], v8, {srd(SRD_WS)}, s51 offen sc1")
        self.sum_over_gq(9, 13)
        self.sum_over_gq(10, 13)
        e(f"s_and_b32 s53, s{S_WAVE}, 1")
        e(f"s_lshl_b32 s54, s{S_WAVE}, 7")
        e("s_lshl_b32 s55, s53, 6")
        e("s_add_u32 s54, s54, s55")
        e(f"v_lshlrev_b32 v11, 2, v{V_R16}")
        e(f"v_add_u32 v11, s54, v11")
        e("v_xor_b32 v12, 64, v11")
        e(f"v_add_u32 v11, {L_STAT}, v11")
        e(f"v_add_u32 v12, {L_STAT}, v12")
        e("ds_write_b32 v11, v9")
        e("ds_write_b32 v12, v10")
        noex = e.L("ep_noex")
        e(f"s_cmp_ge_u32 s{S_WAVE}, 2")
        e(f"s_cbranch_scc1 {noex}")
        e(f"v_mul_f32 v9, v{accX}, v{accX}")
        for r in (1, 2, 3):
            e(f"v_fmac_f32 v9, v{accX+r}, v{accX+r}")
        e(f"v_cvt_pk_bf16_f32 v54, v{accX}, v{accX+1}")
        e(f"v_cvt_pk_bf16_f32 v55, v{accX+2}, v{accX+3}")
        e(f"buffer_store_dwordx2 v[54:55], v7, {srd(SRD_WS)}, s52 offen sc1")
        self.sum_over_gq(9, 13)
        e(f"v_lshlrev_b32 v11, 2, v{V_R16}")
        e(f"v_add_u32 v11, s55, v11")
        e(f"v_add_u32 v11, {L_STAT + 8*128}, v11")
        e("ds_write_b32 v11, v9")
        e.label(noex)
        e("s_waitcnt lgkmcnt(0)")
        e("s_barrier")
        fin = e.L("ep_fin")
        e(f"s_cmp_lg_u32 s{S_WAVE}, 0")
        e(f"s_cbranch_scc1 {fin}")
        e(f"v_and_b32 v4, 31, v{V_LANE}")
        e("v_lshlrev_b32 v4, 2, v4")
        e(f"v_add_u32 v14, {L_STAT}, v4")
        for t in range(9):
            e(f"ds_read_b32 v{5+t}, v14 offset:{t*128}")
        e("s_waitcnt lgkmcnt(0)")
        for t in range(1, 9):
            e(f"v_add_f32 v5, v5, v{5+t}")
        e(f"s_lshl_b32 s50, s{S_HG}, 13")
        e(f"s_lshl_b32 s51, s{S_QB}, 7")
        e("s_add_u32 s50, s50, s51")
        e(f"s_add_u32 s50, s50, s{s_part}")
        e("s_mov_b32 exec_hi, 0")
        e(f"buffer_store_dword v5, v4, {srd(SRD_WS)}, s50 offen sc1")
        e("s_mov_b64 exec, -1")
        e.label(fin)
```

```python
import sys
from gpulib import *
from asmlib import Prog
from gen_common import vr
CHUNK, VT = 18944, 1216
SA, SB, OA, OB = 16, 32, 48, 136
PA_, PB_ = 152, 160
K1, K2 = 168, 172
V0, V1 = 176, 180
QA1, QA2, QB1, QB2 = 184, 188, 192, 196
AK1, AK2, AV = 198, 199, 200

def half(e, order, s_exp, p_out, s_new, q1, q2, o_acc, p_in, hooks):
    ex = lambda r: e(f"v_exp_f32 v{s_exp+r}, v{s_exp+r}")
    cv = lambda k: e(f"v_cvt_pk_bf16_f32 v{p_out+k}, v{s_exp+2*k}, v{s_exp+2*k+1}")
    for tok in order.split():
        if tok == "m1": e(f"v_mfma_f32_32x32x16_bf16 {vr(s_new,16)}, {vr(K1,4)}, {vr(q1,4)}, 0")
        elif tok == "m2": e(f"v_mfma_f32_32x32x8_bf16 {vr(s_new,16)}, {vr(K2,2)}, {vr(q2,2)}, {vr(s_new,16)}")
        elif tok == "m3": e(f"v_mfma_f32_32x32x16_bf16 {vr(o_acc,16)}, {vr(V0,4)}, {vr(p_in,4)}, {vr(o_acc,16)}")
        elif tok == "m4": e(f"v_mfma_f32_32x32x16_bf16 {vr(o_acc,16)}, {vr(V1,4)}, {vr(p_in+4,4)}, {vr(o_acc,16)}")
        elif tok[0] == "e": ex(int(tok[1:]))
        elif tok[0] == "c": cv(int(tok[1:]))
        elif tok[0] == "h":
            for x in hooks[tok]: e(x)

def body(e, orderA, orderB, maskv, maskk):
    for t in range(4):
        nk = (t + 1) * 1024 if t < 3 else CHUNK
        nk2 = (t + 1) * 128 if t < 3 else CHUNK
        hk = [f"ds_read_b128 {vr(K1,4)}, v{AK1} offset:{nk}"]
        if maskk: hk += ["s_mov_b64 exec, s[60:61]"]
        hk += [f"ds_read_b32 v{K2}, v{AK2} offset:{nk2}"]
        if maskk: hk += ["s_mov_b64 exec, -1"]
        hv = [f"ds_read_b128 {vr(V0,4)}, v{AV} offset:{t*VT}", f"ds_read_b128 {vr(V1,4)}, v{AV} offset:{t*VT+608}"]
        if maskv: hv = ["s_mov_b64 exec, s[62:63]"] + hv + ["s_mov_b64 exec, -1"]
        half(e, orderA, SA, PA_, SB, QB1, QB2, OB, PB_, {"hk": hk, "hv": hv, "hw1": [], "hw2": []})
        half(e, orderB, SB, PB_, SA, QA1, QA2, OA, PA_, {"hk": [], "hv": [], "hw1": ["s_waitcnt lgkmcnt(2)"], "hw2": ["s_waitcnt lgkmcnt(0)"]})

def kern(name, orderA, orderB, maskv=False, maskk=False, prio=None, reps=4):
    e = Prog()
    e("s_load_dwordx4 s[4:7], s[0:1], 0")
    e("v_and_b32 v1, 63, v0")
    for r in range(4, 210): e(f"v_mov_b32 v{r}, 0")
    e("v_lshrrev_b32 v4, 6, v0")
    e("v_readfirstlane_b32 s26, v4")
    e("s_waitcnt lgkmcnt(0)")
    e("s_mov_b32 s8, s4"); e("s_mov_b32 s9, s5"); e("s_mov_b32 s10, 0x200000"); e("s_mov_b32 s11, 0x20000")
    e("s_mov_b32 s12, s6"); e("s_mov_b32 s13, s7"); e("s_mov_b32 s14, 0x100000"); e("s_mov_b32 s15, 0x20000")
    e("s_mov_b32 s60, -1"); e("s_mov_b32 s61, 0"); e("s_mov_b32 s62, 0x7ffff"); e("s_mov_b32 s63, 0x7ffff")
    e("v_lshlrev_b32 v8, 4, v0")
    for k in range(19):
        e(f"s_mov_b32 s20, {k*8192}")
        e("buffer_load_dwordx4 v[12:15], v8, s[12:15], s20 offen")
        e("s_waitcnt vmcnt(0)")
        e(f"v_add_u32 v9, {k*8192}, v8")
        e("ds_write_b128 v9, v[12:15]")
    e("v_lshlrev_b32 v9, 4, v1")
    e("s_mov_b32 s20, 0x30000")
    e(f"buffer_load_dwordx4 {vr(QA1,4)}, v9, s[12:15], s20 offen")
    e(f"buffer_load_dwordx4 {vr(QB1,4)}, v9, s[12:15], s20 offen offset:1024")
    e(f"buffer_load_dword v{QA2}, v9, s[12:15], s20 offen offset:2048")
    e(f"buffer_load_dword v{QB2}, v9, s[12:15], s20 offen offset:2052")
    e("s_waitcnt vmcnt(0) lgkmcnt(0)")
    e("v_cmp_gt_u32 vcc, 32, v1")
    e("v_mov_b32 v5, 0")
    e("v_mov_b32 v6, 0x0000c100")
    e(f"v_cndmask_b32 v{QA2}, v5, v{QA2}, vcc")
    e(f"v_cndmask_b32 v{QB2}, v5, v{QB2}, vcc")
    e(f"v_cndmask_b32 v{QA2+1}, v5, v6, vcc")
    e(f"v_cndmask_b32 v{QB2+1}, v5, v6, vcc")
    if maskk:
        e("v_mov_b32 v6, 0x3f803f80")
        e(f"v_cndmask_b32 v{K2+1}, v5, v6, vcc")
    else:
        e(f"v_mov_b32 v{K2+1}, 0x3f803f80")
    e("s_mov_b32 s30, 0")
    e("s_mov_b32 s44, 0")
    e("v_mov_b32 v220, 0")
    e("v_mov_b32 v221, 0")
    e("s_barrier")
    e("s_memtime s[16:17]")
    e("s_memrealtime s[18:19]")
    e("s_waitcnt lgkmcnt(0)")
    e.label(f"{name}_rep")
    e("s_lshr_b32 s51, s26, 2")
    e("s_lshl_b32 s52, s51, 12")
    e(f"v_lshlrev_b32 v{AK1}, 4, v1")
    e(f"v_add_u32 v{AK1}, s52, v{AK1}")
    e("v_and_b32 v5, 31, v1")
    e(f"v_lshlrev_b32 v{AK2}, 2, v5")
    e("s_lshl_b32 s52, s51, 9")
    e("s_add_u32 s52, s52, 8192")
    e(f"v_add_u32 v{AK2}, s52, v{AK2}")
    e("v_subrev_u32 v6, 16, v5")
    e("v_cmp_gt_u32 vcc, 19, v5")
    e("v_cndmask_b32 v6, v6, v5, vcc")
    e("v_lshrrev_b32 v7, 5, v1")
    e("v_mul_u32_u24 v7, 304, v7")
    e("v_lshl_add_u32 v7, v6, 4, v7")
    e(f"s_mul_i32 s52, s51, {4*VT}")
    e("s_add_u32 s52, s52, 9216")
    e(f"v_add_u32 v{AV}, s52, v7")
    if prio is not None:
        e("s_cmp_ge_u32 s26, 4")
        e(f"s_cbranch_scc0 {name}_np")
        e(f"s_setprio {prio}")
        e.label(f"{name}_np")
    e("s_mov_b32 s52, 0")
    e("s_nop 12")
    e(".p2align 6")
    e.label(f"{name}_loop")
    body(e, orderA, orderB, maskv, maskk)
    e(f"v_add_u32 v{AK1}, {CHUNK}, v{AK1}")
    e(f"v_add_u32 v{AK2}, {CHUNK}, v{AK2}")
    e(f"v_add_u32 v{AV}, {CHUNK}, v{AV}")
    e("s_memtime s[40:41]")
    e("s_memrealtime s[42:43]")
    e("s_waitcnt lgkmcnt(0)")
    e("s_mov_b32 m0, s44")
    e("v_writelane_b32 v220, s40, m0")
    e("v_writelane_b32 v221, s42, m0")
    e("s_add_u32 s44, s44, 1")
    e("s_add_u32 s52, s52, 1")
    e("s_cmp_lt_u32 s52, 8")
    e(f"s_cbranch_scc1 {name}_loop")
    e("s_add_u32 s30, s30, 1")
    e(f"s_cmp_lt_u32 s30, {reps}")
    e(f"s_cbranch_scc1 {name}_rep")
    e("s_barrier")
    e("s_memtime s[20:21]")
    e("s_memrealtime s[22:23]")
    e("s_waitcnt lgkmcnt(0)")
    e("s_sub_u32 s20, s20, s16")
    e("s_sub_u32 s22, s22, s18")
    e("v_mov_b32 v2, s20")
    e("v_mov_b32 v3, s22")
    e("s_lshl_b32 s3, s2, 3")
    e("s_add_u32 s3, s3, s26")
    e("s_lshl_b32 s3, s3, 3")
    e("v_mov_b32 v4, s3")
    e("s_lshl_b32 s3, s2, 3")
    e("s_add_u32 s3, s3, s26")
    e("s_lshl_b32 s3, s3, 9")
    e("s_add_u32 s3, s3, 0x10000")
    e("v_lshlrev_b32 v5, 3, v1")
    e("buffer_store_dwordx2 v[220:221], v5, s[8:11], s3 offen")
    e("s_mov_b64 exec, 1")
    e("buffer_store_dwordx2 v[2:3], v4, s[8:11], 0 offen")
    e("s_endpgm")
    e.fix_hazards()
    return f"""
.text
.globl {name}
.p2align 8
.type {name},@function
{name}:
{e.text()}
.section .rodata,"a"
.p2align 6
.amdhsa_kernel {name}
  .amdhsa_next_free_vgpr 256
  .amdhsa_next_free_sgpr 80
  .amdhsa_accum_offset 256
  .amdhsa_group_segment_fixed_size 0
  .amdhsa_kernarg_size 16
  .amdhsa_user_sgpr_count 2
  .amdhsa_user_sgpr_kernarg_segment_ptr 1
  .amdhsa_system_sgpr_workgroup_id_x 1
.end_amdhsa_kernel
"""
curA = "m1 e0 e1 m2 hk e2 e3 c0 e4 e5 c1 m3 e6 e7 c2 e8 e9 c3 m4 hv e10 e11 c4 e12 e13 c5 e14 e15 c6 c7"
curB = "hw1 m1 e0 e1 m2 e2 e3 c0 e4 e5 c1 hw2 m3 e6 e7 c2 e8 e9 c3 m4 e10 e11 c4 e12 e13 c5 e14 e15 c6 c7"
evA = "m1 e0 e1 e2 e3 c0 c1 m2 hk e4 e5 e6 e7 c2 c3 m3 e8 e9 e10 e11 c4 c5 m4 hv e12 e13 e14 e15 c6 c7"
evB = "hw1 m1 e0 e1 e2 e3 c0 c1 m2 e4 e5 e6 e7 c2 c3 hw2 m3 e8 e9 e10 e11 c4 c5 m4 e12 e13 e14 e15 c6 c7"
cfgs = {"even": dict(orderA=evA, orderB=evB)}
if __name__ == "__main__":
    REPS = int(sys.argv[2]) if len(sys.argv) > 2 else 1
    asm = '.amdgcn_target "amdgcn-amd-amdhsa--gfx950"\n'
    for n, c in cfgs.items(): asm += kern("k_" + n, reps=REPS, **c)
    co = assemble(asm, "mb8c_k", [("k_" + n, 512) for n in cfgs])
    if len(sys.argv) > 1 and sys.argv[1] == "asmonly": sys.exit(0)
    import torch
    mod = Module(co); out = Buf(1 << 21); data = Buf(1 << 20)
    g = torch.Generator().manual_seed(0)
    for scale, label in ((1.0, "random"), (0.0, "zeros")):
        d = (torch.randn(1 << 19, generator=g) * scale)
        d[0x18000:0x18000+2048] *= 0.4
        upload(data, d.to(torch.bfloat16).view(torch.uint16).numpy())
        for n in cfgs:
            res = []
            for it in range(3):
                memset(out, 0); sync()
                mod.launch("k_"+n, (256,1,1), (512,1,1), [out.ptr, data.ptr], lds=163840); sync()
                r = download(out, np.uint32, 4096).reshape(256, 8, 2).astype(np.float64)
                cyc = np.median(r[:, :, 0].max(1)); us = np.median(r[:, :, 1].max(1)) / 100
                res.append(f"{cyc/32/REPS:6.1f} cyc/tilepair {us/REPS:6.2f} us {cyc/us/1e3:5.2f} GHz")
            print(f"{label:7s}{n:14s}", " | ".join(res))
            tr = download(out, np.uint32, 256*8*128, off=0x10000).reshape(256, 8, 64, 2).astype(np.float64)
            w = tr[5, 4]
            k = 8 * REPS
            dc = np.diff(w[:k, 0]); dt = np.diff(w[:k, 1])
            print("   GHz per chunk (wg5 wave4):", np.round(dc / np.maximum(dt, 1) / 10, 2))
```

```python
from gen_common import *

RES = 244
KA = 208
SA, SB, OA, OB = 16, 32, 48, 136
PA_, PB_ = 152, 160
K1, K2 = 168, 172
V0, V1 = 176, 180
QA1, QA2, QB1, QB2 = 184, 188, 192, 196
AK1, AK2, AV = 198, 199, 200
L_REDX = 0
L_OX = 0
S_XIN, S_KV, S_OB, S_FB = S_X, S_X + 1, S_X + 2, S_X + 4
QSCALE = "0x3eae1a93"


def xtile_bases(e, va, vb):
    e(f"s_and_b32 s50, s{S_WAVE}, 1")
    e(f"v_and_b32 v4, 1, v{V_GQ}")
    e("v_xor_b32 v4, s50, v4")
    e(f"v_lshlrev_b32 v5, 9, v{V_GQ}")
    e("v_lshl_add_u32 v5, v4, 7, v5")
    e(f"v_lshl_add_u32 v5, v{V_R16}, 3, v5")
    e(f"v_add_u32 v{va}, {L_XT2}, v5")
    e(f"v_xor_b32 v{vb}, 128, v{va}")


def p2(e):
    e(f"s_mul_i32 s54, s{S_QB}, 36864")
    e(f"s_add_u32 s54, s54, s{S_XIN}")
    e(f"v_lshlrev_b32 v60, 4, v{V_LANE}")
    for m in range(5):
        skip = None
        if m == 4:
            skip = e.L("p2dma")
            e(f"s_cmp_ge_u32 s{S_WAVE}, 4")
            e(f"s_cbranch_scc1 {skip}")
        e(f"s_add_u32 s50, s{S_WAVE}, {8*m}")
        e("s_lshl_b32 s50, s50, 10")
        e(f"s_add_u32 m0, s50, {L_XT2}")
        e("s_add_u32 s50, s50, s54")
        e(f"buffer_load_dwordx4 v60, {srd(SRD_WS)}, s50 offen sc1 lds")
        if skip:
            e.label(skip)
    e(f"s_lshr_b32 s55, s{S_WAVE}, 1")
    e("s_mul_i32 s56, s55, 5")
    e("s_cmp_eq_u32 s55, 3")
    e("s_cselect_b32 s56, 14, s56")
    e(f"s_add_u32 s57, s{S_HG}, 36")
    e("s_mul_i32 s57, s57, 18")
    e("s_add_u32 s57, s57, s56")
    e("s_lshl_b32 s57, s57, 10")
    e(f"s_add_u32 s57, s57, {WQF}")
    for st in range(5):
        if st == 4:
            e("s_add_u32 s57, s57, 4096")
            e(f"buffer_load_dwordx4 {vr(KA+16,4)}, v60, {srd(SRD_WS)}, s57 offen sc1")
        else:
            o = f" offset:{st*1024}" if st else ""
            e(f"buffer_load_dwordx4 {vr(KA+4*st,4)}, v60, {srd(SRD_WS)}, s57 offen{o} sc1")
    e(f"s_mul_i32 s58, s{S_HG}, 9")
    e(f"s_add_u32 s57, s58, s{S_WAVE}")
    e(f"s_mul_i32 s57, s57, 18432")
    e(f"s_add_u32 s57, s57, {WQF}")
    e.load_a_frags(SRD_WS, 57, G_A, flags="sc1", vlane16=60)
    nx = e.L("p2nx")
    e(f"s_cmp_ge_u32 s{S_WAVE}, 2")
    e(f"s_cbranch_scc1 {nx}")
    e("s_add_u32 s57, s58, 8")
    e(f"s_mul_i32 s57, s57, 18432")
    e(f"s_add_u32 s57, s57, {WQF}")
    e.load_a_frags(SRD_WS, 57, G_AX, flags="sc1", vlane16=60)
    e(f"s_waitcnt vmcnt(36)")
    w2 = e.L("p2w")
    e(f"s_branch {w2}")
    e.label(nx)
    e(f"s_waitcnt vmcnt(18)")
    e.label(w2)
    e(f"v_mov_b32 v4, {L_FLAG}")
    e("v_mov_b32 v5, 0")
    e("ds_write_b32 v4, v5")
    e("s_barrier")
    e.stamp("p2 loaded")
    xtile_bases(e, 56, 57)
    e("s_lshl_b32 s50, s56, 11")
    e("v_add_u32 v58, s50, v56")
    for st in range(5):
        e(f"ds_read_b64 {vr(16+4*st,2)}, v58 offset:{st*2048}")
        e(f"ds_read_b64 {vr(18+4*st,2)}, v58 offset:{st*2048+256}")
    e("v_mov_b32 v9, 0")
    e("v_mov_b32 v10, 0")
    e("v_mov_b32 v11, 0")
    e("v_mov_b32 v12, 0")
    e("v_mov_b32 v13, 0")
    e("s_waitcnt lgkmcnt(0)")
    e("v_mov_b32 v14, v16")
    nodc = e.L("ssdc")
    e("s_cmp_lg_u32 s55, 0")
    e(f"s_cbranch_scc1 {nodc}")
    e("v_and_b32 v15, 0xffff, v16")
    e(f"v_cmp_eq_u32 vcc, 0, v{V_GQ}")
    e("v_cndmask_b32 v14, v16, v15, vcc")
    e.label(nodc)
    e("v_dot2c_f32_bf16 v9, v14, v14")
    for r in range(17, 32):
        e(f"v_dot2c_f32_bf16 v9, v{r}, v{r}")
    vt, mdone = e.L("vtype"), e.L("kvm")
    e(f"s_bitcmp1_b32 s{S_HG}, 0")
    e(f"s_cbranch_scc1 {vt}")
    for st in range(4):
        e(f"v_mfma_f32_16x16x32_bf16 v[10:13], {vr(KA+4*st,4)}, {vr(16+4*st,4)}, v[10:13]")
    e(f"s_branch {mdone}")
    e.label(vt)
    for st in range(4):
        e(f"v_mfma_f32_16x16x32_bf16 v[10:13], {vr(16+4*st,4)}, {vr(KA+4*st,4)}, v[10:13]")
    e.label(mdone)
    no5, vt5 = e.L("no5"), e.L("vt5")
    e("s_cmp_ge_u32 s55, 2")
    e(f"s_cbranch_scc1 {no5}")
    for r in range(32, 36):
        e(f"v_dot2c_f32_bf16 v9, v{r}, v{r}")
    e(f"s_bitcmp1_b32 s{S_HG}, 0")
    e(f"s_cbranch_scc1 {vt5}")
    e(f"v_mfma_f32_16x16x32_bf16 v[10:13], {vr(KA+16,4)}, v[32:35], v[10:13]")
    e(f"s_branch {no5}")
    e.label(vt5)
    e(f"v_mfma_f32_16x16x32_bf16 v[10:13], v[32:35], {vr(KA+16,4)}, v[10:13]")
    e.label(no5)
    e.sum_over_gq(9, 14)
    e(f"s_lshl_b32 s50, s{S_WAVE}, 10")
    e("v_add_u32 v4, s50, v60")
    e(f"ds_write_b128 v4, v[10:13] offset:{L_REDX}")
    e(f"s_lshl_b32 s50, s{S_WAVE}, 6")
    e(f"s_add_u32 s50, s50, {L_SS}")
    e(f"v_lshlrev_b32 v5, 2, v{V_R16}")
    e("v_add_u32 v5, s50, v5")
    e("ds_write_b32 v5, v9")
    e("s_waitcnt lgkmcnt(0)")
    e("s_barrier")
    notfin = e.L("notfin")
    e(f"s_add_u32 s{S_GT}, s{S_GT}, 16")
    e(f"s_cmp_lg_u32 s{S_WAVE}, 7")
    e(f"s_cbranch_scc1 {notfin}")
    kv_finalize(e)
    e.label(notfin)
    e(f"s_and_b32 s50, s{S_WAVE}, 1")
    e("s_lshl_b32 s50, s50, 6")
    e(f"s_add_u32 s50, s50, {L_SS}")
    e(f"v_lshlrev_b32 v4, 2, v{V_R16}")
    e("v_add_u32 v4, s50, v4")
    e("v_xor_b32 v5, 64, v4")
    for kq in range(4):
        e(f"ds_read_b32 v{6+kq}, v4 offset:{kq*128}")
        e(f"ds_read_b32 v{10+kq}, v5 offset:{kq*128}")
    e("s_waitcnt lgkmcnt(0)")
    e("v_add_f32 v6, v6, v7")
    e("v_add_f32 v8, v8, v9")
    e("v_add_f32 v10, v10, v11")
    e("v_add_f32 v12, v12, v13")
    e("v_add_f32 v58, v6, v8")
    e("v_add_f32 v59, v10, v12")
    e.inv_sigma(58, 4, scale=QSCALE)
    e.inv_sigma(59, 4, scale=QSCALE)
    e("s_waitcnt vmcnt(0)")
    l1, l0, qd = e.L("q_l1"), e.L("q_l0"), e.L("q_done")
    e(f"s_cmp_eq_u32 s{S_LAYER}, 0")
    e(f"s_cbranch_scc1 {l0}")
    e.make_srd(SRD_T, S_FI, 36 * 18432)
    e(f"s_mul_i32 s58, s{S_HG}, 9")
    e(f"s_add_u32 s59, s58, s{S_WAVE}")
    e("s_mul_i32 s59, s59, 18432")
    e("s_add_u32 s58, s58, 8")
    e("s_mul_i32 s58, s58, 18432")

    def fi_main(ks):
        e(f"s_add_u32 s50, s59, {ks*1024}")
        e(f"buffer_load_dwordx4 {vr(G_A+4*ks,4)}, v60, {srd(SRD_T)}, s50 offen")

    def fi_both(ks):
        fi_main(ks)
        e(f"s_add_u32 s50, s58, {ks*1024}")
        e(f"buffer_load_dwordx4 {vr(G_AX+4*ks,4)}, v60, {srd(SRD_T)}, s50 offen")
    noex, gd = e.L("q1_noex"), e.L("q1_gd")
    e(f"s_cmp_ge_u32 s{S_WAVE}, 2")
    e(f"s_cbranch_scc1 {noex}")
    e.g144("x", 56, 57, True, fi_both)
    e(f"s_branch {gd}")
    e.label(noex)
    e.g144("x", 56, 57, False, fi_main)
    e.label(gd)
    e(f"s_branch {qd}")
    e.label(l0)
    e.g144_both("x", 56, 57)
    e.label(qd)
    e.stamp("q gemm")
    q_stage(e)
    r1, rdone = e.L("res1"), e.L("resdone")
    e(f"s_cmp_lg_u32 s{S_LAYER}, 0")
    e(f"s_cbranch_scc1 {r1}")
    e("s_waitcnt vmcnt(0)")
    e(f"s_mul_i32 s50, s{S_HG}, 36")
    e(f"s_lshl_b32 s51, s{S_WAVE}, 2")
    e("s_add_u32 s51, s51, s50")
    e("s_lshl_b32 s51, s51, 8")
    e(f"s_add_u32 s51, s51, {L_XT2}")
    e("s_add_u32 s52, s50, 32")
    e("s_lshl_b32 s52, s52, 8")
    e(f"s_add_u32 s52, s52, {L_XT2}")
    e(f"s_and_b32 s53, s{S_WAVE}, 1")
    e(f"v_lshrrev_b32 v4, 1, v{V_GQ}")
    e("v_xor_b32 v5, s53, v4")
    e(f"v_lshlrev_b32 v6, 8, v{V_GQ}")
    e(f"v_lshl_add_u32 v6, v{V_R16}, 3, v6")
    e("v_lshl_add_u32 v7, v5, 7, v6")
    e("v_xor_b32 v8, 128, v7")
    e("v_add_u32 v9, s51, v7")
    e("v_add_u32 v10, s51, v8")
    e("v_add_u32 v11, s52, v7")
    e(f"ds_read_b64 {vr(RES,2)}, v9")
    e(f"ds_read_b64 {vr(RES+2,2)}, v10")
    e(f"ds_read_b64 {vr(RES+4,2)}, v11")
    e("s_waitcnt lgkmcnt(0)")
    e(f"s_branch {rdone}")
    e.label(r1)
    e("s_waitcnt vmcnt(0)")
    e.g144_both("x", 56, 57)
    for t in range(3):
        a = G_ACC + 4 * t
        e(f"v_cvt_pk_bf16_f32 v{RES+2*t}, v{a}, v{a+1}")
        e(f"v_cvt_pk_bf16_f32 v{RES+2*t+1}, v{a+2}, v{a+3}")
    e.label(rdone)
    e("s_waitcnt lgkmcnt(0)")
    e("s_barrier")
    e(f"s_and_b32 s50, s{S_WAVE}, 3")
    e("s_mul_i32 s50, s50, 72")
    e(f"s_add_u32 s50, s50, {L_QL}")
    e(f"v_and_b32 v4, 31, v{V_LANE}")
    e(f"v_mul_u32_u24 v4, {QL_PITCH}, v4")
    e("v_add_u32 v4, s50, v4")
    e(f"v_lshrrev_b32 v5, 5, v{V_LANE}")
    e("v_lshl_add_u32 v5, v5, 4, v4")
    e(f"ds_read2_b32 {vr(QA1,2)}, v5 offset0:0 offset1:1")
    e(f"ds_read2_b32 {vr(QA1+2,2)}, v5 offset0:2 offset1:3")
    e(f"ds_read2_b32 {vr(QB1,2)}, v5 offset0:9 offset1:10")
    e(f"ds_read2_b32 {vr(QB1+2,2)}, v5 offset0:11 offset1:12")
    e(f"ds_read_b32 v{QA2}, v4 offset:32")
    e(f"ds_read_b32 v{QB2}, v4 offset:68")
    e(f"v_cmp_gt_u32 vcc, 32, v{V_LANE}")
    e("v_mov_b32 v6, 0")
    e("s_waitcnt lgkmcnt(0)")
    e(f"v_cndmask_b32 v{QA2}, v6, v{QA2}, vcc")
    e(f"v_cndmask_b32 v{QB2}, v6, v{QB2}, vcc")


def kv_finalize(e):
    e(f"s_and_b32 s51, s{S_QB}, 31")
    e("s_lshr_b32 s52, s51, 2")
    e(f"s_mul_i32 s52, s52, {CHUNK}")
    e("s_and_b32 s51, s51, 3")
    e(f"s_lshr_b32 s53, s{S_QB}, 5")
    e("s_lshl_b32 s53, s53, 2")
    e("s_add_u32 s51, s51, s53")
    e(f"s_add_u32 s52, s52, s{S_KV}")
    for nt in range(2):
        for kq in range(4):
            e(f"ds_read_b128 {vr(16+4*kq,4)}, v60 offset:{L_REDX + (2*kq+nt)*1024}")
        vt, sdone = e.L("fin_v"), e.L("fin_sd")
        e(f"s_bitcmp1_b32 s{S_HG}, 0")
        e(f"s_cbranch_scc1 {vt}")
        e(f"v_lshlrev_b32 v4, 2, v{V_R16}")
        e(f"v_add_u32 v4, {L_SS + nt*64}, v4")
        for kq in range(4):
            e(f"ds_read_b32 v{32+kq}, v4 offset:{kq*128}")
        e("s_waitcnt lgkmcnt(0)")
        e("v_add_f32 v32, v32, v33")
        e("v_add_f32 v34, v34, v35")
        e("v_add_f32 v32, v32, v34")
        e.inv_sigma(32, 4)
        e("v_mov_b32 v33, v32")
        e("v_mov_b32 v34, v32")
        e("v_mov_b32 v35, v32")
        e(f"s_branch {sdone}")
        e.label(vt)
        e(f"v_lshlrev_b32 v4, 4, v{V_GQ}")
        e(f"v_add_u32 v4, {L_SS + nt*64}, v4")
        for kq in range(4):
            e(f"ds_read_b128 {vr(36+4*kq,4)}, v4 offset:{kq*128}")
        e("s_waitcnt lgkmcnt(0)")
        for r in range(4):
            e(f"v_add_f32 v{36+r}, v{36+r}, v{40+r}")
            e(f"v_add_f32 v{44+r}, v{44+r}, v{48+r}")
            e(f"v_add_f32 v{32+r}, v{36+r}, v{44+r}")
            e.inv_sigma(32 + r, 4)
        e.label(sdone)
        for r in range(4):
            e(f"v_add_f32 v{16+r}, v{16+r}, v{20+r}")
            e(f"v_add_f32 v{24+r}, v{24+r}, v{28+r}")
            e(f"v_add_f32 v{16+r}, v{16+r}, v{24+r}")
            e(f"v_mul_f32 v{16+r}, v{16+r}, v{32+r}")
        d = 52 + 2 * nt
        e(f"v_cvt_pk_bf16_f32 v{d}, v16, v17")
        e(f"v_cvt_pk_bf16_f32 v{d+1}, v18, v19")
        h0, h1, h2, h3, hd = [e.L(f"kvst{i}") for i in range(5)]
        e(f"s_cmp_eq_u32 s{S_HG}, 1")
        e(f"s_cbranch_scc1 {h1}")
        e(f"s_cmp_eq_u32 s{S_HG}, 2")
        e(f"s_cbranch_scc1 {h2}")
        e(f"s_cmp_eq_u32 s{S_HG}, 3")
        e(f"s_cbranch_scc1 {h3}")
        e("s_lshl_b32 s53, s51, 10")
        e("s_add_u32 s53, s53, s52")
        e(f"v_lshrrev_b32 v4, 1, v{V_GQ}")
        e("v_lshlrev_b32 v4, 9, v4")
        e(f"v_lshl_add_u32 v4, v{V_R16}, 4, v4")
        e(f"v_and_b32 v5, 1, v{V_GQ}")
        e("v_lshl_add_u32 v4, v5, 3, v4")
        e(f"buffer_store_dwordx2 {vr(d,2)}, v4, {srd(SRD_WS)}, s53 offen offset:{nt*256} sc1")
        e(f"s_branch {hd}")
        e.label(h2)
        e("s_lshl_b32 s53, s51, 7")
        e("s_add_u32 s53, s53, s52")
        e(f"s_add_u32 s53, s53, {K2_OFF}")
        e(f"v_lshlrev_b32 v4, 2, v{V_R16}")
        e("s_mov_b64 exec, 0xffff")
        e(f"buffer_store_dword v{d}, v4, {srd(SRD_WS)}, s53 offen offset:{nt*64} sc1")
        e("s_mov_b64 exec, -1")
        e(f"s_branch {hd}")
        e.label(h1)
        e(f"s_mul_i32 s53, s51, {VT}")
        e("s_add_u32 s53, s53, s52")
        e(f"s_add_u32 s53, s53, {V_OFF + nt*608}")
        e(f"v_and_b32 v5, 1, v{V_GQ}")
        e("v_mul_u32_u24 v4, 304, v5")
        e(f"v_lshl_add_u32 v4, v{V_R16}, 4, v4")
        e(f"v_lshrrev_b32 v5, 1, v{V_GQ}")
        e("v_lshl_add_u32 v4, v5, 3, v4")
        e(f"buffer_store_dwordx2 {vr(d,2)}, v4, {srd(SRD_WS)}, s53 offen sc1")
        e(f"s_branch {hd}")
        e.label(h3)
        e(f"s_mul_i32 s53, s51, {VT}")
        e("s_add_u32 s53, s53, s52")
        e(f"s_add_u32 s53, s53, {V_OFF + nt*608 + 256}")
        e(f"v_and_b32 v5, 1, v{V_GQ}")
        e("v_mul_u32_u24 v4, 304, v5")
        e(f"v_lshl_add_u32 v4, v{V_R16}, 4, v4")
        e(f"v_lshrrev_b32 v5, 1, v{V_GQ}")
        e("v_lshl_add_u32 v4, v5, 3, v4")
        e("v_mov_b32 v6, 0x3f803f80")
        e(f"v_cmp_eq_u32 vcc, 2, v{V_R16}")
        e(f"v_cndmask_b32 v{d}, v{d}, v6, vcc")
        e(f"v_cndmask_b32 v{d+1}, v{d+1}, v6, vcc")
        e(f"v_cmp_gt_u32 vcc, 3, v{V_R16}")
        e("s_and_saveexec_b64 s[62:63], vcc")
        e(f"buffer_store_dwordx2 {vr(d,2)}, v4, {srd(SRD_WS)}, s53 offen sc1")
        e("s_mov_b64 exec, s[62:63]")
        e.label(hd)
    e("s_waitcnt vmcnt(0)")
    e("s_and_b32 s48, s2, 15")
    e("s_lshl_b32 s48, s48, 8")
    e("v_mov_b32 v4, s48")
    e("v_mov_b32 v5, 1")
    e("s_mov_b64 exec, 1")
    e(f"buffer_atomic_add v5, v4, {srd(SRD_WS)}, 0 offen sc1")
    e("s_mov_b64 exec, -1")


def q_stage(e):
    accA, accB, accX = G_ACC, G_ACC + 4, G_ACC + 8
    e(f"s_and_b32 s50, s{S_WAVE}, 1")
    e("s_lshl_b32 s51, s50, 4")
    e(f"v_add_u32 v4, s51, v{V_R16}")
    e("v_xor_b32 v5, 16, v4")
    e(f"v_mul_u32_u24 v4, {QL_PITCH}, v4")
    e(f"v_mul_u32_u24 v5, {QL_PITCH}, v5")
    e(f"v_lshlrev_b32 v6, 3, v{V_GQ}")
    e(f"v_add_u32 v6, {L_QL}, v6")
    e("v_add_u32 v4, v4, v6")
    e("v_add_u32 v5, v5, v6")
    e(f"s_lshl_b32 s52, s{S_WAVE}, 5")
    e("v_add_u32 v7, s52, v4")
    e("v_add_u32 v8, s52, v5")
    for r in range(4):
        e(f"v_mul_f32 v{accA+r}, v{accA+r}, v58")
        e(f"v_mul_f32 v{accB+r}, v{accB+r}, v59")
    e(f"v_cvt_pk_bf16_f32 v10, v{accA}, v{accA+1}")
    e(f"v_cvt_pk_bf16_f32 v11, v{accA+2}, v{accA+3}")
    e(f"v_cvt_pk_bf16_f32 v12, v{accB}, v{accB+1}")
    e(f"v_cvt_pk_bf16_f32 v13, v{accB+2}, v{accB+3}")
    e("ds_write_b64 v7, v[10:11]")
    e("ds_write_b64 v8, v[12:13]")
    nx = e.L("qs_nx")
    e(f"s_cmp_ge_u32 s{S_WAVE}, 2")
    e(f"s_cbranch_scc1 {nx}")
    for r in range(4):
        e(f"v_mul_f32 v{accX+r}, v{accX+r}, v58")
    e(f"v_cvt_pk_bf16_f32 v14, v{accX}, v{accX+1}")
    e(f"v_cvt_pk_bf16_f32 v15, v{accX+2}, v{accX+3}")
    e("ds_write_b64 v4, v[14:15] offset:256")
    e.label(nx)


def max16(e, s, dst):
    e(f"v_max3_f32 v{dst}, v{s}, v{s+1}, v{s+2}")
    for r in range(3, 15, 2):
        e(f"v_max3_f32 v{dst}, v{dst}, v{s+r}, v{s+r+1}")
    e(f"v_max_f32 v{dst}, v{dst}, v{s+15}")


def set_m(e, m, q2):
    e(f"v_sub_f32 v{m}, 0, v{m}")
    e(f"v_cvt_pk_bf16_f32 v4, v{m}, v{m}")
    e("v_lshlrev_b32 v4, 16, v4")
    e(f"v_sub_f32 v5, v{m}, v4")
    e("v_cvt_pk_bf16_f32 v4, v4, v5")
    e(f"v_cmp_gt_u32 vcc, 32, v{V_LANE}")
    e("v_mov_b32 v5, 0")
    e(f"v_cndmask_b32 v{q2+1}, v5, v4, vcc")


def qk(e, s, q1, q2):
    e(f"v_mfma_f32_32x32x16_bf16 {vr(s,16)}, {vr(K1,4)}, {vr(q1,4)}, 0")
    e(f"v_mfma_f32_32x32x8_bf16 {vr(s,16)}, {vr(K2,2)}, {vr(q2,2)}, {vr(s,16)}")


def cross_half_max(e, v):
    e(f"v_mov_b32 v4, v{v}")
    e(f"v_permlane32_swap_b32 v4, v{v}")
    e(f"v_max_f32 v{v}, v{v}, v4")


def half(e, s_exp, p_out, s_new, q1, q2, o_acc, p_in, pre, mid_k, pre_pv, mid_v):
    ex = lambda r: e(f"v_exp_f32 v{s_exp+r}, v{s_exp+r}")
    cv = lambda k: e(f"v_cvt_pk_bf16_f32 v{p_out+k}, v{s_exp+2*k}, v{s_exp+2*k+1}")

    def grp(g):
        for r in range(4 * g, 4 * g + 4):
            ex(r)
        cv(2 * g); cv(2 * g + 1)
    if pre:
        e(pre)
    e(f"v_mfma_f32_32x32x16_bf16 {vr(s_new,16)}, {vr(K1,4)}, {vr(q1,4)}, 0")
    grp(0)
    e(f"v_mfma_f32_32x32x8_bf16 {vr(s_new,16)}, {vr(K2,2)}, {vr(q2,2)}, {vr(s_new,16)}")
    for x in mid_k:
        e(x)
    grp(1)
    if pre_pv:
        e(pre_pv)
    e(f"v_mfma_f32_32x32x16_bf16 {vr(o_acc,16)}, {vr(V0,4)}, {vr(p_in,4)}, {vr(o_acc,16)}")
    grp(2)
    e(f"v_mfma_f32_32x32x16_bf16 {vr(o_acc,16)}, {vr(V1,4)}, {vr(p_in+4,4)}, {vr(o_acc,16)}")
    for x in mid_v:
        e(x)
    grp(3)


def attention(e):
    kvload, mainl = e.L("kvload"), e.L("attn_main")
    e(f"s_mov_b32 s{S_FB}, 0")
    e.label(kvload)
    e(f"v_lshlrev_b32 v4, 4, v{V_LANE}")
    for m in range(19):
        skip = None
        if m == 18:
            skip = e.L("kvd")
            e(f"s_cmp_ge_u32 s{S_WAVE}, 4")
            e(f"s_cbranch_scc1 {skip}")
        e(f"s_add_u32 s50, s{S_WAVE}, {8*m}")
        e("s_lshl_b32 s50, s50, 10")
        e("s_mov_b32 m0, s50")
        e(f"s_add_u32 s50, s50, s{S_KV}")
        e(f"buffer_load_dwordx4 v4, {srd(SRD_WS)}, s50 offen sc1 lds")
        if skip:
            e.label(skip)
    e(f"s_lshr_b32 s51, s{S_WAVE}, 2")
    e("s_lshl_b32 s52, s51, 12")
    e(f"v_lshlrev_b32 v{AK1}, 4, v{V_LANE}")
    e(f"v_add_u32 v{AK1}, s52, v{AK1}")
    e("s_lshl_b32 s52, s51, 9")
    e(f"s_add_u32 s52, s52, {K2_OFF}")
    e(f"v_and_b32 v5, 31, v{V_LANE}")
    e(f"v_lshlrev_b32 v{AK2}, 2, v5")
    e(f"v_add_u32 v{AK2}, s52, v{AK2}")
    e(f"s_mul_i32 s52, s51, {4*VT}")
    e(f"s_add_u32 s52, s52, {V_OFF}")
    e("v_subrev_u32 v6, 16, v5")
    e("v_cmp_gt_u32 vcc, 19, v5")
    e("v_cndmask_b32 v6, v6, v5, vcc")
    e(f"v_lshrrev_b32 v7, 5, v{V_LANE}")
    e("v_mul_u32_u24 v7, 304, v7")
    e("v_lshl_add_u32 v7, v6, 4, v7")
    e(f"v_add_u32 v{AV}, s52, v7")
    e(f"v_mov_b32 v{K2+1}, 0x3f803f80")
    e(f"v_mov_b32 v{QA2+1}, 0")
    e(f"v_mov_b32 v{QB2+1}, 0")
    e("s_waitcnt vmcnt(15)")
    e("s_barrier")
    e.stamp("kv loaded")
    fbmax, haveM = e.L("fbmax"), e.L("haveM")
    e(f"s_cmp_lg_u32 s{S_FB}, 0")
    e(f"s_cbranch_scc1 {fbmax}")
    e(f"v_lshlrev_b32 v8, 4, v{V_LANE}")
    e("v_lshlrev_b32 v9, 2, v5")
    e(f"ds_read_b128 {vr(K1,4)}, v8")
    e(f"ds_read_b32 v{K2}, v9 offset:{K2_OFF}")
    e("s_waitcnt lgkmcnt(0)")
    qk(e, SA, QA1, QA2)
    qk(e, SB, QB1, QB2)
    max16(e, SA, 10)
    max16(e, SB, 11)
    cross_half_max(e, 10)
    cross_half_max(e, 11)
    e(f"s_branch {haveM}")
    e.label(fbmax)
    e("s_waitcnt vmcnt(0)")
    e("s_barrier")
    fl = e.L("fbloop")
    e("v_mov_b32 v10, 0xff800000")
    e("v_mov_b32 v11, 0xff800000")
    e(f"v_mov_b32 v8, v{AK1}")
    e(f"v_mov_b32 v9, v{AK2}")
    e("s_mov_b32 s52, 0")
    e.label(fl)
    for t in range(4):
        e(f"ds_read_b128 {vr(K1,4)}, v8 offset:{t*1024}")
        e(f"ds_read_b32 v{K2}, v9 offset:{t*128}")
        e("s_waitcnt lgkmcnt(0)")
        qk(e, SA, QA1, QA2)
        qk(e, SB, QB1, QB2)
        max16(e, SA, 12)
        max16(e, SB, 13)
        e("v_max_f32 v10, v10, v12")
        e("v_max_f32 v11, v11, v13")
    e(f"v_add_u32 v8, {CHUNK}, v8")
    e(f"v_add_u32 v9, {CHUNK}, v9")
    e("s_add_u32 s52, s52, 1")
    e("s_cmp_lt_u32 s52, 8")
    e(f"s_cbranch_scc1 {fl}")
    cross_half_max(e, 10)
    cross_half_max(e, 11)
    e(f"s_lshl_b32 s52, s{S_WAVE}, 9")
    e(f"s_add_u32 s52, s52, {L_QL}")
    e(f"v_lshlrev_b32 v8, 3, v{V_LANE}")
    e("v_add_u32 v9, s52, v8")
    e("ds_write_b64 v9, v[10:11]")
    e("s_waitcnt lgkmcnt(0)")
    e("s_barrier")
    e(f"s_xor_b32 s52, s{S_WAVE}, 4")
    e("s_lshl_b32 s52, s52, 9")
    e(f"s_add_u32 s52, s52, {L_QL}")
    e("v_add_u32 v9, s52, v8")
    e("ds_read_b64 v[12:13], v9")
    e("s_waitcnt lgkmcnt(0)")
    e("v_max_f32 v10, v10, v12")
    e("v_max_f32 v11, v11, v13")
    e.label(haveM)
    set_m(e, 10, QA2)
    set_m(e, 11, QB2)
    for r in range(16):
        e(f"v_mov_b32 v{OA+r}, 0")
        e(f"v_mov_b32 v{OB+r}, 0")
    for r in range(8):
        e(f"v_mov_b32 v{PB_+r}, 0")
        e(f"v_mov_b32 v{V0+r}, 0")
    e(f"ds_read_b128 {vr(K1,4)}, v{AK1}")
    e(f"ds_read_b32 v{K2}, v{AK2}")
    e("s_waitcnt lgkmcnt(0)")
    qk(e, SA, QA1, QA2)
    e.cyc_begin()
    e("s_mov_b32 s52, 0")
    e("s_nop 12")
    e(".p2align 6")
    e.label(mainl)
    for t in range(4):
        if t == 3:
            nw = e.L("nokvw")
            e("s_cmp_lg_u32 s52, 0")
            e(f"s_cbranch_scc1 {nw}")
            e("s_waitcnt vmcnt(0)")
            e("s_barrier")
            wo_prefetch(e, main=True, extra=False, vtmp=201)
            e.label(nw)
        nk = (t + 1) * 1024 if t < 3 else CHUNK
        nk2 = (t + 1) * 128 if t < 3 else CHUNK
        half(e, SA, PA_, SB, QB1, QB2, OB, PB_, None,
             [f"ds_read_b128 {vr(K1,4)}, v{AK1} offset:{nk}", f"ds_read_b32 v{K2}, v{AK2} offset:{nk2}"],
             None,
             [f"ds_read_b128 {vr(V0,4)}, v{AV} offset:{t*VT}", f"ds_read_b128 {vr(V1,4)}, v{AV} offset:{t*VT+608}"])
        half(e, SB, PB_, SA, QA1, QA2, OA, PA_, "s_waitcnt lgkmcnt(2)", [], "s_waitcnt lgkmcnt(0)", [])
    e(f"v_add_u32 v{AK1}, {CHUNK}, v{AK1}")
    e(f"v_add_u32 v{AK2}, {CHUNK}, v{AK2}")
    e(f"v_add_u32 v{AV}, {CHUNK}, v{AV}")
    e("s_add_u32 s52, s52, 1")
    e("s_cmp_lt_u32 s52, 8")
    e(f"s_cbranch_scc1 {mainl}")
    e(f"v_mfma_f32_32x32x16_bf16 {vr(OB,16)}, {vr(V0,4)}, {vr(PB_,4)}, {vr(OB,16)}")
    e(f"v_mfma_f32_32x32x16_bf16 {vr(OB,16)}, {vr(V1,4)}, {vr(PB_+4,4)}, {vr(OB,16)}")
    e.cyc_end(0)
    e.stamp("attn loop")
    nofl = e.L("nofl")
    e("s_mov_b32 s53, 0x5d000000")
    e(f"v_cmp_nlt_f32 vcc, v{OA+10}, s53")
    e(f"v_cmp_nlt_f32 s[54:55], v{OB+10}, s53")
    e("s_or_b64 vcc, vcc, s[54:55]")
    e("s_cmp_eq_u32 vcc_lo, 0")
    e(f"s_cbranch_scc1 {nofl}")
    e(f"v_mov_b32 v4, {L_FLAG}")
    e("v_mov_b32 v5, 1")
    e("ds_write_b32 v4, v5")
    e.label(nofl)
    e("s_waitcnt lgkmcnt(0)")
    e("s_barrier")
    e(f"s_mul_i32 s50, s{S_WAVE}, 3072")
    e(f"v_lshlrev_b32 v4, 4, v{V_LANE}")
    e(f"v_add_u32 v5, s50, v4")
    e(f"s_xor_b32 s50, s{S_WAVE}, 4")
    e("s_mul_i32 s50, s50, 3072")
    e(f"v_add_u32 v6, s50, v4")
    e(f"v_mov_b32 v7, {L_FLAG}")
    e("ds_read_b32 v8, v7")
    g1, gd = e.L("give1"), e.L("gived")
    e(f"s_cmp_ge_u32 s{S_WAVE}, 4")
    e(f"s_cbranch_scc1 {g1}")
    for q in range(3):
        e(f"ds_write_b128 v5, {vr(OB+4*q,4)} offset:{L_OX + q*1024}")
    e(f"s_branch {gd}")
    e.label(g1)
    for q in range(3):
        e(f"ds_write_b128 v5, {vr(OA+4*q,4)} offset:{L_OX + q*1024}")
    for r in range(12):
        e(f"v_mov_b32 v{OA+r}, v{OB+r}")
    e.label(gd)
    e("s_waitcnt lgkmcnt(0)")
    e(f"v_readfirstlane_b32 s50, v8")
    e("s_barrier")
    fbgo = e.L("fbgo")
    e(f"s_cmp_lg_u32 s{S_FB}, 0")
    e(f"s_cbranch_scc1 {fbgo}")
    e("s_cmp_eq_u32 s50, 0")
    e(f"s_cbranch_scc1 {fbgo}")
    e(f"s_mov_b32 s{S_FB}, 1")
    e(f"s_branch {kvload}")
    e.label(fbgo)
    for q in range(3):
        e(f"ds_read_b128 {vr(16+4*q,4)}, v6 offset:{L_OX + q*1024}")
    e("s_waitcnt lgkmcnt(0)")
    for r in range(11):
        e(f"v_add_f32 v{OA+r}, v{OA+r}, v{16+r}")
    e(f"v_mov_b32 v8, v{OA+10}")
    e(f"v_permlane32_swap_b32 v8, v{OA+10}")
    e("v_rcp_f32 v8, v8")
    for r in range(10):
        e(f"v_mul_f32 v{OA+r}, v{OA+r}, v8")
    for k in range(5):
        e(f"v_cvt_pk_bf16_f32 v{16+k}, v{OA+2*k}, v{OA+2*k+1}")
    e(f"s_lshr_b32 s51, s{S_WAVE}, 2")
    e(f"s_and_b32 s52, s{S_WAVE}, 3")
    e(f"s_mul_i32 s53, s{S_QB}, 36864")
    e(f"s_add_u32 s53, s53, s{S_OB}")
    e(f"v_bfe_u32 v4, v{V_LANE}, 4, 1")
    e("v_mul_u32_u24 v4, 18432, v4")
    e(f"v_lshl_add_u32 v4, v{V_R16}, 4, v4")
    e(f"v_lshrrev_b32 v5, 5, v{V_LANE}")
    e("v_lshl_add_u32 v5, v5, 8, v4")
    e(f"s_lshl_b32 s54, s{S_HG}, 2")
    e("s_add_u32 s54, s54, s52")
    e("s_lshl_b32 s54, s54, 10")
    e("s_lshl_b32 s55, s51, 9")
    e("s_add_u32 s54, s54, s55")
    e("s_add_u32 s54, s54, s53")
    e(f"buffer_store_dwordx4 v[16:19], v5, {srd(SRD_WS)}, s54 offen sc1")
    e(f"s_lshl_b32 s54, s{S_HG}, 3")
    e("s_lshl_b32 s55, s52, 1")
    e("s_add_u32 s54, s54, s55")
    e("s_add_u32 s54, s54, s51")
    e("s_lshr_b32 s55, s54, 4")
    e("s_add_u32 s55, s55, 16")
    e("s_lshl_b32 s55, s55, 10")
    e("s_bfe_u32 s56, s54, 0x20002")
    e("s_lshl_b32 s56, s56, 8")
    e("s_add_u32 s55, s55, s56")
    e("s_and_b32 s56, s54, 3")
    e("s_lshl_b32 s56, s56, 2")
    e("s_add_u32 s55, s55, s56")
    e("s_add_u32 s55, s55, s53")
    e("s_mov_b32 exec_hi, 0")
    e(f"buffer_store_dword v20, v4, {srd(SRD_WS)}, s55 offen sc1")
    e("s_mov_b64 exec, -1")


def wo_prefetch(e, main=True, extra=False, vtmp=60):
    e(f"s_cmp_eq_u32 s{S_LAYER}, 0")
    e.sel(58, WOF, WO2)
    e(f"v_lshlrev_b32 v{vtmp}, 4, v{V_LANE}")
    e(f"s_mul_i32 s59, s{S_HG}, 9")
    if main:
        e(f"s_add_u32 s57, s59, s{S_WAVE}")
        e("s_mul_i32 s57, s57, 18432")
        e("s_add_u32 s57, s57, s58")
        e.load_a_frags(SRD_WS, 57, G_A, flags="sc1", vlane16=vtmp)
    if extra:
        nx = e.L("wo_nx")
        e(f"s_cmp_ge_u32 s{S_WAVE}, 2")
        e(f"s_cbranch_scc1 {nx}")
        e("s_add_u32 s57, s59, 8")
        e("s_mul_i32 s57, s57, 18432")
        e("s_add_u32 s57, s57, s58")
        e.load_a_frags(SRD_WS, 57, G_AX, flags="sc1", vlane16=vtmp)
        e.label(nx)


def p4(e):
    e(f"s_mul_i32 s54, s{S_QB}, 36864")
    e(f"s_add_u32 s54, s54, s{S_OB}")
    e(f"v_lshlrev_b32 v60, 4, v{V_LANE}")
    for m in range(5):
        skip = None
        if m == 4:
            skip = e.L("p4dma")
            e(f"s_cmp_ge_u32 s{S_WAVE}, 4")
            e(f"s_cbranch_scc1 {skip}")
        e(f"s_add_u32 s50, s{S_WAVE}, {8*m}")
        e("s_lshl_b32 s50, s50, 10")
        e("s_mov_b32 m0, s50")
        e("s_add_u32 s50, s50, s54")
        e(f"buffer_load_dwordx4 v60, {srd(SRD_WS)}, s50 offen sc1 lds")
        if skip:
            e.label(skip)
    for t in range(3):
        a = G_ACC + 4 * t
        e(f"v_lshlrev_b32 v{a}, 16, v{RES+2*t}")
        e(f"v_and_b32 v{a+1}, 0xffff0000, v{RES+2*t}")
        e(f"v_lshlrev_b32 v{a+2}, 16, v{RES+2*t+1}")
        e(f"v_and_b32 v{a+3}, 0xffff0000, v{RES+2*t+1}")
    e(f"s_and_b32 s50, s{S_WAVE}, 1")
    e("s_mul_i32 s50, s50, 18432")
    e(f"v_lshlrev_b32 v56, 4, v{V_LANE}")
    e("v_add_u32 v57, 18432, v56")
    e("v_subrev_u32 v57, s50, v57")
    e("v_add_u32 v56, s50, v56")
    e("s_waitcnt vmcnt(0)")
    e("s_barrier")
    e.stamp("p4 loaded")
    e.g144_both("frag", 56, 57, zero_init=False)
    e.stamp("p4 gemm")


def out_epilogue(e):
    accA, accB, accX = G_ACC, G_ACC + 4, G_ACC + 8
    e.make_srd(SRD_A, S_OUT, XBYTES)
    e(f"s_and_b32 s50, s{S_WAVE}, 1")
    e("s_lshl_b32 s51, s50, 4")
    e(f"s_lshl_b32 s52, s{S_QB}, 5")
    e("s_add_u32 s51, s51, s52")
    e(f"v_add_u32 v4, s51, v{V_R16}")
    e("v_xor_b32 v5, 16, v4")
    e("v_mul_u32_u24 v4, 1152, v4")
    e("v_mul_u32_u24 v5, 1152, v5")
    e(f"v_lshl_add_u32 v4, v{V_GQ}, 3, v4")
    e(f"v_lshl_add_u32 v5, v{V_GQ}, 3, v5")
    e(f"s_mul_i32 s53, s{S_HG}, 288")
    e(f"s_lshl_b32 s54, s{S_WAVE}, 5")
    e("s_add_u32 s54, s54, s53")
    e("s_add_u32 s55, s53, 256")
    e(f"v_cvt_pk_bf16_f32 v10, v{accA}, v{accA+1}")
    e(f"v_cvt_pk_bf16_f32 v11, v{accA+2}, v{accA+3}")
    e(f"buffer_store_dwordx2 v[10:11], v4, {srd(SRD_A)}, s54 offen")
    e(f"v_cvt_pk_bf16_f32 v12, v{accB}, v{accB+1}")
    e(f"v_cvt_pk_bf16_f32 v13, v{accB+2}, v{accB+3}")
    e(f"buffer_store_dwordx2 v[12:13], v5, {srd(SRD_A)}, s54 offen")
    nx = e.L("oe_nx")
    e(f"s_cmp_ge_u32 s{S_WAVE}, 2")
    e(f"s_cbranch_scc1 {nx}")
    e(f"v_cvt_pk_bf16_f32 v14, v{accX}, v{accX+1}")
    e(f"v_cvt_pk_bf16_f32 v15, v{accX+2}, v{accX+3}")
    e(f"buffer_store_dwordx2 v[14:15], v4, {srd(SRD_A)}, s55 offen")
    e.label(nx)
```

```python
from asmlib import Prog
from layout import *

S_AX, S_WR, S_WI = 4, 6, 8
S_WQ, S_WK, S_WV, S_WO = 12, 14, 16, 18
S_OUT, S_DBG, S_WS = 20, 22, 24
S_WAVE, S_QB = 26, 27
SRD_WS, SRD_A, SRD_B, SRD_T = 28, 32, 36, 40
S_HG, S_LAYER, S_GT, S_GRP = 44, 45, 46, 47
S_T = 48
S_FT, S_FI, S_TW = 66, 68, 70
S_X = 72

V_TID, V_LANE, V_R16, V_GQ = 0, 1, 2, 3

G_A = 64
G_AX = 136
G_B = 16
G_ACC = 40

SPIN_LIMIT = 60000


def srd(r):
    return f"s[{r}:{r+3}]"


def sp(r):
    return f"s[{r}:{r+1}]"


def vr(r, n=1):
    return f"v{r}" if n == 1 else f"v[{r}:{r+n-1}]"


class Gen(Prog):
    def __init__(self):
        super().__init__()
        self.uid = 0

    profile = False
    codepf = True
    nstamp = 0

    def stamp(self, name=""):
        if self.dbgprof:
            return self.dbg_stamp(name)
        if not self.profile:
            return
        k = self.nstamp
        self.nstamp += 1
        assert k < 32
        self.stamp_names = getattr(self, "stamp_names", []) + [name]
        sk = self.L("st")
        self(f"s_cmp_lg_u32 s{S_WAVE}, 0")
        self(f"s_cbranch_scc1 {sk}")
        self("s_memrealtime s[96:97]")
        self("s_lshl_b32 s98, s2, 8")
        self(f"s_lshl_b32 s99, s{S_LAYER}, 7")
        self("s_add_u32 s98, s98, s99")
        self(f"s_add_u32 s98, s98, {PROF + 4*k}")
        self("s_waitcnt lgkmcnt(0)")
        self("v_mov_b32 v255, s96")
        self("v_mov_b32 v254, 0")
        self("s_mov_b64 exec, 1")
        self(f"buffer_store_dword v255, v254, {srd(SRD_WS)}, s98 offen")
        self("s_mov_b64 exec, -1")
        self.label(sk)

    dbgprof = None

    def dbg_stamp(self, name):
        cnt = self.__dict__.setdefault("dbg_seen", {})
        cnt[name] = cnt.get(name, 0) + 1
        slots = [(i, l) for i, (n, occ, l) in enumerate(self.dbgprof) if n == name and occ == cnt[name]]
        if name == "start":
            slots = [(-1, 0)]
        for i, layer in slots:
            e = self
            sk = e.L("dst")
            e(f"s_or_b32 s92, s{S_WAVE}, s2")
            e("s_cmp_lg_u32 s92, 0")
            e(f"s_cbranch_scc1 {sk}")
            e(f"s_cmp_lg_u32 s{S_LAYER}, {layer}")
            e(f"s_cbranch_scc1 {sk}")
            e("s_memrealtime s[96:97]")
            e(f"s_mov_b32 s92, s{S_DBG}")
            e(f"s_mov_b32 s93, s{S_DBG+1}")
            e("s_mov_b32 s94, 256")
            e("s_mov_b32 s95, 0x20000")
            e("s_waitcnt lgkmcnt(0)")
            if i < 0:
                e("s_not_b32 s96, s96")
            e("v_mov_b32 v255, s96")
            e("v_mov_b32 v254, 0")
            e("s_mov_b64 exec, 1")
            e(f"buffer_store_dword v255, v254, s[92:95], 0 offen offset:{4*(i+2)}")
            e("s_mov_b64 exec, -1")
            e.label(sk)

    def cyc_begin(self):
        if self.profile:
            self("s_memtime s[92:93]")
            self("s_memrealtime s[94:95]")
            self("s_waitcnt lgkmcnt(0)")

    def cyc_end(self, slot):
        if not self.profile:
            return
        e = self
        e("s_memtime s[96:97]")
        e("s_memrealtime s[98:99]")
        e("s_waitcnt lgkmcnt(0)")
        e("s_sub_u32 s96, s96, s92")
        e("s_sub_u32 s98, s98, s94")
        e("v_mov_b32 v254, s96")
        e("v_mov_b32 v255, s98")
        e("s_lshl_b32 s96, s2, 7")
        e(f"s_lshl_b32 s97, s{S_LAYER}, 6")
        e("s_add_u32 s96, s96, s97")
        e(f"s_lshl_b32 s97, s{S_WAVE}, 3")
        e("s_add_u32 s96, s96, s97")
        e(f"s_add_u32 s96, s96, {PROF + 65536}")
        e("v_mov_b32 v253, 0")
        e("s_mov_b64 exec, 1")
        e(f"buffer_store_dwordx2 v[254:255], v253, {srd(SRD_WS)}, s96 offen")
        e("s_mov_b64 exec, -1")

    def dump_stamps(self):
        self.stamp("end")

    def L(self, base):
        self.uid += 1
        return f"L_{base}_{self.uid}"

    def sel(self, dst, a, b):
        self(f"s_mov_b32 s{dst}, {b}")
        self(f"s_cselect_b32 s{dst}, {a}, s{dst}")

    def make_srd(self, r, base, size):
        self(f"s_mov_b32 s{r}, s{base}")
        self(f"s_mov_b32 s{r+1}, s{base+1}")
        self(f"s_mov_b32 s{r+2}, {size}")
        self(f"s_mov_b32 s{r+3}, 0x20000")

    def prologue(self):
        e = self
        e.label("L_code_begin")
        e("s_cmp_ge_u32 s2, 256")
        e("s_cbranch_scc1 L_end")
        e("s_getpc_b64 s[36:37]")
        e("s_and_b32 s36, s36, 0xffffff00")
        e("s_mov_b32 s38, L_code_end-L_code_begin")
        e("s_mov_b32 s39, 0x20000")
        e("s_lshr_b32 s3, s2, 3")
        e("s_lshl_b32 s3, s3, 11")
        e("v_lshlrev_b32 v4, 2, v0")
        e("v_add_u32 v4, s3, v4")
        if self.codepf: e("buffer_load_dword v253, v4, s[36:39], 0 offen")
        e("s_load_dwordx4 s[4:7], s[0:1], 0")
        e("s_load_dwordx2 s[8:9], s[0:1], 16")
        e("s_load_dwordx8 s[12:19], s[0:1], 32")
        e("s_load_dwordx4 s[20:23], s[0:1], 64")
        e("s_load_dwordx2 s[24:25], s[0:1], 80")
        e(f"v_and_b32 v{V_LANE}, 63, v0")
        e("v_lshrrev_b32 v4, 6, v0")
        e(f"v_and_b32 v{V_R16}, 15, v0")
        e(f"v_lshrrev_b32 v{V_GQ}, 4, v{V_LANE}")
        e(f"v_readfirstlane_b32 s{S_WAVE}, v4")
        e("s_and_b32 s48, s2, 7")
        e("s_lshr_b32 s49, s2, 3")
        e("s_lshl_b32 s48, s48, 3")
        e("s_lshr_b32 s50, s49, 2")
        e(f"s_add_u32 s{S_QB}, s48, s50")
        e(f"s_and_b32 s{S_HG}, s49, 3")
        e(f"s_mov_b32 s{S_GT}, 0")
        e(f"s_mov_b32 s{S_GRP}, 0")
        e(f"s_mov_b32 s{S_LAYER}, 0")
        for reg, sym in ((S_FT, "TAB_FT"), (S_FI, "TAB_FI"), (S_TW, "TAB_TW")):
            e(f"s_getpc_b64 {sp(reg)}")
            e(f"s_add_u32 s{reg}, s{reg}, {sym}@rel32@lo+4")
            e(f"s_addc_u32 s{reg+1}, s{reg+1}, {sym}@rel32@hi+12")
        e("s_waitcnt lgkmcnt(0)")
        self.make_srd(SRD_WS, S_WS, WS_END)

    def arrive(self, group=False, go_check=False):
        e = self
        e("s_waitcnt vmcnt(0) lgkmcnt(0)")
        e("s_barrier")
        e.stamp("drained")
        if group:
            e(f"s_add_u32 s{S_GRP}, s{S_GRP}, 4")
        else:
            e(f"s_add_u32 s{S_GT}, s{S_GT}, 16")
        skip = e.L("arr")
        e(f"s_cmp_lg_u32 s{S_WAVE}, 0")
        e(f"s_cbranch_scc1 {skip}")
        if go_check:
            lp, ok = e.L("go"), e.L("gook")
            e("v_readfirstlane_b32 s48, v252")
            e("s_cmp_lg_u32 s48, 0")
            e(f"s_cbranch_scc1 {ok}")
            self.make_srd(SRD_A, S_DBG, 256)
            e("v_mov_b32 v4, 0")
            e("s_mov_b32 s48, 0")
            e.label(lp)
            e(f"buffer_load_dword v5, v4, {srd(SRD_A)}, 0 offen sc1")
            e("s_waitcnt vmcnt(0)")
            e("v_cmp_eq_u32 vcc, 0, v5")
            e("s_add_u32 s48, s48, 1")
            e(f"s_cmp_gt_u32 s48, {SPIN_LIMIT}")
            e(f"s_cbranch_scc1 {ok}")
            e(f"s_cbranch_vccz {ok}")
            e("s_sleep 1")
            e(f"s_branch {lp}")
            e.label(ok)
        if group:
            e(f"s_lshl_b32 s48, s{S_QB}, 8")
            e(f"s_add_u32 s48, s48, {CNT + CNT_GROUP}")
        else:
            e("s_and_b32 s48, s2, 15")
            e("s_lshl_b32 s48, s48, 8")
            if CNT:
                e(f"s_add_u32 s48, s48, {CNT}")
        e("v_mov_b32 v4, s48")
        e("v_mov_b32 v5, 1")
        e("s_mov_b64 exec, 1")
        e(f"buffer_atomic_add v5, v4, {srd(SRD_WS)}, 0 offen sc1")
        e("s_mov_b64 exec, -1")
        e.label(skip)

    def wait(self, group=False):
        e = self
        done, lp = e.L("wdone"), e.L("poll")
        e(f"s_cmp_lg_u32 s{S_WAVE}, 0")
        e(f"s_cbranch_scc1 {done}")
        if group:
            e(f"s_lshl_b32 s48, s{S_QB}, 8")
            e(f"s_add_u32 s48, s48, {CNT + CNT_GROUP}")
            e("v_mov_b32 v4, s48")
            tgt = S_GRP
        else:
            e(f"v_lshlrev_b32 v4, 8, v{V_R16}")
            if CNT:
                e(f"v_add_u32 v4, {CNT}, v4")
            tgt = S_GT
        e("s_mov_b32 s48, 0")
        e.label(lp)
        e(f"buffer_load_dword v5, v4, {srd(SRD_WS)}, 0 offen sc1")
        e("s_waitcnt vmcnt(0)")
        e(f"v_cmp_gt_u32 vcc, s{tgt}, v5")
        e("s_add_u32 s48, s48, 1")
        e(f"s_cmp_gt_u32 s48, {SPIN_LIMIT}")
        e(f"s_cbranch_scc1 {done}")
        e(f"s_cbranch_vccz {done}")
        e("s_sleep 1")
        e(f"s_branch {lp}")
        e.label(done)
        e("s_barrier")

    def load_a_frags(self, srdreg, s_tile_base, dst, ksteps=range(18), flags="", vlane16=None):
        e = self
        cur = None
        for ks in ksteps:
            hi = ks // 4
            if hi != cur:
                e(f"s_add_u32 s49, s{s_tile_base}, {hi * 4096}")
                cur = hi
            off = (ks % 4) * 1024
            o = f" offset:{off}" if off else ""
            e(f"buffer_load_dwordx4 {vr(dst + 4*ks, 4)}, v{vlane16}, {srd(srdreg)}, s49 offen{o} {flags}".rstrip())

    def g144(self, bmode, vbA, vbB, extra, after_step=None, zero_init=True):
        e = self
        accA, accB, accX = G_ACC, G_ACC + 4, G_ACC + 8

        def rd(ks):
            b = G_B + 8 * (ks % 3)
            if bmode == "frag":
                e(f"ds_read_b128 {vr(b,4)}, v{vbA} offset:{ks*1024}")
                e(f"ds_read_b128 {vr(b+4,4)}, v{vbB} offset:{ks*1024}")
                return 2
            e(f"ds_read_b64 {vr(b,2)}, v{vbA} offset:{ks*2048}")
            e(f"ds_read_b64 {vr(b+2,2)}, v{vbA} offset:{ks*2048+256}")
            e(f"ds_read_b64 {vr(b+4,2)}, v{vbB} offset:{ks*2048}")
            e(f"ds_read_b64 {vr(b+6,2)}, v{vbB} offset:{ks*2048+256}")
            return 4
        per = 2 if bmode == "frag" else 4
        rd(0)
        rd(1)
        for ks in range(18):
            if ks + 2 < 18:
                rd(ks + 2)
            left = min(2, 17 - ks) * per
            e(f"s_waitcnt lgkmcnt({left})")
            b = G_B + 8 * (ks % 3)
            a = G_A + 4 * ks
            cA = "0" if (ks == 0 and zero_init) else vr(accA, 4)
            cB = "0" if (ks == 0 and zero_init) else vr(accB, 4)
            cX = "0" if (ks == 0 and zero_init) else vr(accX, 4)
            e(f"v_mfma_f32_16x16x32_bf16 {vr(accA,4)}, {vr(a,4)}, {vr(b,4)}, {cA}")
            e(f"v_mfma_f32_16x16x32_bf16 {vr(accB,4)}, {vr(a,4)}, {vr(b+4,4)}, {cB}")
            if extra:
                e(f"v_mfma_f32_16x16x32_bf16 {vr(accX,4)}, {vr(G_AX+4*ks,4)}, {vr(b,4)}, {cX}")
            if after_step:
                after_step(ks)

    def g144_both(self, bmode, vbA, vbB, after_step=None, zero_init=True):
        e = self
        noex, done = e.L("g_noex"), e.L("g_done")
        e(f"s_cmp_ge_u32 s{S_WAVE}, 2")
        e(f"s_cbranch_scc1 {noex}")
        self.g144(bmode, vbA, vbB, True, after_step, zero_init)
        e(f"s_branch {done}")
        e.label(noex)
        self.g144(bmode, vbA, vbB, False, after_step, zero_init)
        e.label(done)

    def sum_over_gq(self, v, t):
        e = self
        e(f"v_mov_b32 v{t}, v{v}")
        e(f"v_permlane16_swap_b32 v{t}, v{v}")
        e(f"v_add_f32 v{v}, v{v}, v{t}")
        e(f"v_mov_b32 v{t}, v{v}")
        e(f"v_permlane32_swap_b32 v{t}, v{v}")
        e(f"v_add_f32 v{v}, v{v}, v{t}")

    def bf16_round(self, v, t):
        e = self
        e(f"v_cvt_pk_bf16_f32 v{t}, v{v}, v{v}")
        e(f"v_lshlrev_b32 v{v}, 16, v{t}")

    def inv_sigma(self, v, t, scale=None):
        e = self
        e(f"v_mul_f32 v{v}, 0x3ae38e39, v{v}")
        self.bf16_round(v, t)
        e(f"v_add_f32 v{v}, 0x3727c5ac, v{v}")
        self.bf16_round(v, t)
        e(f"v_sqrt_f32 v{v}, v{v}")
        self.bf16_round(v, t)
        e(f"v_rcp_f32 v{v}, v{v}")
        if scale is not None:
            e(f"v_mul_f32 v{v}, {scale}, v{v}")

    def xhat_epilogue(self, s_xdst, s_part):
        e = self
        accA, accB, accX = G_ACC, G_ACC + 4, G_ACC + 8
        e(f"s_mul_i32 s50, s{S_QB}, 144")
        e(f"s_mul_i32 s51, s{S_HG}, 36")
        e("s_add_u32 s50, s50, s51")
        e(f"s_lshl_b32 s51, s{S_WAVE}, 2")
        e("s_add_u32 s51, s51, s50")
        e("s_lshl_b32 s51, s51, 8")
        e(f"s_add_u32 s51, s51, s{s_xdst}")
        e("s_add_u32 s52, s50, 32")
        e("s_lshl_b32 s52, s52, 8")
        e(f"s_add_u32 s52, s52, s{s_xdst}")
        e(f"s_and_b32 s53, s{S_WAVE}, 1")
        e(f"v_lshrrev_b32 v4, 1, v{V_GQ}")
        e(f"v_xor_b32 v5, s53, v4")
        e(f"v_lshlrev_b32 v6, 8, v{V_GQ}")
        e(f"v_lshl_add_u32 v6, v{V_R16}, 3, v6")
        e("v_lshl_add_u32 v7, v5, 7, v6")
        e("v_xor_b32 v8, 128, v7")
        e(f"v_mul_f32 v9, v{accA}, v{accA}")
        e(f"v_mul_f32 v10, v{accB}, v{accB}")
        e(f"v_mul_f32 v11, v{accA+1}, v{accA+1}")
        e(f"v_mul_f32 v12, v{accB+1}, v{accB+1}")
        nodc = e.L("nodc")
        e(f"s_or_b32 s53, s{S_HG}, s{S_WAVE}")
        e("s_cmp_lg_u32 s53, 0")
        e(f"s_cbranch_scc1 {nodc}")
        e(f"v_cmp_eq_u32 vcc, 0, v{V_GQ}")
        e("v_mov_b32 v13, 0")
        e("v_cndmask_b32 v11, v11, v13, vcc")
        e("v_cndmask_b32 v12, v12, v13, vcc")
        e.label(nodc)
        e("v_add_f32 v9, v9, v11")
        e("v_add_f32 v10, v10, v12")
        for r in (2, 3):
            e(f"v_fmac_f32 v9, v{accA+r}, v{accA+r}")
            e(f"v_fmac_f32 v10, v{accB+r}, v{accB+r}")
        e(f"v_cvt_pk_bf16_f32 v14, v{accA}, v{accA+1}")
        e(f"v_cvt_pk_bf16_f32 v15, v{accA+2}, v{accA+3}")
        e(f"buffer_store_dwordx2 v[14:15], v7, {srd(SRD_WS)}, s51 offen sc1")
        e(f"v_cvt_pk_bf16_f32 v52, v{accB}, v{accB+1}")
        e(f"v_cvt_pk_bf16_f32 v53, v{accB+2}, v{accB+3}")
        e(f"buffer_store_dwordx2 v[52:53], v8, {srd(SRD_WS)}, s51 offen sc1")
        self.sum_over_gq(9, 13)
        self.sum_over_gq(10, 13)
        e(f"s_and_b32 s53, s{S_WAVE}, 1")
        e(f"s_lshl_b32 s54, s{S_WAVE}, 7")
        e("s_lshl_b32 s55, s53, 6")
        e("s_add_u32 s54, s54, s55")
        e(f"v_lshlrev_b32 v11, 2, v{V_R16}")
        e(f"v_add_u32 v11, s54, v11")
        e("v_xor_b32 v12, 64, v11")
        e(f"v_add_u32 v11, {L_STAT}, v11")
        e(f"v_add_u32 v12, {L_STAT}, v12")
        e("ds_write_b32 v11, v9")
        e("ds_write_b32 v12, v10")
        noex = e.L("ep_noex")
        e(f"s_cmp_ge_u32 s{S_WAVE}, 2")
        e(f"s_cbranch_scc1 {noex}")
        e(f"v_mul_f32 v9, v{accX}, v{accX}")
        for r in (1, 2, 3):
            e(f"v_fmac_f32 v9, v{accX+r}, v{accX+r}")
        e(f"v_cvt_pk_bf16_f32 v54, v{accX}, v{accX+1}")
        e(f"v_cvt_pk_bf16_f32 v55, v{accX+2}, v{accX+3}")
        e(f"buffer_store_dwordx2 v[54:55], v7, {srd(SRD_WS)}, s52 offen sc1")
        self.sum_over_gq(9, 13)
        e(f"v_lshlrev_b32 v11, 2, v{V_R16}")
        e(f"v_add_u32 v11, s55, v11")
        e(f"v_add_u32 v11, {L_STAT + 8*128}, v11")
        e("ds_write_b32 v11, v9")
        e.label(noex)
        e("s_waitcnt lgkmcnt(0)")
        e("s_barrier")
        fin = e.L("ep_fin")
        e(f"s_cmp_lg_u32 s{S_WAVE}, 0")
        e(f"s_cbranch_scc1 {fin}")
        e(f"v_and_b32 v4, 31, v{V_LANE}")
        e("v_lshlrev_b32 v4, 2, v4")
        e(f"v_add_u32 v14, {L_STAT}, v4")
        for t in range(9):
            e(f"ds_read_b32 v{5+t}, v14 offset:{t*128}")
        e("s_waitcnt lgkmcnt(0)")
        for t in range(1, 9):
            e(f"v_add_f32 v5, v5, v{5+t}")
        e(f"s_lshl_b32 s50, s{S_HG}, 13")
        e(f"s_lshl_b32 s51, s{S_QB}, 7")
        e("s_add_u32 s50, s50, s51")
        e(f"s_add_u32 s50, s50, s{s_part}")
        e("s_mov_b32 exec_hi, 0")
        e(f"buffer_store_dword v5, v4, {srd(SRD_WS)}, s50 offen sc1")
        e("s_mov_b64 exec, -1")
        e.label(fin)
```

```python
from gen_common import *

def p0(e, after_gemm):
    e.make_srd(SRD_A, S_AX, XBYTES)
    e(f"s_lshl_b32 s50, s{S_QB}, 5")
    e(f"v_add_u32 v4, s50, v{V_R16}")
    e("v_mul_u32_u24 v4, 1152, v4")
    e(f"v_lshl_add_u32 v4, v{V_GQ}, 4, v4")
    for m in range(5):
        skip = None
        if m == 4:
            skip = e.L("p0dma")
            e(f"s_cmp_ge_u32 s{S_WAVE}, 4")
            e(f"s_cbranch_scc1 {skip}")
        e(f"s_add_u32 s50, s{S_WAVE}, {8*m}")
        e("s_cmp_ge_u32 s50, 18")
        e("s_cselect_b32 s51, 18, 0")
        e("s_cselect_b32 s52, 18432, 0")
        e("s_sub_u32 s51, s50, s51")
        e("s_lshl_b32 s51, s51, 6")
        e("s_add_u32 s51, s51, s52")
        e("s_lshl_b32 m0, s50, 10")
        e(f"buffer_load_dwordx4 v4, {srd(SRD_A)}, s51 offen lds")
        if skip:
            e.label(skip)
    e.make_srd(SRD_T, S_FT, 36 * 18432)
    e(f"v_lshlrev_b32 v5, 4, v{V_LANE}")
    e(f"s_mul_i32 s56, s{S_HG}, 9")
    e(f"s_add_u32 s57, s56, s{S_WAVE}")
    e("s_mul_i32 s57, s57, 18432")
    e.load_a_frags(SRD_T, 57, G_A, vlane16=5)
    nx = e.L("p0nx")
    e(f"s_cmp_ge_u32 s{S_WAVE}, 2")
    e(f"s_cbranch_scc1 {nx}")
    e("s_add_u32 s57, s56, 8")
    e("s_mul_i32 s57, s57, 18432")
    e.load_a_frags(SRD_T, 57, G_AX, vlane16=5)
    e.label(nx)
    e.make_srd(SRD_A, S_WR, S * 289 * 2)
    e.make_srd(SRD_B, S_WI, S * 289 * 2)
    e("s_lshr_b32 s50, s2, 2")
    e("s_and_b32 s51, s2, 3")
    e("s_lshr_b32 s52, s50, 3")
    e("s_and_b32 s53, s50, 7")
    e("s_lshl_b32 s53, s53, 3")
    e("s_add_u32 s52, s52, s53")
    e(f"v_and_b32 v6, 7, v{V_LANE}")
    e("v_lshlrev_b32 v7, 6, v6")
    e("v_add_u32 v7, s52, v7")
    e("v_mul_u32_u24 v7, 578, v7")
    e("s_mul_i32 s54, s51, 72")
    e(f"v_lshrrev_b32 v8, 3, v{V_LANE}")
    e("s_lshl_b32 s55, s50, 7")
    e(f"s_add_u32 s55, s55, {WT}")
    e("v_mov_b32 v218, 0")
    e("v_mov_b32 v219, 0")
    wt_done = e.L("wtdone")
    for rnd in range(2):
        if rnd == 1:
            e(f"s_cmp_lg_u32 s{S_WAVE}, 0")
            e(f"s_cbranch_scc1 {wt_done}")
            e("s_add_u32 s58, s54, 64")
        else:
            e(f"s_lshl_b32 s58, s{S_WAVE}, 3")
            e("s_add_u32 s58, s58, s54")
        d = 208 + 4 * rnd
        d2 = 220 + 4 * rnd
        a = 216 + 2 * rnd
        e(f"v_add_u32 v9, s58, v8")
        e("v_cmp_eq_u32 vcc, 0, v9")
        e("v_mov_b32 v10, 288")
        e("v_cndmask_b32 v10, v9, v10, vcc")
        e(f"v_lshl_add_u32 v{a}, v10, 1, v7")
        e("v_lshlrev_b32 v9, 13, v9")
        e(f"v_lshl_add_u32 v{a+1}, v6, 4, v9")
        for f3 in range(4):
            e(f"s_mov_b32 s59, {f3 * 512 * 578}")
            e(f"buffer_load_ushort v{d+f3}, v{a}, {srd(SRD_A)}, s59 offen")
            e(f"buffer_load_ushort v{d2+f3}, v{a}, {srd(SRD_B)}, s59 offen")
    e.label(wt_done)
    nz = e.L("nozero")
    e("s_cmp_lg_u32 s2, 0")
    e(f"s_cbranch_scc1 {nz}")
    e("v_mov_b32 v12, 0")
    e("v_mov_b32 v13, 0")
    e("v_mov_b32 v14, 0")
    e("v_mov_b32 v15, 0")
    e("v_lshlrev_b32 v9, 4, v0")
    for k in range(3):
        e(f"s_mov_b32 s59, {CNT + 8192*k}")
        e(f"buffer_store_dwordx4 v[12:15], v9, {srd(SRD_WS)}, s59 offen sc1")
    e.label(nz)
    e.stamp("p0 issued")
    e("s_waitcnt vmcnt(0)")
    e("s_barrier")
    e.stamp("p0 loaded")
    ng = e.L("nogo")
    e(f"s_or_b32 s50, s2, s{S_WAVE}")
    e("s_cmp_lg_u32 s50, 0")
    e(f"s_cbranch_scc1 {ng}")
    e.make_srd(SRD_A, S_DBG, 256)
    e("v_mov_b32 v9, 0")
    e("v_mov_b32 v10, 1")
    e("s_mov_b64 exec, 1")
    e(f"buffer_store_dword v10, v9, {srd(SRD_A)}, 0 offen sc1")
    e("s_mov_b64 exec, -1")
    e.label(ng)
    e.make_srd(SRD_B, S_DBG, 256)
    e("v_mov_b32 v9, 0")
    e(f"buffer_load_dword v252, v9, {srd(SRD_B)}, 0 offen sc1")
    for r in range(4):
        e(f"v_lshl_or_b32 v{208+r}, v{220+r}, 16, v{208+r}")
    e(f"buffer_store_dwordx4 v[208:211], v217, {srd(SRD_WS)}, s55 offen sc1")
    w1 = e.L("wt1")
    e(f"s_cmp_lg_u32 s{S_WAVE}, 0")
    e(f"s_cbranch_scc1 {w1}")
    for r in range(4):
        e(f"v_lshl_or_b32 v{212+r}, v{224+r}, 16, v{212+r}")
    e(f"buffer_store_dwordx4 v[212:215], v219, {srd(SRD_WS)}, s55 offen sc1")
    e.label(w1)
    e(f"s_and_b32 s50, s{S_WAVE}, 1")
    e("s_mul_i32 s50, s50, 18432")
    e(f"v_lshlrev_b32 v56, 4, v{V_LANE}")
    e("v_add_u32 v57, 18432, v56")
    e("v_subrev_u32 v57, s50, v57")
    e("v_add_u32 v56, s50, v56")
    e.g144_both("frag", 56, 57)
    e.stamp("p0 gemm")
    after_gemm()
    e(f"s_mov_b32 s{S_X}, {X0}")
    e(f"s_mov_b32 s{S_X+1}, {PART0}")
    e.xhat_epilogue(S_X, S_X + 1)
```

```python
import sys
from gen_common import *
import gen_p0, gen_fft, gen_prep, gen_attn, tables

NAME = "interleave_layers__spectral_gfnet__grouped_kv_mqa__prompt_kernel"

HEADER = """; Kernarg layout (88 bytes, ptrs only, base s[0:1]):
; @launch grid=(256,1,1) block=(512,1,1) lds=163840
.amdgcn_target "amdgcn-amd-amdhsa--gfx950"
.text
.globl {n}
.p2align 8
.type {n},@function
{n}:
"""

FOOTER = """.section .rodata,"a"
.p2align 6
.amdhsa_kernel {n}
  .amdhsa_next_free_vgpr {v}
  .amdhsa_next_free_sgpr {s}
  .amdhsa_accum_offset {v}
  .amdhsa_group_segment_fixed_size 0
  .amdhsa_kernarg_size 88
  .amdhsa_user_sgpr_count 2
  .amdhsa_user_sgpr_kernarg_segment_ptr 1
  .amdhsa_system_sgpr_workgroup_id_x 1
  .amdhsa_float_denorm_mode_32 3
.end_amdhsa_kernel
"""


DBG_SLOTS = [("p0 loaded", 1, 0), ("p0 done", 1, 0), ("bar0", 1, 0), ("s done", 1, 0), ("bar1", 1, 0), ("bar2", 1, 0),
             ("kv loaded", 1, 0), ("attn done", 1, 0), ("bar4", 1, 0), ("bar1", 1, 1), ("bar2", 1, 1), ("attn done", 1, 1),
             ("bar3", 1, 1), ("end", 1, 1)]


def build(stop=99, profile=False, dbgprof=False):
    e = Gen()
    e.profile = profile
    if dbgprof:
        e.dbgprof = DBG_SLOTS
    A = gen_attn

    def halt(k):
        if stop == k:
            e("s_branch L_fin")

    def tw_prefetch():
        sk = e.L("twpre")
        e("s_cmp_ge_u32 s2, 144")
        e(f"s_cbranch_scc1 {sk}")
        gen_fft.sfilter_prefetch(e)
        e.label(sk)

    e.prologue()
    e.stamp('start')
    gen_p0.p0(e, tw_prefetch)
    e.stamp('p0 done')
    e.arrive(go_check=True)
    e.wait()
    e.stamp('bar0')
    halt(0)
    e.label("L_layer")
    nof, sdone, p5 = e.L("nofft"), e.L("sdone"), e.L("prep5")
    e("s_cmp_ge_u32 s2, 144")
    e(f"s_cbranch_scc1 {nof}")
    e(f"s_cmp_eq_u32 s{S_LAYER}, 0")
    e.sel(S_X, X0, X2)
    e.sel(S_X+1, X1, X3)
    e.sel(S_X+2, PART0, PART2)
    gen_fft.sfilter(e, S_X, S_X + 1, S_X + 2)
    e(f"s_branch {sdone}")
    e.label(nof)
    e("s_waitcnt vmcnt(0)")
    e(f"s_cmp_lg_u32 s{S_LAYER}, 0")
    e(f"s_cbranch_scc1 {p5}")
    gen_prep.prep_phase1(e)
    e(f"s_branch {sdone}")
    e.label(p5)
    gen_prep.prep_phase5(e)
    e.label(sdone)
    e.stamp('s done')
    e.arrive()
    e.wait()
    e.stamp('bar1')
    halt(1)
    e(f"s_cmp_eq_u32 s{S_LAYER}, 0")
    e.sel(A.S_XIN, X1, X3)
    e.sel(A.S_KV, KV0, KV1)
    e.sel(A.S_OB, O0, O1)
    A.p2(e)
    e.stamp('p2 done')
    e.wait()
    e.stamp('bar2')
    halt(2)
    A.attention(e)
    e.stamp('attn done')
    e.arrive(group=True)
    A.wo_prefetch(e, main=False, extra=True)
    e.wait(group=True)
    e.stamp('bar3')
    halt(3)
    A.p4(e)
    last = e.L("last")
    e(f"s_cmp_lg_u32 s{S_LAYER}, 0")
    e(f"s_cbranch_scc1 {last}")
    tw_prefetch()
    e(f"s_mov_b32 s{S_X}, {X2}")
    e(f"s_mov_b32 s{S_X+1}, {PART2}")
    e.xhat_epilogue(S_X, S_X + 1)
    e.stamp('p4 done')
    e.arrive()
    e.wait()
    e.stamp('bar4')
    halt(4)
    e(f"s_mov_b32 s{S_LAYER}, 1")
    e("s_branch L_layer")
    e.label(last)
    A.out_epilogue(e)
    e.label("L_fin")
    e.dump_stamps()
    e.label("L_end")
    e("s_endpgm")
    e.label("L_code_end")
    n = e.fix_hazards()
    errs = e.check_waits()
    for x in errs[:40]:
        print("WAITCHECK:", x, file=sys.stderr)
    mv, ms = e.max_regs()
    print(f"instructions={sum(1 for i in e.ins if i.mn)} nops_inserted={n} vgpr={mv} sgpr={ms} waiterrs={len(errs)}", file=sys.stderr)
    assert mv <= 256 and ms <= 102
    if profile:
        open("stamps.txt", "w").write("\n".join(e.stamp_names))
    return HEADER.format(n=NAME) + e.text() + FOOTER.format(n=NAME, v=256, s=102) + tables.tables()


if __name__ == "__main__":
    stop = int(sys.argv[2]) if len(sys.argv) > 2 else 99
    prof = len(sys.argv) > 3 and sys.argv[3] == "prof"
    dbg = len(sys.argv) > 3 and sys.argv[3] == "dbg"
    open(sys.argv[1], "w").write(build(stop, prof, dbg))
```

```python
import re

REG_RE = re.compile(r"^(-|\|)?([vsa])(\d+)\|?$")
RANGE_RE = re.compile(r"^(-|\|)?([vsa])\[(\d+):(\d+)\]\|?$")
TRANS = ("v_exp_f32", "v_log_f32", "v_rcp_f32", "v_rsq_f32", "v_sqrt_f32", "v_sin_f32", "v_cos_f32",
         "v_exp_f16", "v_rcp_iflag_f32")


def regs_of(op):
    op = op.strip()
    m = REG_RE.match(op)
    if m:
        return {(m.group(2), int(m.group(3)))}
    m = RANGE_RE.match(op)
    if m:
        return {(m.group(2), i) for i in range(int(m.group(3)), int(m.group(4)) + 1)}
    if op == "vcc":
        return {("s", "vcc_lo"), ("s", "vcc_hi")}
    if op in ("vcc_lo", "vcc_hi"):
        return {("s", op)}
    if op == "exec":
        return {("s", "exec_lo"), ("s", "exec_hi")}
    if op in ("exec_lo", "exec_hi"):
        return {("s", op)}
    if op == "m0":
        return {("s", "m0")}
    return set()


class Ins:
    __slots__ = ("text", "mn", "ops", "mods", "defs", "uses", "kind", "label", "target", "passes", "srcc", "sdata")

    def __init__(self, text):
        self.text = text
        self.label = None
        self.target = None
        self.passes = 0
        self.srcc = set()
        self.sdata = set()
        self.defs = set()
        self.uses = set()
        t = text.split(";")[0].strip()
        if t.endswith(":") and " " not in t:
            self.label = t[:-1]
            self.mn = None
            self.kind = "label"
            self.ops = []
            self.mods = ""
            return
        if not t or t.startswith("."):
            self.mn = None
            self.kind = "dir"
            self.ops = []
            self.mods = ""
            return
        parts = t.split(None, 1)
        self.mn = mn = parts[0]
        rest = parts[1] if len(parts) > 1 else ""
        toks = []
        depth = 0
        cur = ""
        for ch in rest:
            if ch == "[":
                depth += 1
            if ch == "]":
                depth -= 1
            if ch == "," and depth == 0:
                toks.append(cur.strip())
                cur = ""
            else:
                cur += ch
        if cur.strip():
            toks.append(cur.strip())
        mods = ""
        if toks:
            last = toks[-1].split(None, 1)
            if len(last) > 1:
                toks[-1] = last[0]
                mods = last[1]
        self.ops = toks
        self.mods = mods
        self._classify()

    def _classify(self):
        mn, ops = self.mn, self.ops
        R = lambda i: regs_of(ops[i]) if i < len(ops) else set()
        allr = lambda a: set().union(*[regs_of(o) for o in ops[a:]]) if len(ops) > a else set()
        if mn.startswith("v_mfma"):
            self.kind = "mfma"
            self.defs = R(0)
            self.uses = R(1) | R(2) | R(3)
            self.srcc = R(3)
            if "32x32x16" in mn or "32x32x8" in mn:
                self.passes = 8
            elif "16x16x32" in mn or "16x16x16" in mn:
                self.passes = 4
            else:
                raise ValueError("unknown mfma " + mn)
        elif mn.startswith("v_"):
            self.kind = "valu"
            if mn.startswith("v_cmp"):
                self.defs = R(0)
                self.uses = allr(1)
            elif mn.startswith("v_readfirstlane") or mn.startswith("v_readlane"):
                self.defs = R(0)
                self.uses = allr(1)
            elif mn.startswith("v_permlane") and "swap" in mn:
                self.defs = R(0) | R(1)
                self.uses = R(0) | R(1)
            elif mn.startswith(("v_add_co", "v_sub_co", "v_addc_co", "v_subb_co")):
                self.defs = R(0) | R(1)
                self.uses = allr(2)
            elif mn.startswith("v_cndmask"):
                self.defs = R(0)
                self.uses = allr(1)
                if len(ops) == 3:
                    self.uses |= regs_of("vcc")
            elif mn.startswith(("v_fmac", "v_dot2c", "v_pk_fmac", "v_writelane")):
                self.defs = R(0)
                self.uses = allr(0)
            else:
                self.defs = R(0)
                self.uses = allr(1)
            if "dst_unused:UNUSED_PRESERVE" in self.mods:
                self.uses |= R(0)
        elif mn.startswith("buffer_"):
            self.kind = "vmem"
            lds = re.search(r"\blds\b", self.mods) is not None
            if lds:
                self.uses = allr(0) | {("s", "m0")}
            elif mn.startswith("buffer_load"):
                self.defs = R(0)
                self.uses = allr(1)
                if "d16" in mn:
                    self.uses |= R(0)
            elif mn.startswith("buffer_store"):
                self.uses = allr(0)
                self.sdata = R(0)
            elif mn.startswith("buffer_atomic"):
                self.uses = allr(0)
                if re.search(r"\bsc0\b", self.mods):
                    self.defs = R(0)
            else:
                self.uses = allr(0)
        elif mn.startswith("global_"):
            self.kind = "vmem"
            if mn.startswith("global_load"):
                self.defs = R(0)
                self.uses = allr(1)
            else:
                self.uses = allr(0)
                self.sdata = R(1)
        elif mn.startswith("ds_"):
            self.kind = "ds"
            if mn.startswith(("ds_read", "ds_bpermute", "ds_permute", "ds_swizzle")):
                self.defs = R(0)
                self.uses = allr(1)
            else:
                self.uses = allr(0)
        elif mn.startswith(("s_load", "s_memtime", "s_memrealtime")):
            self.kind = "smem"
            self.defs = R(0)
            self.uses = allr(1)
        elif mn in ("s_branch",) or mn.startswith("s_cbranch"):
            self.kind = "branch"
            self.target = self.ops[0]
            if "vcc" in mn:
                self.uses = regs_of("vcc")
            if "exec" in mn:
                self.uses = regs_of("exec")
        elif mn in ("s_waitcnt", "s_nop", "s_barrier", "s_endpgm", "s_sleep", "s_setprio"):
            self.kind = "ctl"
        elif mn.startswith("s_"):
            self.kind = "salu"
            if mn.startswith(("s_cmp", "s_bitcmp")):
                self.uses = allr(0)
            elif "saveexec" in mn:
                self.defs = R(0) | regs_of("exec")
                self.uses = allr(1) | regs_of("exec")
            elif mn.startswith(("s_addk", "s_mulk")):
                self.defs = R(0)
                self.uses = R(0)
            else:
                self.defs = R(0)
                self.uses = allr(1)
        else:
            raise ValueError("unknown instruction: " + self.text)

    def states(self):
        if self.mn is None:
            return 0
        if self.mn == "s_nop":
            return int(self.ops[0], 0) + 1
        return 1


def is_v(rs):
    return {r for r in rs if r[0] in "va"}


def is_s(rs):
    return {r for r in rs if r[0] == "s"}


def need(p, c):
    n = 0
    pv, ps = is_v(p.defs), is_s(p.defs)
    if p.kind == "valu":
        if c.kind == "mfma" and pv & is_v(c.uses):
            n = max(n, 2)
        if c.kind == "valu":
            if p.mn in TRANS and c.mn not in TRANS and pv & c.uses:
                n = max(n, 1)
            if p.mn in TRANS and c.mn in TRANS and pv & c.uses:
                n = max(n, 1)
            if c.mn.startswith(("v_readfirstlane", "v_readlane")) and pv & c.uses:
                n = max(n, 1)
            if (c.mn.startswith("v_permlane") or "dpp" in c.mn or "quad_perm" in c.mods or "row_" in c.mods) and pv & c.uses:
                n = max(n, 2)
            if ps & is_s(c.uses):
                n = max(n, 4 if c.mn.startswith(("v_readlane", "v_writelane")) else 2)
            if "sdwa" in p.mn and "dst_sel:DWORD" not in p.mods and pv & (c.uses | c.defs):
                n = max(n, 1)
        if c.kind == "vmem" and ps & is_s(c.uses):
            n = max(n, 5)
        if c.kind == "salu" and ps & is_s(c.uses):
            n = max(n, 4)
        if c.kind == "branch" and ps & is_s(c.uses):
            n = max(n, 5)
    if p.kind == "mfma":
        big = p.passes == 8
        if c.kind in ("valu", "vmem", "ds") and pv & (c.uses | c.defs):
            n = max(n, 12 if big else 8)
        if c.kind == "mfma":
            ab = (regs_of(c.ops[1]) | regs_of(c.ops[2]))
            if pv & ab:
                n = max(n, 12 if big else 8)
            if pv & c.srcc:
                if not (pv == c.srcc and p.passes == c.passes):
                    n = max(n, 10 if big else 6)
            elif pv & c.defs:
                n = max(n, 10 if big else 6)
        if c.kind == "valu" and p.srcc & is_v(c.defs):
            n = max(n, 7 if big else 3)
    if p.kind == "vmem" and len(p.sdata) >= 3 and p.sdata & is_v(c.defs):
        n = max(n, 2 if c.kind in ("valu", "mfma") else 1)
    if p.kind == "salu" and ("s", "m0") in p.defs and c.kind == "vmem" and ("s", "m0") in c.uses:
        n = max(n, 1)
    return n


class Prog:
    def __init__(self):
        self.ins = []

    def __call__(self, text):
        for line in text.split("\n"):
            line = line.strip()
            if line:
                self.ins.append(Ins(line))

    def label(self, name):
        self.ins.append(Ins(name + ":"))

    def _preds(self):
        labels = {i.label: n for n, i in enumerate(self.ins) if i.label}
        preds = [[] for _ in self.ins]
        for n, i in enumerate(self.ins):
            if i.kind == "branch":
                if i.target not in labels:
                    raise ValueError("undefined label " + i.target)
                preds[labels[i.target]].append(n)
            if n + 1 < len(self.ins) and i.mn not in ("s_branch", "s_endpgm"):
                preds[n + 1].append(n)
        return preds

    def fix_hazards(self, maxd=13):
        total = 0
        while True:
            preds = self._preds()
            ins = self.ins
            inserts = {}
            for n, c in enumerate(ins):
                if c.mn is None or c.kind in ("ctl",):
                    continue
                worst = 0
                stack = [(p, 0) for p in preds[n]]
                seen = {}
                while stack:
                    p, d = stack.pop()
                    if seen.get(p, 99) <= d:
                        continue
                    seen[p] = d
                    pi = ins[p]
                    if pi.mn is not None:
                        k = need(pi, c)
                        if k > d:
                            worst = max(worst, k - d)
                    nd = d + pi.states()
                    if nd < maxd:
                        for q in preds[p]:
                            stack.append((q, nd))
                if worst:
                    inserts[n] = worst
            if not inserts:
                break
            first = True
            out = []
            last = -99
            for n, c in enumerate(ins):
                if n in inserts and n - last > 16:
                    k = inserts[n]
                    out.append(Ins(f"s_nop {k - 1}"))
                    total += 1
                    last = n
                out.append(c)
            self.ins = out
        return total

    def check_waits(self, cases=None):
        errors = {}
        for wave, wg in (cases or [(None, None)]):
            for k, v in self._check_waits_case(wave, wg).items():
                errors.setdefault(k, v + f"   [wave {wave}, wg {wg}]")
        return list(errors.values())

    def _check_waits_case(self, wave, wg, s_wave=26, s_layer=45):
        ins = self.ins
        labels = {i.label: n for n, i in enumerate(ins) if i.label}
        NOSCC = ("s_mov_b32", "s_mov_b64", "s_mul_i32", "s_mul_hi_u32", "s_cselect_b32", "s_cselect_b64", "s_getpc_b64")
        CMP = {"eq": lambda a, b: a == b, "lg": lambda a, b: a != b, "ge": lambda a, b: a >= b, "gt": lambda a, b: a > b,
               "le": lambda a, b: a <= b, "lt": lambda a, b: a < b}
        state = {}
        start = (0, None)
        state[start] = ({}, {}, frozenset(), None)
        work = [start]
        errors = {}
        while work:
            key = work.pop()
            n, layer = key
            vm, lg, sm, scc = state[key]
            vm, lg, sm = dict(vm), dict(lg), set(sm)
            i = ins[n]
            succ = []
            if i.mn is not None:
                touched = i.uses | i.defs
                for tag, d in (("vmcnt", vm), ("lgkmcnt", lg)):
                    for op in d:
                        hit = ins[op].defs & touched
                        if hit and op != n:
                            errors[(n, op)] = f"{tag}: line {n} '{i.text}' touches {sorted(hit)[:3]} of in-flight '{ins[op].text}'"
                for r in sm:
                    if r in touched:
                        errors[(n, r)] = f"smem: line {n} '{i.text}' touches in-flight {r}"
                if i.mn == "s_waitcnt":
                    t = " ".join(i.ops) + " " + i.mods
                    m = re.search(r"vmcnt\((\d+)\)", t)
                    if m:
                        k = int(m.group(1))
                        vm = {op: c for op, c in vm.items() if c < k}
                    m = re.search(r"lgkmcnt\((\d+)\)", t)
                    if m:
                        k = int(m.group(1))
                        if k == 0:
                            lg = {}
                            sm = set()
                        else:
                            lg = {op: c for op, c in lg.items() if c < k}
                elif i.kind == "vmem":
                    vm = {op: min(c + 1, 64) for op, c in vm.items()}
                    if i.defs:
                        vm[n] = 0
                elif i.kind == "ds":
                    lg = {op: min(c + 1, 16) for op, c in lg.items()}
                    if i.defs:
                        lg[n] = 0
                elif i.kind == "smem":
                    sm |= i.defs
                elif i.kind == "salu":
                    m = re.match(r"s_cmp_(eq|lg|ge|gt|le|lt)_u32$", i.mn)
                    if m:
                        known = {f"s{s_wave}": wave, "s2": wg, f"s{s_layer}": layer}
                        a = known.get(i.ops[0])
                        try:
                            b = int(i.ops[1], 0)
                        except ValueError:
                            b = None
                        scc = CMP[m.group(1)](a, b) if (a is not None and b is not None) else None
                    elif i.mn not in NOSCC:
                        scc = None
                    if i.mn == "s_mov_b32" and i.ops[0] == f"s{s_layer}":
                        layer = int(i.ops[1], 0)
            if i.kind == "branch":
                taken = None
                if i.mn == "s_branch":
                    taken = True
                elif i.mn == "s_cbranch_scc1" and scc is not None:
                    taken = scc
                elif i.mn == "s_cbranch_scc0" and scc is not None:
                    taken = not scc
                if taken is not False:
                    succ.append(labels[i.target])
                if taken is not True and n + 1 < len(ins):
                    succ.append(n + 1)
            elif i.mn != "s_endpgm" and n + 1 < len(ins):
                succ.append(n + 1)
            for s_ in succ:
                k2 = (s_, layer)
                if k2 not in state:
                    state[k2] = (vm, lg, frozenset(sm), scc)
                    work.append(k2)
                else:
                    ovm, olg, osm, oscc = state[k2]
                    nvm = dict(ovm)
                    for op, c in vm.items():
                        nvm[op] = min(c, nvm.get(op, 99))
                    nlg = dict(olg)
                    for op, c in lg.items():
                        nlg[op] = min(c, nlg.get(op, 99))
                    nsm = osm | frozenset(sm)
                    nscc = oscc if oscc == scc else None
                    if nvm != ovm or nlg != olg or nsm != osm or nscc != oscc:
                        state[k2] = (nvm, nlg, nsm, nscc)
                        work.append(k2)
        return errors

    def max_regs(self):
        mv = ms = 0
        for i in self.ins:
            for r in i.defs | i.uses:
                if r[0] == "v":
                    mv = max(mv, r[1] + 1)
                elif r[0] == "s" and isinstance(r[1], int):
                    ms = max(ms, r[1] + 1)
        return mv, ms

    def text(self):
        out = []
        for i in self.ins:
            out.append(i.text if (i.label or i.kind == "dir") else "  " + i.text)
        return "\n".join(out) + "\n"
```

```python
from gen_common import *

RES = 244
KA = 208
SA, SB, OA, OB = 16, 32, 48, 136
PA_, PB_ = 152, 160
K1, K2 = 168, 172
V0, V1 = 176, 180
QA1, QA2, QB1, QB2 = 184, 188, 192, 196
AK1, AK2, AV = 198, 199, 200
L_REDX = 0
L_OX = 0
S_XIN, S_KV, S_OB, S_FB = S_X, S_X + 1, S_X + 2, S_X + 4
QSCALE = "0x3eae1a93"


def xtile_bases(e, va, vb, base=L_XT2):
    e(f"s_and_b32 s50, s{S_WAVE}, 1")
    e(f"v_and_b32 v4, 1, v{V_GQ}")
    e("v_xor_b32 v4, s50, v4")
    e(f"v_lshlrev_b32 v5, 9, v{V_GQ}")
    e("v_lshl_add_u32 v5, v4, 7, v5")
    e(f"v_lshl_add_u32 v5, v{V_R16}, 3, v5")
    e(f"v_add_u32 v{va}, {base}, v5")
    e(f"v_xor_b32 v{vb}, 128, v{va}")


def tile_dma(e, s_src, lds_base, vlane16):
    e(f"s_mul_i32 s54, s{S_QB}, 36864")
    e(f"s_add_u32 s54, s54, s{s_src}")
    for m in range(5):
        skip = None
        if m == 4:
            skip = e.L("tdma")
            e(f"s_cmp_ge_u32 s{S_WAVE}, 4")
            e(f"s_cbranch_scc1 {skip}")
        e(f"s_add_u32 s50, s{S_WAVE}, {8*m}")
        e("s_lshl_b32 s50, s50, 10")
        if lds_base:
            e(f"s_add_u32 m0, s50, {lds_base}")
        else:
            e("s_mov_b32 m0, s50")
        e("s_add_u32 s50, s50, s54")
        e(f"buffer_load_dwordx4 v{vlane16}, {srd(SRD_WS)}, s50 offen sc1 lds")
        if skip:
            e.label(skip)


def wq_main(e, v=60):
    e(f"v_lshlrev_b32 v{v}, 4, v{V_LANE}")
    e(f"s_mul_i32 s57, s{S_HG}, 9")
    e(f"s_add_u32 s57, s57, s{S_WAVE}")
    e(f"s_mul_i32 s57, s57, 18432")
    e(f"s_add_u32 s57, s57, {WQF}")
    e.load_a_frags(SRD_WS, 57, G_A, flags="sc1", vlane16=v)


def wq_extra(e):
    nx = e.L("wqnx")
    e(f"s_cmp_ge_u32 s{S_WAVE}, 2")
    e(f"s_cbranch_scc1 {nx}")
    e(f"v_lshlrev_b32 v60, 4, v{V_LANE}")
    e(f"s_mul_i32 s57, s{S_HG}, 9")
    e("s_add_u32 s57, s57, 8")
    e(f"s_mul_i32 s57, s57, 18432")
    e(f"s_add_u32 s57, s57, {WQF}")
    e.load_a_frags(SRD_WS, 57, G_AX, flags="sc1", vlane16=60)
    e.label(nx)


S_WQOK = S_X + 7


def wq_ready_spin(e):
    lp, ok = e.L("wqspin"), e.L("wqok")
    e(f"v_mov_b32 v4, {CNT_WQ}")
    e("s_mov_b32 s48, 0")
    e.label(lp)
    e(f"buffer_load_dword v5, v4, {srd(SRD_WS)}, 0 offen sc1")
    e("s_waitcnt vmcnt(0)")
    e("v_readfirstlane_b32 s49, v5")
    e("s_add_u32 s48, s48, 1")
    e(f"s_cmp_gt_u32 s48, {SPIN_LIMIT}")
    e(f"s_cbranch_scc1 {ok}")
    e("s_cmp_ge_u32 s49, 50")
    e(f"s_cbranch_scc1 {ok}")
    e("s_sleep 2")
    e(f"s_branch {lp}")
    e.label(ok)


def p2(e):
    e(f"v_lshlrev_b32 v60, 4, v{V_LANE}")
    tile_dma(e, S_XIN, L_XT2, 60)
    e(f"s_lshr_b32 s55, s{S_WAVE}, 1")
    e("s_mul_i32 s56, s55, 5")
    e("s_cmp_eq_u32 s55, 3")
    e("s_cselect_b32 s56, 14, s56")
    e(f"s_add_u32 s57, s{S_HG}, 36")
    e("s_mul_i32 s57, s57, 18")
    e("s_add_u32 s57, s57, s56")
    e("s_lshl_b32 s57, s57, 10")
    e(f"s_add_u32 s57, s57, {WQF}")
    for st in range(5):
        if st == 4:
            e("s_add_u32 s57, s57, 4096")
            e(f"buffer_load_dwordx4 {vr(KA+16,4)}, v60, {srd(SRD_WS)}, s57 offen sc1")
        else:
            o = f" offset:{st*1024}" if st else ""
            e(f"buffer_load_dwordx4 {vr(KA+4*st,4)}, v60, {srd(SRD_WS)}, s57 offen{o} sc1")
    e(f"v_mov_b32 v4, {L_FLAG}")
    e("v_mov_b32 v5, 0")
    e("ds_write_b32 v4, v5")
    e("s_waitcnt vmcnt(0)")
    e("s_barrier")
    e.stamp("p2 loaded")
    xtile_bases(e, 56, 57)
    e("s_lshl_b32 s50, s56, 11")
    e("v_add_u32 v58, s50, v56")
    for st in range(5):
        e(f"ds_read_b64 {vr(16+4*st,2)}, v58 offset:{st*2048}")
        e(f"ds_read_b64 {vr(18+4*st,2)}, v58 offset:{st*2048+256}")
    e("v_mov_b32 v9, 0")
    e("v_mov_b32 v10, 0")
    e("v_mov_b32 v11, 0")
    e("v_mov_b32 v12, 0")
    e("v_mov_b32 v13, 0")
    e("s_waitcnt lgkmcnt(0)")
    e("v_mov_b32 v14, v16")
    nodc = e.L("ssdc")
    e("s_cmp_lg_u32 s55, 0")
    e(f"s_cbranch_scc1 {nodc}")
    e("v_and_b32 v15, 0xffff, v16")
    e(f"v_cmp_eq_u32 vcc, 0, v{V_GQ}")
    e("v_cndmask_b32 v14, v16, v15, vcc")
    e.label(nodc)
    e("v_dot2c_f32_bf16 v9, v14, v14")
    for r in range(17, 32):
        e(f"v_dot2c_f32_bf16 v9, v{r}, v{r}")
    vt, mdone = e.L("vtype"), e.L("kvm")
    e(f"s_bitcmp1_b32 s{S_HG}, 0")
    e(f"s_cbranch_scc1 {vt}")
    for st in range(4):
        e(f"v_mfma_f32_16x16x32_bf16 v[10:13], {vr(KA+4*st,4)}, {vr(16+4*st,4)}, v[10:13]")
    e(f"s_branch {mdone}")
    e.label(vt)
    for st in range(4):
        e(f"v_mfma_f32_16x16x32_bf16 v[10:13], {vr(16+4*st,4)}, {vr(KA+4*st,4)}, v[10:13]")
    e.label(mdone)
    no5, vt5 = e.L("no5"), e.L("vt5")
    e("s_cmp_ge_u32 s55, 2")
    e(f"s_cbranch_scc1 {no5}")
    for r in range(32, 36):
        e(f"v_dot2c_f32_bf16 v9, v{r}, v{r}")
    e(f"s_bitcmp1_b32 s{S_HG}, 0")
    e(f"s_cbranch_scc1 {vt5}")
    e(f"v_mfma_f32_16x16x32_bf16 v[10:13], {vr(KA+16,4)}, v[32:35], v[10:13]")
    e(f"s_branch {no5}")
    e.label(vt5)
    e(f"v_mfma_f32_16x16x32_bf16 v[10:13], v[32:35], {vr(KA+16,4)}, v[10:13]")
    e.label(no5)
    e.sum_over_gq(9, 14)
    e(f"s_lshl_b32 s50, s{S_WAVE}, 10")
    e("v_add_u32 v4, s50, v60")
    e(f"ds_write_b128 v4, v[10:13] offset:{L_REDX}")
    e(f"s_lshl_b32 s50, s{S_WAVE}, 6")
    e(f"s_add_u32 s50, s50, {L_SS}")
    e(f"v_lshlrev_b32 v5, 2, v{V_R16}")
    e("v_add_u32 v5, s50, v5")
    e("ds_write_b32 v5, v9")
    e("s_waitcnt lgkmcnt(0)")
    e("s_barrier")
    notfin = e.L("notfin")
    e(f"s_cmp_lt_u32 s{S_WAVE}, 6")
    e(f"s_cbranch_scc1 {notfin}")
    kv_finalize(e)
    e.stamp("kv signal")
    e.label(notfin)
    hv = e.L("havewq")
    e(f"s_cmp_lg_u32 s{S_WQOK}, 0")
    e(f"s_cbranch_scc1 {hv}")
    wq_ready_spin(e)
    wq_main(e)
    e.label(hv)
    wq_extra(e)
    e(f"s_and_b32 s50, s{S_WAVE}, 1")
    e("s_lshl_b32 s50, s50, 6")
    e(f"s_add_u32 s50, s50, {L_SS}")
    e(f"v_lshlrev_b32 v4, 2, v{V_R16}")
    e("v_add_u32 v4, s50, v4")
    e("v_xor_b32 v5, 64, v4")
    for kq in range(4):
        e(f"ds_read_b32 v{6+kq}, v4 offset:{kq*128}")
        e(f"ds_read_b32 v{10+kq}, v5 offset:{kq*128}")
    e("s_waitcnt lgkmcnt(0)")
    e("v_add_f32 v6, v6, v7")
    e("v_add_f32 v8, v8, v9")
    e("v_add_f32 v10, v10, v11")
    e("v_add_f32 v12, v12, v13")
    e("v_add_f32 v58, v6, v8")
    e("v_add_f32 v59, v10, v12")
    e.inv_sigma(58, 4, scale=QSCALE)
    e.inv_sigma(59, 4, scale=QSCALE)
    e.g144_both("x", 56, 57, vm_fn=lambda ks, ex: 17 - ks)
    e(f"s_mov_b32 s{S_WQOK}, 0")
    e.stamp("q gemm")
    q_stage(e)
    rdone = e.L("resdone")
    e(f"s_cmp_lg_u32 s{S_LAYER}, 0")
    e(f"s_cbranch_scc1 {rdone}")
    e(f"s_mul_i32 s50, s{S_HG}, 36")
    e(f"s_lshl_b32 s51, s{S_WAVE}, 2")
    e("s_add_u32 s51, s51, s50")
    e("s_lshl_b32 s51, s51, 8")
    e(f"s_add_u32 s51, s51, {L_XT2}")
    e("s_add_u32 s52, s50, 32")
    e("s_lshl_b32 s52, s52, 8")
    e(f"s_add_u32 s52, s52, {L_XT2}")
    e(f"s_and_b32 s53, s{S_WAVE}, 1")
    e(f"v_lshrrev_b32 v4, 1, v{V_GQ}")
    e("v_xor_b32 v5, s53, v4")
    e(f"v_lshlrev_b32 v6, 8, v{V_GQ}")
    e(f"v_lshl_add_u32 v6, v{V_R16}, 3, v6")
    e("v_lshl_add_u32 v7, v5, 7, v6")
    e("v_xor_b32 v8, 128, v7")
    e("v_add_u32 v9, s51, v7")
    e("v_add_u32 v10, s51, v8")
    e("v_add_u32 v11, s52, v7")
    e(f"ds_read_b64 {vr(RES,2)}, v9")
    e(f"ds_read_b64 {vr(RES+2,2)}, v10")
    e(f"ds_read_b64 {vr(RES+4,2)}, v11")
    e.label(rdone)
    e("s_waitcnt lgkmcnt(0)")
    e("s_barrier")
    e(f"s_and_b32 s50, s{S_WAVE}, 3")
    e("s_mul_i32 s50, s50, 72")
    e(f"s_add_u32 s50, s50, {L_QL}")
    e(f"v_and_b32 v4, 31, v{V_LANE}")
    e(f"v_mul_u32_u24 v4, {QL_PITCH}, v4")
    e("v_add_u32 v4, s50, v4")
    e(f"v_lshrrev_b32 v5, 5, v{V_LANE}")
    e("v_lshl_add_u32 v5, v5, 4, v4")
    e(f"ds_read2_b32 {vr(QA1,2)}, v5 offset0:0 offset1:1")
    e(f"ds_read2_b32 {vr(QA1+2,2)}, v5 offset0:2 offset1:3")
    e(f"ds_read2_b32 {vr(QB1,2)}, v5 offset0:9 offset1:10")
    e(f"ds_read2_b32 {vr(QB1+2,2)}, v5 offset0:11 offset1:12")
    e(f"ds_read_b32 v{QA2}, v4 offset:32")
    e(f"ds_read_b32 v{QB2}, v4 offset:68")
    e(f"v_cmp_gt_u32 vcc, 32, v{V_LANE}")
    e("v_mov_b32 v6, 0")
    e("s_waitcnt lgkmcnt(0)")
    e(f"v_cndmask_b32 v{QA2}, v6, v{QA2}, vcc")
    e(f"v_cndmask_b32 v{QB2}, v6, v{QB2}, vcc")


def kv_finalize(e):
    e(f"s_and_b32 s51, s{S_QB}, 31")
    e("s_lshr_b32 s52, s51, 2")
    e(f"s_mul_i32 s52, s52, {CHUNK}")
    e("s_and_b32 s51, s51, 3")
    e(f"s_lshr_b32 s53, s{S_QB}, 5")
    e("s_lshl_b32 s53, s53, 2")
    e("s_add_u32 s51, s51, s53")
    e(f"s_add_u32 s52, s52, s{S_KV}")
    e(f"s_and_b32 s64, s{S_WAVE}, 1")
    e("s_lshl_b32 s65, s64, 6")
    e(f"s_add_u32 s65, s65, {L_SS}")
    e("s_lshl_b32 s50, s64, 10")
    e("v_add_u32 v61, s50, v60")
    for kq in range(4):
        e(f"ds_read_b128 {vr(16+4*kq,4)}, v61 offset:{L_REDX + 2*kq*1024}")
    vt, sdone = e.L("fin_v"), e.L("fin_sd")
    e(f"s_bitcmp1_b32 s{S_HG}, 0")
    e(f"s_cbranch_scc1 {vt}")
    e(f"v_lshlrev_b32 v4, 2, v{V_R16}")
    e("v_add_u32 v4, s65, v4")
    for kq in range(4):
        e(f"ds_read_b32 v{32+kq}, v4 offset:{kq*128}")
    e("s_waitcnt lgkmcnt(0)")
    e("v_add_f32 v32, v32, v33")
    e("v_add_f32 v34, v34, v35")
    e("v_add_f32 v32, v32, v34")
    e.inv_sigma(32, 4)
    e("v_mov_b32 v33, v32")
    e("v_mov_b32 v34, v32")
    e("v_mov_b32 v35, v32")
    e(f"s_branch {sdone}")
    e.label(vt)
    e(f"v_lshlrev_b32 v4, 4, v{V_GQ}")
    e("v_add_u32 v4, s65, v4")
    for kq in range(4):
        e(f"ds_read_b128 {vr(36+4*kq,4)}, v4 offset:{kq*128}")
    e("s_waitcnt lgkmcnt(0)")
    for r in range(4):
        e(f"v_add_f32 v{36+r}, v{36+r}, v{40+r}")
        e(f"v_add_f32 v{44+r}, v{44+r}, v{48+r}")
        e(f"v_add_f32 v{32+r}, v{36+r}, v{44+r}")
        e.inv_sigma(32 + r, 4)
    e.label(sdone)
    for r in range(4):
        e(f"v_add_f32 v{16+r}, v{16+r}, v{20+r}")
        e(f"v_add_f32 v{24+r}, v{24+r}, v{28+r}")
        e(f"v_add_f32 v{16+r}, v{16+r}, v{24+r}")
        e(f"v_mul_f32 v{16+r}, v{16+r}, v{32+r}")
    d = 52
    e(f"v_cvt_pk_bf16_f32 v{d}, v16, v17")
    e(f"v_cvt_pk_bf16_f32 v{d+1}, v18, v19")
    h0, h1, h2, h3, hd = [e.L(f"kvst{i}") for i in range(5)]
    e(f"s_cmp_eq_u32 s{S_HG}, 1")
    e(f"s_cbranch_scc1 {h1}")
    e(f"s_cmp_eq_u32 s{S_HG}, 2")
    e(f"s_cbranch_scc1 {h2}")
    e(f"s_cmp_eq_u32 s{S_HG}, 3")
    e(f"s_cbranch_scc1 {h3}")
    e("s_lshl_b32 s53, s51, 10")
    e("s_add_u32 s53, s53, s52")
    e("s_lshl_b32 s50, s64, 8")
    e("s_add_u32 s53, s53, s50")
    e(f"v_lshrrev_b32 v4, 1, v{V_GQ}")
    e("v_lshlrev_b32 v4, 9, v4")
    e(f"v_lshl_add_u32 v4, v{V_R16}, 4, v4")
    e(f"v_and_b32 v5, 1, v{V_GQ}")
    e("v_lshl_add_u32 v4, v5, 3, v4")
    e(f"buffer_store_dwordx2 {vr(d,2)}, v4, {srd(SRD_WS)}, s53 offen sc1")
    e(f"s_branch {hd}")
    e.label(h2)
    e("s_lshl_b32 s53, s51, 7")
    e("s_add_u32 s53, s53, s52")
    e(f"s_add_u32 s53, s53, {K2_OFF}")
    e("s_lshl_b32 s50, s64, 6")
    e("s_add_u32 s53, s53, s50")
    e(f"v_lshlrev_b32 v4, 2, v{V_R16}")
    e("s_mov_b64 exec, 0xffff")
    e(f"buffer_store_dword v{d}, v4, {srd(SRD_WS)}, s53 offen sc1")
    e("s_mov_b64 exec, -1")
    e(f"s_branch {hd}")
    e.label(h1)
    e(f"s_mul_i32 s53, s51, {VT}")
    e("s_add_u32 s53, s53, s52")
    e(f"s_add_u32 s53, s53, {V_OFF}")
    e("s_mul_i32 s50, s64, 608")
    e("s_add_u32 s53, s53, s50")
    e(f"v_and_b32 v5, 1, v{V_GQ}")
    e("v_mul_u32_u24 v4, 304, v5")
    e(f"v_lshl_add_u32 v4, v{V_R16}, 4, v4")
    e(f"v_lshrrev_b32 v5, 1, v{V_GQ}")
    e("v_lshl_add_u32 v4, v5, 3, v4")
    e(f"buffer_store_dwordx2 {vr(d,2)}, v4, {srd(SRD_WS)}, s53 offen sc1")
    e(f"s_branch {hd}")
    e.label(h3)
    e(f"s_mul_i32 s53, s51, {VT}")
    e("s_add_u32 s53, s53, s52")
    e(f"s_add_u32 s53, s53, {V_OFF + 256}")
    e("s_mul_i32 s50, s64, 608")
    e("s_add_u32 s53, s53, s50")
    e(f"v_and_b32 v5, 1, v{V_GQ}")
    e("v_mul_u32_u24 v4, 304, v5")
    e(f"v_lshl_add_u32 v4, v{V_R16}, 4, v4")
    e(f"v_lshrrev_b32 v5, 1, v{V_GQ}")
    e("v_lshl_add_u32 v4, v5, 3, v4")
    e("v_mov_b32 v6, 0x3f803f80")
    e(f"v_cmp_eq_u32 vcc, 2, v{V_R16}")
    e(f"v_cndmask_b32 v{d}, v{d}, v6, vcc")
    e(f"v_cndmask_b32 v{d+1}, v{d+1}, v6, vcc")
    e(f"v_cmp_gt_u32 vcc, 3, v{V_R16}")
    e("s_and_saveexec_b64 s[62:63], vcc")
    e(f"buffer_store_dwordx2 {vr(d,2)}, v4, {srd(SRD_WS)}, s53 offen sc1")
    e("s_mov_b64 exec, s[62:63]")
    e.label(hd)
    e("s_waitcnt vmcnt(0)")
    e.signal(2, per_layer=True)


def q_stage(e):
    accA, accB, accX = G_ACC, G_ACC + 4, G_ACC + 8
    e(f"s_and_b32 s50, s{S_WAVE}, 1")
    e("s_lshl_b32 s51, s50, 4")
    e(f"v_add_u32 v4, s51, v{V_R16}")
    e("v_xor_b32 v5, 16, v4")
    e(f"v_mul_u32_u24 v4, {QL_PITCH}, v4")
    e(f"v_mul_u32_u24 v5, {QL_PITCH}, v5")
    e(f"v_lshlrev_b32 v6, 3, v{V_GQ}")
    e(f"v_add_u32 v6, {L_QL}, v6")
    e("v_add_u32 v4, v4, v6")
    e("v_add_u32 v5, v5, v6")
    e(f"s_lshl_b32 s52, s{S_WAVE}, 5")
    e("v_add_u32 v7, s52, v4")
    e("v_add_u32 v8, s52, v5")
    for r in range(4):
        e(f"v_mul_f32 v{accA+r}, v{accA+r}, v58")
        e(f"v_mul_f32 v{accB+r}, v{accB+r}, v59")
    e(f"v_cvt_pk_bf16_f32 v10, v{accA}, v{accA+1}")
    e(f"v_cvt_pk_bf16_f32 v11, v{accA+2}, v{accA+3}")
    e(f"v_cvt_pk_bf16_f32 v12, v{accB}, v{accB+1}")
    e(f"v_cvt_pk_bf16_f32 v13, v{accB+2}, v{accB+3}")
    e("ds_write_b64 v7, v[10:11]")
    e("ds_write_b64 v8, v[12:13]")
    nx = e.L("qs_nx")
    e(f"s_cmp_ge_u32 s{S_WAVE}, 2")
    e(f"s_cbranch_scc1 {nx}")
    for r in range(4):
        e(f"v_mul_f32 v{accX+r}, v{accX+r}, v58")
    e(f"v_cvt_pk_bf16_f32 v14, v{accX}, v{accX+1}")
    e(f"v_cvt_pk_bf16_f32 v15, v{accX+2}, v{accX+3}")
    e("ds_write_b64 v4, v[14:15] offset:256")
    e.label(nx)


def max16(e, s, dst):
    e(f"v_max3_f32 v{dst}, v{s}, v{s+1}, v{s+2}")
    for r in range(3, 15, 2):
        e(f"v_max3_f32 v{dst}, v{dst}, v{s+r}, v{s+r+1}")
    e(f"v_max_f32 v{dst}, v{dst}, v{s+15}")


def set_m(e, m, q2):
    e(f"v_sub_f32 v{m}, 0, v{m}")
    e(f"v_cvt_pk_bf16_f32 v4, v{m}, v{m}")
    e("v_lshlrev_b32 v4, 16, v4")
    e(f"v_sub_f32 v5, v{m}, v4")
    e("v_cvt_pk_bf16_f32 v4, v4, v5")
    e(f"v_cmp_gt_u32 vcc, 32, v{V_LANE}")
    e("v_mov_b32 v5, 0")
    e(f"v_cndmask_b32 v{q2+1}, v5, v4, vcc")


def qk(e, s, q1, q2):
    e(f"v_mfma_f32_32x32x16_bf16 {vr(s,16)}, {vr(K1,4)}, {vr(q1,4)}, 0")
    e(f"v_mfma_f32_32x32x8_bf16 {vr(s,16)}, {vr(K2,2)}, {vr(q2,2)}, {vr(s,16)}")


def cross_half_max(e, v):
    e(f"v_mov_b32 v4, v{v}")
    e(f"v_permlane32_swap_b32 v4, v{v}")
    e(f"v_max_f32 v{v}, v{v}, v4")


def half(e, s_exp, p_out, s_new, q1, q2, o_acc, p_in, pre, mid_k, pre_pv, mid_v, extra=None):
    ex = lambda r: e(f"v_exp_f32 v{s_exp+r}, v{s_exp+r}")
    cv = lambda k: e(f"v_cvt_pk_bf16_f32 v{p_out+k}, v{s_exp+2*k}, v{s_exp+2*k+1}")

    def grp(g):
        for r in range(4 * g, 4 * g + 4):
            ex(r)
        cv(2 * g); cv(2 * g + 1)
        if extra:
            extra(g)
    if pre:
        e(pre)
    e(f"v_mfma_f32_32x32x16_bf16 {vr(s_new,16)}, {vr(K1,4)}, {vr(q1,4)}, 0")
    grp(0)
    e(f"v_mfma_f32_32x32x8_bf16 {vr(s_new,16)}, {vr(K2,2)}, {vr(q2,2)}, {vr(s_new,16)}")
    for x in mid_k:
        e(x)
    grp(1)
    if pre_pv:
        e(pre_pv)
    e(f"v_mfma_f32_32x32x16_bf16 {vr(o_acc,16)}, {vr(V0,4)}, {vr(p_in,4)}, {vr(o_acc,16)}")
    grp(2)
    e(f"v_mfma_f32_32x32x16_bf16 {vr(o_acc,16)}, {vr(V1,4)}, {vr(p_in+4,4)}, {vr(o_acc,16)}")
    for x in mid_v:
        e(x)
    grp(3)


VL16, VOA, VOB = 201, 202, 203
VXO, VXP = 252, 253
WO2R = 208
S_DM0, S_DKV, S_TWB, S_OST, S_OST2 = 84, 85, 86, 87, 88


def key_tile(e, t, xa=None, xb=None):
    nk = (t + 1) * 1024 if t < 3 else CHUNK
    nk2 = (t + 1) * 128 if t < 3 else CHUNK
    half(e, SA, PA_, SB, QB1, QB2, OB, PB_, None,
         [f"ds_read_b128 {vr(K1,4)}, v{AK1} offset:{nk}", f"ds_read_b32 v{K2}, v{AK2} offset:{nk2}"],
         None,
         [f"ds_read_b128 {vr(V0,4)}, v{AV} offset:{t*VT}", f"ds_read_b128 {vr(V1,4)}, v{AV} offset:{t*VT+608}"], xa)
    half(e, SB, PB_, SA, QA1, QA2, OA, PA_, "s_waitcnt lgkmcnt(2)", [], "s_waitcnt lgkmcnt(0)", [], xb)


def next_chunk(e):
    e(f"v_add_u32 v{AK1}, {CHUNK}, v{AK1}")
    e(f"v_add_u32 v{AK2}, {CHUNK}, v{AK2}")
    e(f"v_add_u32 v{AV}, {CHUNK}, v{AV}")


def attention_setup(e):
    e(f"v_lshlrev_b32 v{VL16}, 4, v{V_LANE}")
    e(f"s_lshl_b32 s{S_DM0}, s{S_WAVE}, 10")
    e(f"s_add_u32 s{S_DKV}, s{S_DM0}, s{S_KV}")
    e(f"s_lshr_b32 s51, s{S_WAVE}, 2")
    e("s_lshl_b32 s52, s51, 12")
    e(f"v_add_u32 v{AK1}, s52, v{VL16}")
    e("s_lshl_b32 s52, s51, 9")
    e(f"s_add_u32 s52, s52, {K2_OFF}")
    e(f"v_and_b32 v5, 31, v{V_LANE}")
    e(f"v_lshlrev_b32 v{AK2}, 2, v5")
    e(f"v_add_u32 v{AK2}, s52, v{AK2}")
    e(f"s_mul_i32 s52, s51, {4*VT}")
    e(f"s_add_u32 s52, s52, {V_OFF}")
    e("v_subrev_u32 v6, 16, v5")
    e("v_cmp_gt_u32 vcc, 19, v5")
    e("v_cndmask_b32 v6, v6, v5, vcc")
    e(f"v_lshrrev_b32 v7, 5, v{V_LANE}")
    e("v_mul_u32_u24 v7, 304, v7")
    e("v_lshl_add_u32 v7, v6, 4, v7")
    e(f"v_add_u32 v{AV}, s52, v7")
    e(f"v_mov_b32 v{K2+1}, 0x3f803f80")
    e(f"v_mov_b32 v{QA2+1}, 0")
    e(f"v_mov_b32 v{QB2+1}, 0")
    for r in range(16):
        e(f"v_mov_b32 v{OA+r}, 0")
        e(f"v_mov_b32 v{OB+r}, 0")
    for r in range(8):
        e(f"v_mov_b32 v{PB_+r}, 0")
        e(f"v_mov_b32 v{V0+r}, 0")
    e(f"s_mul_i32 s50, s{S_WAVE}, 3072")
    e(f"v_add_u32 v{VXO}, s50, v{VL16}")
    e(f"s_xor_b32 s50, s{S_WAVE}, 4")
    e("s_mul_i32 s50, s50, 3072")
    e(f"v_add_u32 v{VXP}, s50, v{VL16}")
    e(f"s_and_b32 s52, s{S_WAVE}, 3")
    e(f"s_mul_i32 s53, s{S_QB}, 36864")
    e(f"s_add_u32 s53, s53, s{S_OB}")
    e(f"v_bfe_u32 v4, v{V_LANE}, 4, 1")
    e("v_mul_u32_u24 v4, 18432, v4")
    e(f"v_lshl_add_u32 v{VOA}, v{V_R16}, 4, v4")
    e(f"v_lshrrev_b32 v5, 5, v{V_LANE}")
    e(f"v_lshl_add_u32 v{VOB}, v5, 8, v{VOA}")
    e(f"s_lshl_b32 s54, s{S_HG}, 2")
    e("s_add_u32 s54, s54, s52")
    e("s_lshl_b32 s54, s54, 10")
    e("s_lshl_b32 s55, s51, 9")
    e("s_add_u32 s54, s54, s55")
    e(f"s_add_u32 s{S_OST}, s54, s53")
    e(f"s_lshl_b32 s54, s{S_HG}, 3")
    e("s_lshl_b32 s55, s52, 1")
    e("s_add_u32 s54, s54, s55")
    e("s_add_u32 s54, s54, s51")
    e("s_lshr_b32 s55, s54, 4")
    e("s_add_u32 s55, s55, 16")
    e("s_lshl_b32 s55, s55, 10")
    e("s_bfe_u32 s56, s54, 0x20002")
    e("s_lshl_b32 s56, s56, 8")
    e("s_add_u32 s55, s55, s56")
    e("s_and_b32 s56, s54, 3")
    e("s_lshl_b32 s56, s56, 2")
    e("s_add_u32 s55, s55, s56")
    e(f"s_add_u32 s{S_OST2}, s55, s53")
    l1, ld = e.L("as_l1"), e.L("as_ld")
    e(f"s_mul_i32 s{S_TWB}, s{S_HG}, 9")
    e(f"s_add_u32 s{S_TWB}, s{S_TWB}, s{S_WAVE}")
    e(f"s_mul_i32 s{S_TWB}, s{S_TWB}, 18432")
    e(f"s_cmp_lg_u32 s{S_LAYER}, 0")
    e(f"s_cbranch_scc1 {l1}")
    e.make_srd(SRD_B, S_WS, WS_END)
    e(f"s_add_u32 s89, s{S_TWB}, {WOF}")
    e(f"s_branch {ld}")
    e.label(l1)
    e.make_srd(SRD_B, S_FI, 36 * 18432)
    e(f"s_mov_b32 s89, s{S_TWB}")
    e.label(ld)


def kv_round(e, m):
    skip = None
    if m == 18:
        skip = e.L("kvd")
        e(f"s_cmp_ge_u32 s{S_WAVE}, 4")
        e(f"s_cbranch_scc1 {skip}")
    e(f"s_add_u32 m0, s{S_DM0}, {m * 8192}")
    e(f"s_add_u32 s50, s{S_DKV}, {m * 8192}")
    e(f"buffer_load_dwordx4 v{VL16}, {srd(SRD_WS)}, s50 offen sc1 lds")
    if skip:
        e.label(skip)


def attention(e):
    mainl = e.L("attn_main")
    for m in range(3):
        kv_round(e, m)
    e(f"v_and_b32 v5, 31, v{V_LANE}")
    e("s_waitcnt vmcnt(0)")
    e("s_barrier")
    e.stamp("kv loaded")
    fbmax, haveM = e.L("fbmax"), e.L("haveM")
    e(f"s_cmp_lg_u32 s{S_FB}, 0")
    e(f"s_cbranch_scc1 {fbmax}")
    e(f"v_lshlrev_b32 v8, 4, v{V_LANE}")
    e("v_lshlrev_b32 v9, 2, v5")
    e(f"ds_read_b128 {vr(K1,4)}, v8")
    e(f"ds_read_b32 v{K2}, v9 offset:{K2_OFF}")
    e("s_waitcnt lgkmcnt(0)")
    qk(e, SA, QA1, QA2)
    qk(e, SB, QB1, QB2)
    max16(e, SA, 10)
    max16(e, SB, 11)
    cross_half_max(e, 10)
    cross_half_max(e, 11)
    e(f"s_branch {haveM}")
    e.label(fbmax)
    for m in range(3, 19):
        kv_round(e, m)
    e("s_waitcnt vmcnt(0)")
    e("s_barrier")
    fl = e.L("fbloop")
    e("v_mov_b32 v10, 0xff800000")
    e("v_mov_b32 v11, 0xff800000")
    e(f"v_mov_b32 v8, v{AK1}")
    e(f"v_mov_b32 v9, v{AK2}")
    e("s_mov_b32 s52, 0")
    e.label(fl)
    for t in range(4):
        e(f"ds_read_b128 {vr(K1,4)}, v8 offset:{t*1024}")
        e(f"ds_read_b32 v{K2}, v9 offset:{t*128}")
        e("s_waitcnt lgkmcnt(0)")
        qk(e, SA, QA1, QA2)
        qk(e, SB, QB1, QB2)
        max16(e, SA, 12)
        max16(e, SB, 13)
        e("v_max_f32 v10, v10, v12")
        e("v_max_f32 v11, v11, v13")
    e(f"v_add_u32 v8, {CHUNK}, v8")
    e(f"v_add_u32 v9, {CHUNK}, v9")
    e("s_add_u32 s52, s52, 1")
    e("s_cmp_lt_u32 s52, 8")
    e(f"s_cbranch_scc1 {fl}")
    cross_half_max(e, 10)
    cross_half_max(e, 11)
    e(f"s_lshl_b32 s52, s{S_WAVE}, 9")
    e(f"s_add_u32 s52, s52, {L_QL}")
    e(f"v_lshlrev_b32 v8, 3, v{V_LANE}")
    e("v_add_u32 v9, s52, v8")
    e("ds_write_b64 v9, v[10:11]")
    e("s_waitcnt lgkmcnt(0)")
    e("s_barrier")
    e(f"s_xor_b32 s52, s{S_WAVE}, 4")
    e("s_lshl_b32 s52, s52, 9")
    e(f"s_add_u32 s52, s52, {L_QL}")
    e("v_add_u32 v9, s52, v8")
    e("ds_read_b64 v[12:13], v9")
    e("s_waitcnt lgkmcnt(0)")
    e("v_max_f32 v10, v10, v12")
    e("v_max_f32 v11, v11, v13")
    e.label(haveM)
    set_m(e, 10, QA2)
    set_m(e, 11, QB2)
    e(f"ds_read_b128 {vr(K1,4)}, v{AK1}")
    e(f"ds_read_b32 v{K2}, v{AK2}")
    e("s_waitcnt lgkmcnt(0)")
    qk(e, SA, QA1, QA2)
    e.cyc_begin()
    e("s_nop 12")
    key_tile(e, 0, lambda g: kv_round(e, 3 + g), lambda g: kv_round(e, 7 + g))
    key_tile(e, 1, lambda g: kv_round(e, 11 + g), lambda g: kv_round(e, 15 + g))

    def wo2(ks):
        if ks >= 11:
            return
        sk = e.L("wo2h")
        e(f"s_cmp_eq_u32 s{S_LAYER}, 0")
        e(f"s_cbranch_scc1 {sk}")
        e(f"s_add_u32 s50, s{S_TWB}, {WO2 + ks * 1024}")
        e(f"buffer_load_dwordx4 {vr(WO2R + 4*ks, 4)}, v{VL16}, {srd(SRD_WS)}, s50 offen sc1")
        e.label(sk)
    key_tile(e, 2, lambda g: (wo2(g), wo2(8 + g)), lambda g: wo2(4 + g))
    w1, wd = e.L("kvw1"), e.L("kvwd")
    e(f"s_cmp_lg_u32 s{S_LAYER}, 0")
    e(f"s_cbranch_scc1 {w1}")
    e("s_waitcnt vmcnt(0)")
    e(f"s_branch {wd}")
    e.label(w1)
    e("s_waitcnt vmcnt(11)")
    e.label(wd)
    e("s_barrier")

    def twl(ks):
        if ks < 18:
            e(f"s_add_u32 s50, s89, {ks * 1024}")
            e(f"buffer_load_dwordx4 {vr(G_A + 4*ks, 4)}, v{VL16}, {srd(SRD_B)}, s50 offen sc1")
    key_tile(e, 3, lambda g: (twl(g), twl(8 + g), twl(16 + g) if g < 2 else None), lambda g: twl(4 + g) or twl(12 + g))
    next_chunk(e)
    e("s_mov_b32 s52, 1")
    e(".p2align 6")
    e.label(mainl)
    for t in range(4):
        key_tile(e, t)
    next_chunk(e)
    e("s_add_u32 s52, s52, 1")
    e("s_cmp_lt_u32 s52, 8")
    e(f"s_cbranch_scc1 {mainl}")
    e(f"v_mfma_f32_32x32x16_bf16 {vr(OB,16)}, {vr(V0,4)}, {vr(PB_,4)}, {vr(OB,16)}")
    e(f"v_mfma_f32_32x32x16_bf16 {vr(OB,16)}, {vr(V1,4)}, {vr(PB_+4,4)}, {vr(OB,16)}")
    e.cyc_end(0)
    e.stamp("attn loop")
    nofl = e.L("nofl")
    e("s_mov_b32 s53, 0x5d000000")
    e(f"v_cmp_nlt_f32 vcc, v{OA+10}, s53")
    e(f"v_cmp_nlt_f32 s[54:55], v{OB+10}, s53")
    e("s_or_b64 vcc, vcc, s[54:55]")
    e("s_cmp_eq_u32 vcc_lo, 0")
    e(f"s_cbranch_scc1 {nofl}")
    e(f"v_mov_b32 v4, {L_FLAG}")
    e("v_mov_b32 v5, 1")
    e("ds_write_b32 v4, v5")
    e.label(nofl)
    e("s_waitcnt lgkmcnt(0)")
    e("s_barrier")
    e(f"v_mov_b32 v7, {L_FLAG}")
    e("ds_read_b32 v8, v7")
    g1, gd = e.L("give1"), e.L("gived")
    e(f"s_cmp_ge_u32 s{S_WAVE}, 4")
    e(f"s_cbranch_scc1 {g1}")
    for q in range(3):
        e(f"ds_write_b128 v{VXO}, {vr(OB+4*q,4)} offset:{L_OX + q*1024}")
    e(f"s_branch {gd}")
    e.label(g1)
    for q in range(3):
        e(f"ds_write_b128 v{VXO}, {vr(OA+4*q,4)} offset:{L_OX + q*1024}")
    for r in range(12):
        e(f"v_mov_b32 v{OA+r}, v{OB+r}")
    e.label(gd)
    e("s_waitcnt lgkmcnt(0)")
    e(f"v_readfirstlane_b32 s50, v8")
    e("s_barrier")
    fbgo = e.L("fbgo")
    e(f"s_cmp_lg_u32 s{S_FB}, 0")
    e(f"s_cbranch_scc1 {fbgo}")
    e("s_cmp_eq_u32 s50, 0")
    e(f"s_cbranch_scc1 {fbgo}")
    e(f"s_mov_b32 s{S_FB}, 1")
    e("s_branch L_redo")
    e.label(fbgo)
    for q in range(3):
        e(f"ds_read_b128 {vr(16+4*q,4)}, v{VXP} offset:{L_OX + q*1024}")
    e("s_waitcnt lgkmcnt(0)")
    for r in range(11):
        e(f"v_add_f32 v{OA+r}, v{OA+r}, v{16+r}")
    e(f"v_mov_b32 v8, v{OA+10}")
    e(f"v_permlane32_swap_b32 v8, v{OA+10}")
    e("v_rcp_f32 v8, v8")
    for r in range(10):
        e(f"v_mul_f32 v{OA+r}, v{OA+r}, v8")
    for k in range(5):
        e(f"v_cvt_pk_bf16_f32 v{16+k}, v{OA+2*k}, v{OA+2*k+1}")
    e(f"buffer_store_dwordx4 v[16:19], v{VOB}, {srd(SRD_WS)}, s{S_OST} offen sc1")
    e("s_mov_b32 exec_hi, 0")
    e(f"buffer_store_dword v20, v{VOA}, {srd(SRD_WS)}, s{S_OST2} offen sc1")
    e("s_mov_b64 exec, -1")


def tail_weights(e, extra, vtmp):
    l1, done = e.L("tw_l1"), e.L("tw_done")
    dst = G_AX if extra else G_A
    if extra:
        e(f"s_cmp_ge_u32 s{S_WAVE}, 2")
        e(f"s_cbranch_scc1 {done}")
    e(f"v_lshlrev_b32 v{vtmp}, 4, v{V_LANE}")
    e(f"s_mul_i32 s59, s{S_HG}, 9")
    if extra:
        e("s_add_u32 s57, s59, 8")
    else:
        e(f"s_add_u32 s57, s59, s{S_WAVE}")
    e("s_mul_i32 s57, s57, 18432")
    e(f"s_cmp_lg_u32 s{S_LAYER}, 0")
    e(f"s_cbranch_scc1 {l1}")
    e(f"s_add_u32 s57, s57, {WOF}")
    e.load_a_frags(SRD_WS, 57, dst, flags="sc1", vlane16=vtmp)
    e(f"s_branch {done}")
    e.label(l1)
    e.make_srd(SRD_T, S_FI, 36 * 18432)
    e.load_a_frags(SRD_T, 57, dst, vlane16=vtmp)
    e.label(done)


def frag_bases(e):
    e(f"s_and_b32 s50, s{S_WAVE}, 1")
    e("s_mul_i32 s50, s50, 18432")
    e(f"v_lshlrev_b32 v56, 4, v{V_LANE}")
    e("v_add_u32 v57, 18432, v56")
    e("v_subrev_u32 v57, s50, v57")
    e("v_add_u32 v56, s50, v56")


def p4(e):
    e(f"v_lshlrev_b32 v60, 4, v{V_LANE}")
    tile_dma(e, S_OB, 0, 60)
    for t in range(3):
        a = G_ACC + 4 * t
        e(f"v_lshlrev_b32 v{a}, 16, v{RES+2*t}")
        e(f"v_and_b32 v{a+1}, 0xffff0000, v{RES+2*t}")
        e(f"v_lshlrev_b32 v{a+2}, 16, v{RES+2*t+1}")
        e(f"v_and_b32 v{a+3}, 0xffff0000, v{RES+2*t+1}")
    frag_bases(e)
    e("s_waitcnt vmcnt(0)")
    e("s_barrier")
    e.stamp("p4 loaded")
    e.g144_both("frag", 56, 57, zero_init=False)
    e.stamp("p4 gemm")


L_X3 = 40960


def p8_pre(e):
    e(f"v_lshlrev_b32 v60, 4, v{V_LANE}")
    tile_dma(e, S_XIN, L_X3, 60)
    lo, done = e.L("p8p_lo"), e.L("p8p_done")
    e(f"s_cmp_lt_u32 s{S_WAVE}, 2")
    e(f"s_cbranch_scc1 {lo}")
    for ks in range(11, 18):
        e(f"s_add_u32 s50, s{S_TWB}, {WO2 + ks * 1024}")
        e(f"buffer_load_dwordx4 {vr(136 + 4*(ks-11), 4)}, v60, {srd(SRD_WS)}, s50 offen sc1")
    e(f"s_branch {done}")
    e.label(lo)
    e(f"s_mul_i32 s57, s{S_HG}, 9")
    e("s_add_u32 s57, s57, 8")
    e("s_mul_i32 s57, s57, 18432")
    e.make_srd(SRD_T, S_FI, 36 * 18432)
    e.load_a_frags(SRD_T, 57, G_AX, vlane16=60)
    e.label(done)


def p8(e):
    e(f"v_lshlrev_b32 v60, 4, v{V_LANE}")
    tile_dma(e, S_OB, 0, 60)
    xtile_bases(e, 58, 59, L_X3)
    e(f"s_mul_i32 s58, s{S_HG}, 9")
    e("s_add_u32 s58, s58, 8")
    e("s_mul_i32 s58, s58, 18432")
    e(f"s_add_u32 s58, s58, {WO2}")
    e(f"s_add_u32 s59, s{S_TWB}, {WO2}")
    noex, fin = e.L("p8_noex"), e.L("p8_fin")

    def round_acc(n):
        for t in range(n):
            a = G_ACC + 4 * t
            e(f"v_cvt_pk_bf16_f32 v52, v{a}, v{a+1}")
            e(f"v_cvt_pk_bf16_f32 v53, v{a+2}, v{a+3}")
            e(f"v_lshlrev_b32 v{a}, 16, v52")
            e(f"v_and_b32 v{a+1}, 0xffff0000, v52")
            e(f"v_lshlrev_b32 v{a+2}, 16, v53")
            e(f"v_and_b32 v{a+3}, 0xffff0000, v53")

    def wo_stream(ks):
        e(f"s_add_u32 s50, s58, {ks*1024}")
        e(f"buffer_load_dwordx4 {vr(G_AX+4*ks,4)}, v60, {srd(SRD_WS)}, s50 offen sc1")
        if ks < 7:
            e(f"s_add_u32 s50, s59, {(11+ks)*1024}")
            e(f"buffer_load_dwordx4 {vr(G_A+4*ks,4)}, v60, {srd(SRD_WS)}, s50 offen sc1")
    e(f"s_cmp_ge_u32 s{S_WAVE}, 2")
    e(f"s_cbranch_scc1 {noex}")
    e("s_waitcnt vmcnt(4)")
    e("s_barrier")
    e.stamp("x3 loaded")
    e.g144("x", 58, 59, True, wo_stream)
    round_acc(3)
    frag_bases(e)
    e("s_waitcnt vmcnt(25)")
    e("s_barrier")
    e.g144("frag", 56, 57, True, zero_init=False, vm_fn=lambda ks, ex: 24 - 2*ks if ks <= 6 else 17 - ks,
           a_main=lambda ks: WO2R + 4*ks if ks < 11 else G_A + 4*(ks-11))
    e(f"s_branch {fin}")
    e.label(noex)
    e("s_waitcnt vmcnt(11)")
    e("s_barrier")
    e.stamp("x3 loaded")
    e.g144("x", 58, 59, False)
    round_acc(2)
    frag_bases(e)
    e("s_waitcnt vmcnt(0)")
    e("s_barrier")
    e.g144("frag", 56, 57, False, zero_init=False, a_main=lambda ks: WO2R + 4*ks if ks < 11 else 136 + 4*(ks-11))
    e.label(fin)
    e.stamp("p4 gemm")


def out_epilogue(e):
    accA, accB, accX = G_ACC, G_ACC + 4, G_ACC + 8
    e.make_srd(SRD_A, S_OUT, XBYTES)
    e(f"s_and_b32 s50, s{S_WAVE}, 1")
    e("s_lshl_b32 s51, s50, 4")
    e(f"s_lshl_b32 s52, s{S_QB}, 5")
    e("s_add_u32 s51, s51, s52")
    e(f"v_add_u32 v4, s51, v{V_R16}")
    e("v_xor_b32 v5, 16, v4")
    e("v_mul_u32_u24 v4, 1152, v4")
    e("v_mul_u32_u24 v5, 1152, v5")
    e(f"v_lshl_add_u32 v4, v{V_GQ}, 3, v4")
    e(f"v_lshl_add_u32 v5, v{V_GQ}, 3, v5")
    e(f"s_mul_i32 s53, s{S_HG}, 288")
    e(f"s_lshl_b32 s54, s{S_WAVE}, 5")
    e("s_add_u32 s54, s54, s53")
    e("s_add_u32 s55, s53, 256")
    e(f"v_cvt_pk_bf16_f32 v10, v{accA}, v{accA+1}")
    e(f"v_cvt_pk_bf16_f32 v11, v{accA+2}, v{accA+3}")
    e(f"buffer_store_dwordx2 v[10:11], v4, {srd(SRD_A)}, s54 offen")
    e(f"v_cvt_pk_bf16_f32 v12, v{accB}, v{accB+1}")
    e(f"v_cvt_pk_bf16_f32 v13, v{accB+2}, v{accB+3}")
    e(f"buffer_store_dwordx2 v[12:13], v5, {srd(SRD_A)}, s54 offen")
    nx = e.L("oe_nx")
    e(f"s_cmp_ge_u32 s{S_WAVE}, 2")
    e(f"s_cbranch_scc1 {nx}")
    e(f"v_cvt_pk_bf16_f32 v14, v{accX}, v{accX+1}")
    e(f"v_cvt_pk_bf16_f32 v15, v{accX+2}, v{accX+3}")
    e(f"buffer_store_dwordx2 v[14:15], v4, {srd(SRD_A)}, s55 offen")
    e.label(nx)
```

```python
from asmlib import Prog
from layout import *

S_AX, S_WR, S_WI = 4, 6, 8
S_WQ, S_WK, S_WV, S_WO = 12, 14, 16, 18
S_OUT, S_DBG, S_WS = 20, 22, 24
S_WAVE, S_QB = 26, 27
SRD_WS, SRD_A, SRD_B, SRD_T = 28, 32, 36, 40
S_HG, S_LAYER, S_GT, S_GRP = 44, 45, 46, 47
S_T = 48
S_FT, S_FI, S_TW = 66, 68, 70
S_X = 72

V_TID, V_LANE, V_R16, V_GQ = 0, 1, 2, 3

G_A = 64
G_AX = 136
G_B = 16
G_ACC = 40

SPIN_LIMIT = 60000


def srd(r):
    return f"s[{r}:{r+3}]"


def sp(r):
    return f"s[{r}:{r+1}]"


def vr(r, n=1):
    return f"v{r}" if n == 1 else f"v[{r}:{r+n-1}]"


class Gen(Prog):
    def __init__(self):
        super().__init__()
        self.uid = 0

    profile = False
    codepf = True
    nstamp = 0

    def stamp(self, name=""):
        if self.dbgprof:
            return self.dbg_stamp(name)
        if not self.profile:
            return
        names = self.__dict__.setdefault("stamp_names", [])
        if name in names and name in ("p4 gemm", "bar3", "po staged", "x3 loaded"):
            k = names.index(name)
        else:
            k = self.nstamp
            self.nstamp += 1
            names.append(name)
        assert k < 30
        self("s_memrealtime s[96:97]")
        if name == "start":
            self("v_mov_b32 v255, -1")
        self(f"s_lshl_b32 s98, s{S_LAYER}, 5")
        self(f"s_add_u32 m0, s98, {k}")
        self("s_waitcnt lgkmcnt(0)")
        self("v_writelane_b32 v255, s96, m0")

    dbgprof = None

    def dbg_stamp(self, name):
        cnt = self.__dict__.setdefault("dbg_seen", {})
        cnt[name] = cnt.get(name, 0) + 1
        slots = [(i, l) for i, (n, occ, l) in enumerate(self.dbgprof) if n == name and occ == cnt[name]]
        if name == "start":
            slots = [(-1, 0)]
        for i, layer in slots:
            e = self
            sk = e.L("dst")
            e(f"s_or_b32 s92, s{S_WAVE}, s2")
            e("s_cmp_lg_u32 s92, 0")
            e(f"s_cbranch_scc1 {sk}")
            e(f"s_cmp_lg_u32 s{S_LAYER}, {layer}")
            e(f"s_cbranch_scc1 {sk}")
            e("s_memrealtime s[96:97]")
            e(f"s_mov_b32 s92, s{S_DBG}")
            e(f"s_mov_b32 s93, s{S_DBG+1}")
            e("s_mov_b32 s94, 256")
            e("s_mov_b32 s95, 0x20000")
            e("s_waitcnt lgkmcnt(0)")
            if i < 0:
                e("s_not_b32 s96, s96")
            e("v_mov_b32 v255, s96")
            e("v_mov_b32 v254, 0")
            e("s_mov_b64 exec, 1")
            e(f"buffer_store_dword v255, v254, s[92:95], 0 offen offset:{4*(i+2)}")
            e("s_mov_b64 exec, -1")
            e.label(sk)

    def cyc_begin(self):
        if self.profile:
            self("s_memtime s[92:93]")
            self("s_memrealtime s[94:95]")
            self("s_waitcnt lgkmcnt(0)")

    def cyc_end(self, slot):
        if not self.profile:
            return
        e = self
        e("s_memtime s[96:97]")
        e("s_memrealtime s[98:99]")
        e("s_waitcnt lgkmcnt(0)")
        e("s_sub_u32 s96, s96, s92")
        e("s_sub_u32 s98, s98, s94")
        e(f"s_lshl_b32 s97, s{S_LAYER}, 5")
        e("s_add_u32 m0, s97, 30")
        e("v_writelane_b32 v255, s96, m0")
        e("s_add_u32 m0, s97, 31")
        e("v_writelane_b32 v255, s98, m0")

    def dump_stamps(self):
        self.stamp("end")
        if self.profile:
            e = self
            e("s_lshl_b32 s96, s2, 3")
            e(f"s_add_u32 s96, s96, s{S_WAVE}")
            e("s_lshl_b32 s96, s96, 8")
            e(f"s_add_u32 s96, s96, {PROF}")
            e(f"v_lshlrev_b32 v4, 2, v{V_LANE}")
            e(f"buffer_store_dword v255, v4, {srd(SRD_WS)}, s96 offen")

    def L(self, base):
        self.uid += 1
        return f"L_{base}_{self.uid}"

    def sel(self, dst, a, b):
        self(f"s_mov_b32 s{dst}, {b}")
        self(f"s_cselect_b32 s{dst}, {a}, s{dst}")

    def make_srd(self, r, base, size):
        self(f"s_mov_b32 s{r}, s{base}")
        self(f"s_mov_b32 s{r+1}, s{base+1}")
        self(f"s_mov_b32 s{r+2}, {size}")
        self(f"s_mov_b32 s{r+3}, 0x20000")

    def prologue(self):
        e = self
        e.label("L_code_begin")
        e("s_cmp_ge_u32 s2, 256")
        e("s_cbranch_scc1 L_end")
        e("s_getpc_b64 s[36:37]")
        e("s_and_b32 s36, s36, 0xffffff00")
        e("s_mov_b32 s38, L_code_end-L_code_begin")
        e("s_mov_b32 s39, 0x20000")
        e("s_lshr_b32 s3, s2, 3")
        e("s_lshl_b32 s3, s3, 11")
        e("v_lshlrev_b32 v4, 2, v0")
        e("v_add_u32 v4, s3, v4")
        if self.codepf: e("buffer_load_dword v253, v4, s[36:39], 0 offen")
        e("s_load_dwordx4 s[4:7], s[0:1], 0")
        e("s_load_dwordx2 s[8:9], s[0:1], 16")
        e("s_load_dwordx8 s[12:19], s[0:1], 32")
        e("s_load_dwordx4 s[20:23], s[0:1], 64")
        e("s_load_dwordx2 s[24:25], s[0:1], 80")
        e(f"v_and_b32 v{V_LANE}, 63, v0")
        e("v_lshrrev_b32 v4, 6, v0")
        e(f"v_and_b32 v{V_R16}, 15, v0")
        e(f"v_lshrrev_b32 v{V_GQ}, 4, v{V_LANE}")
        e(f"v_readfirstlane_b32 s{S_WAVE}, v4")
        e("s_and_b32 s48, s2, 7")
        e("s_lshr_b32 s49, s2, 3")
        e("s_lshl_b32 s48, s48, 3")
        e("s_lshr_b32 s50, s49, 2")
        e(f"s_add_u32 s{S_QB}, s48, s50")
        e(f"s_and_b32 s{S_HG}, s49, 3")
        e(f"s_mov_b32 s{S_LAYER}, 0")
        for reg, sym in ((S_FT, "TAB_FT"), (S_FI, "TAB_FI"), (S_TW, "TAB_TW")):
            e(f"s_getpc_b64 {sp(reg)}")
            e(f"s_add_u32 s{reg}, s{reg}, {sym}@rel32@lo+4")
            e(f"s_addc_u32 s{reg+1}, s{reg+1}, {sym}@rel32@hi+12")
        e("s_waitcnt lgkmcnt(0)")
        self.make_srd(SRD_WS, S_WS, WS_END)

    def bar_offset(self, k, per_layer, group, dst):
        e = self
        if group:
            e(f"s_lshl_b32 s{dst}, s{S_LAYER}, 14")
            e(f"s_lshl_b32 s49, s{S_QB}, 8")
            e(f"s_add_u32 s{dst}, s{dst}, s49")
            e(f"s_add_u32 s{dst}, s{dst}, {CNT + CNT_GROUP}")
        elif per_layer:
            e(f"s_mul_i32 s{dst}, s{S_LAYER}, {3*BAR_BYTES}")
            e(f"s_add_u32 s{dst}, s{dst}, {CNT + k*BAR_BYTES}")
        else:
            e(f"s_mov_b32 s{dst}, {CNT + k*BAR_BYTES}")

    def signal(self, k=0, per_layer=False, group=False):
        e = self
        self.bar_offset(k, per_layer, group, 48)
        if not group:
            e(f"s_and_b32 s49, s2, {NSHARD-1}")
            e("s_lshl_b32 s49, s49, 8")
            e("s_add_u32 s48, s48, s49")
        e("v_mov_b32 v4, s48")
        e("v_mov_b32 v5, 1")
        e("s_mov_b64 exec, 1")
        e(f"buffer_atomic_add v5, v4, {srd(SRD_WS)}, 0 offen sc1")
        e("s_mov_b64 exec, -1")

    def arrive(self, k=0, per_layer=False, group=False, go_check=False):
        e = self
        e("s_waitcnt vmcnt(0) lgkmcnt(0)")
        e("s_barrier")
        e.stamp("drained" if not group else "drained g")
        skip = e.L("arr")
        e(f"s_cmp_lg_u32 s{S_WAVE}, 0")
        e(f"s_cbranch_scc1 {skip}")
        if go_check:
            lp, ok = e.L("go"), e.L("gook")
            e("v_readfirstlane_b32 s48, v252")
            e("s_cmp_lg_u32 s48, 0")
            e(f"s_cbranch_scc1 {ok}")
            self.make_srd(SRD_A, S_DBG, 256)
            e("v_mov_b32 v4, 0")
            e("s_mov_b32 s48, 0")
            e.label(lp)
            e(f"buffer_load_dword v5, v4, {srd(SRD_A)}, 0 offen sc1")
            e("s_waitcnt vmcnt(0)")
            e("v_cmp_eq_u32 vcc, 0, v5")
            e("s_add_u32 s48, s48, 1")
            e(f"s_cmp_gt_u32 s48, {SPIN_LIMIT}")
            e(f"s_cbranch_scc1 {ok}")
            e(f"s_cbranch_vccz {ok}")
            e("s_sleep 1")
            e(f"s_branch {lp}")
            e.label(ok)
        self.signal(k, per_layer, group)
        e.label(skip)

    def signal_word(self, off):
        e = self
        e(f"v_mov_b32 v4, {off}")
        e("v_mov_b32 v5, 1")
        e("s_mov_b64 exec, 1")
        e(f"buffer_atomic_add v5, v4, {srd(SRD_WS)}, 0 offen sc1")
        e("s_mov_b64 exec, -1")

    def wait(self, k=0, per_layer=False, group=False, target=None, word=None, first_sleep=10, poller=7):
        e = self
        done, lp = e.L("wdone"), e.L("poll")
        e(f"s_cmp_lg_u32 s{S_WAVE}, {poller}")
        e(f"s_cbranch_scc1 {done}")
        if word is not None:
            e(f"v_mov_b32 v4, {word}")
        else:
            self.bar_offset(k, per_layer, group, 48)
            if group:
                e("v_mov_b32 v4, s48")
            else:
                e(f"v_and_b32 v4, {NSHARD-1}, v{V_LANE}")
                e("v_lshlrev_b32 v4, 8, v4")
                e("v_add_u32 v4, s48, v4")
        if target is None:
            target = 4 if group else 256 // NSHARD
        e("s_mov_b32 s48, 0")
        e("s_setprio 3")
        if first_sleep:
            e(f"s_sleep {first_sleep}")
        e.label(lp)
        e(f"buffer_load_dword v5, v4, {srd(SRD_WS)}, 0 offen sc1")
        e("s_waitcnt vmcnt(0)")
        e(f"v_cmp_gt_u32 vcc, {target}, v5")
        e("s_add_u32 s48, s48, 1")
        e(f"s_cmp_gt_u32 s48, {SPIN_LIMIT}")
        e(f"s_cbranch_scc1 {done}")
        e(f"s_cbranch_vccz {done}")
        e("s_sleep 2")
        e(f"s_branch {lp}")
        e.label(done)
        e("s_setprio 0")
        e("s_barrier")

    def load_a_frags(self, srdreg, s_tile_base, dst, ksteps=range(18), flags="", vlane16=None):
        e = self
        cur = None
        for ks in ksteps:
            hi = ks // 4
            if hi != cur:
                e(f"s_add_u32 s49, s{s_tile_base}, {hi * 4096}")
                cur = hi
            off = (ks % 4) * 1024
            o = f" offset:{off}" if off else ""
            e(f"buffer_load_dwordx4 {vr(dst + 4*ks, 4)}, v{vlane16}, {srd(srdreg)}, s49 offen{o} {flags}".rstrip())

    def g144(self, bmode, vbA, vbB, extra, after_step=None, zero_init=True, vm_fn=None, a_main=None):
        e = self
        accA, accB, accX = G_ACC, G_ACC + 4, G_ACC + 8

        def rd(ks):
            b = G_B + 8 * (ks % 3)
            if bmode == "frag":
                e(f"ds_read_b128 {vr(b,4)}, v{vbA} offset:{ks*1024}")
                e(f"ds_read_b128 {vr(b+4,4)}, v{vbB} offset:{ks*1024}")
                return 2
            e(f"ds_read_b64 {vr(b,2)}, v{vbA} offset:{ks*2048}")
            e(f"ds_read_b64 {vr(b+2,2)}, v{vbA} offset:{ks*2048+256}")
            e(f"ds_read_b64 {vr(b+4,2)}, v{vbB} offset:{ks*2048}")
            e(f"ds_read_b64 {vr(b+6,2)}, v{vbB} offset:{ks*2048+256}")
            return 4
        per = 2 if bmode == "frag" else 4
        rd(0)
        rd(1)
        for ks in range(18):
            if ks + 2 < 18:
                rd(ks + 2)
            left = min(2, 17 - ks) * per
            if vm_fn is not None:
                e(f"s_waitcnt vmcnt({vm_fn(ks, extra)}) lgkmcnt({left})")
            else:
                e(f"s_waitcnt lgkmcnt({left})")
            b = G_B + 8 * (ks % 3)
            a = a_main(ks) if a_main else G_A + 4 * ks
            cA = "0" if (ks == 0 and zero_init) else vr(accA, 4)
            cB = "0" if (ks == 0 and zero_init) else vr(accB, 4)
            cX = "0" if (ks == 0 and zero_init) else vr(accX, 4)
            e(f"v_mfma_f32_16x16x32_bf16 {vr(accA,4)}, {vr(a,4)}, {vr(b,4)}, {cA}")
            e(f"v_mfma_f32_16x16x32_bf16 {vr(accB,4)}, {vr(a,4)}, {vr(b+4,4)}, {cB}")
            if extra:
                e(f"v_mfma_f32_16x16x32_bf16 {vr(accX,4)}, {vr(G_AX+4*ks,4)}, {vr(b,4)}, {cX}")
            if after_step:
                after_step(ks)

    def g144_both(self, bmode, vbA, vbB, after_step=None, zero_init=True, vm_fn=None):
        e = self
        noex, done = e.L("g_noex"), e.L("g_done")
        e(f"s_cmp_ge_u32 s{S_WAVE}, 2")
        e(f"s_cbranch_scc1 {noex}")
        self.g144(bmode, vbA, vbB, True, after_step, zero_init, vm_fn)
        e(f"s_branch {done}")
        e.label(noex)
        self.g144(bmode, vbA, vbB, False, after_step, zero_init, vm_fn)
        e.label(done)

    def sum_over_gq(self, v, t):
        e = self
        e(f"v_mov_b32 v{t}, v{v}")
        e(f"v_permlane16_swap_b32 v{t}, v{v}")
        e(f"v_add_f32 v{v}, v{v}, v{t}")
        e(f"v_mov_b32 v{t}, v{v}")
        e(f"v_permlane32_swap_b32 v{t}, v{v}")
        e(f"v_add_f32 v{v}, v{v}, v{t}")

    def bf16_round(self, v, t):
        e = self
        e(f"v_cvt_pk_bf16_f32 v{t}, v{v}, v{v}")
        e(f"v_lshlrev_b32 v{v}, 16, v{t}")

    def inv_sigma(self, v, t, scale=None):
        e = self
        e(f"v_mul_f32 v{v}, 0x3ae38e39, v{v}")
        self.bf16_round(v, t)
        e(f"v_add_f32 v{v}, 0x3727c5ac, v{v}")
        self.bf16_round(v, t)
        e(f"v_sqrt_f32 v{v}, v{v}")
        self.bf16_round(v, t)
        e(f"v_rcp_f32 v{v}, v{v}")
        if scale is not None:
            e(f"v_mul_f32 v{v}, {scale}, v{v}")

    def xhat_epilogue(self, s_xdst, s_part, pre_store=None):
        e = self
        accA, accB, accX = G_ACC, G_ACC + 4, G_ACC + 8
        e(f"s_mul_i32 s50, s{S_QB}, 144")
        e(f"s_mul_i32 s51, s{S_HG}, 36")
        e("s_add_u32 s50, s50, s51")
        e(f"s_lshl_b32 s51, s{S_WAVE}, 2")
        e("s_add_u32 s51, s51, s50")
        e("s_lshl_b32 s51, s51, 8")
        e(f"s_add_u32 s51, s51, s{s_xdst}")
        e("s_add_u32 s52, s50, 32")
        e("s_lshl_b32 s52, s52, 8")
        e(f"s_add_u32 s52, s52, s{s_xdst}")
        e(f"s_and_b32 s53, s{S_WAVE}, 1")
        e(f"v_lshrrev_b32 v4, 1, v{V_GQ}")
        e(f"v_xor_b32 v5, s53, v4")
        e(f"v_lshlrev_b32 v6, 8, v{V_GQ}")
        e(f"v_lshl_add_u32 v6, v{V_R16}, 3, v6")
        e("v_lshl_add_u32 v7, v5, 7, v6")
        e("v_xor_b32 v8, 128, v7")
        e(f"v_mul_f32 v9, v{accA}, v{accA}")
        e(f"v_mul_f32 v10, v{accB}, v{accB}")
        e(f"v_mul_f32 v11, v{accA+1}, v{accA+1}")
        e(f"v_mul_f32 v12, v{accB+1}, v{accB+1}")
        nodc = e.L("nodc")
        e(f"s_or_b32 s53, s{S_HG}, s{S_WAVE}")
        e("s_cmp_lg_u32 s53, 0")
        e(f"s_cbranch_scc1 {nodc}")
        e(f"v_cmp_eq_u32 vcc, 0, v{V_GQ}")
        e("v_mov_b32 v13, 0")
        e("v_cndmask_b32 v11, v11, v13, vcc")
        e("v_cndmask_b32 v12, v12, v13, vcc")
        e.label(nodc)
        e("v_add_f32 v9, v9, v11")
        e("v_add_f32 v10, v10, v12")
        for r in (2, 3):
            e(f"v_fmac_f32 v9, v{accA+r}, v{accA+r}")
            e(f"v_fmac_f32 v10, v{accB+r}, v{accB+r}")
        e(f"v_cvt_pk_bf16_f32 v14, v{accA}, v{accA+1}")
        e(f"v_cvt_pk_bf16_f32 v15, v{accA+2}, v{accA+3}")
        e(f"buffer_store_dwordx2 v[14:15], v7, {srd(SRD_WS)}, s51 offen sc1")
        e(f"v_cvt_pk_bf16_f32 v52, v{accB}, v{accB+1}")
        e(f"v_cvt_pk_bf16_f32 v53, v{accB+2}, v{accB+3}")
        e(f"buffer_store_dwordx2 v[52:53], v8, {srd(SRD_WS)}, s51 offen sc1")
        if pre_store:
            pre_store()
        self.sum_over_gq(9, 13)
        self.sum_over_gq(10, 13)
        e(f"s_and_b32 s53, s{S_WAVE}, 1")
        e(f"s_lshl_b32 s54, s{S_WAVE}, 7")
        e("s_lshl_b32 s55, s53, 6")
        e("s_add_u32 s54, s54, s55")
        e(f"v_lshlrev_b32 v11, 2, v{V_R16}")
        e(f"v_add_u32 v11, s54, v11")
        e("v_xor_b32 v12, 64, v11")
        e(f"v_add_u32 v11, {L_STAT}, v11")
        e(f"v_add_u32 v12, {L_STAT}, v12")
        e("ds_write_b32 v11, v9")
        e("ds_write_b32 v12, v10")
        noex = e.L("ep_noex")
        e(f"s_cmp_ge_u32 s{S_WAVE}, 2")
        e(f"s_cbranch_scc1 {noex}")
        e(f"v_mul_f32 v9, v{accX}, v{accX}")
        for r in (1, 2, 3):
            e(f"v_fmac_f32 v9, v{accX+r}, v{accX+r}")
        e(f"v_cvt_pk_bf16_f32 v54, v{accX}, v{accX+1}")
        e(f"v_cvt_pk_bf16_f32 v55, v{accX+2}, v{accX+3}")
        e(f"buffer_store_dwordx2 v[54:55], v7, {srd(SRD_WS)}, s52 offen sc1")
        self.sum_over_gq(9, 13)
        e(f"v_lshlrev_b32 v11, 2, v{V_R16}")
        e(f"v_add_u32 v11, s55, v11")
        e(f"v_add_u32 v11, {L_STAT + 8*128}, v11")
        e("ds_write_b32 v11, v9")
        e.label(noex)
        e("s_waitcnt lgkmcnt(0)")
        e("s_barrier")
        fin = e.L("ep_fin")
        e(f"s_cmp_lg_u32 s{S_WAVE}, 0")
        e(f"s_cbranch_scc1 {fin}")
        e(f"v_and_b32 v4, 31, v{V_LANE}")
        e("v_lshlrev_b32 v4, 2, v4")
        e(f"v_add_u32 v14, {L_STAT}, v4")
        for t in range(9):
            e(f"ds_read_b32 v{5+t}, v14 offset:{t*128}")
        e("s_waitcnt lgkmcnt(0)")
        for t in range(1, 9):
            e(f"v_add_f32 v5, v5, v{5+t}")
        e(f"s_lshl_b32 s50, s{S_HG}, 13")
        e(f"s_lshl_b32 s51, s{S_QB}, 7")
        e("s_add_u32 s50, s50, s51")
        e(f"s_add_u32 s50, s50, s{s_part}")
        e("s_mov_b32 exec_hi, 0")
        e(f"buffer_store_dword v5, v4, {srd(SRD_WS)}, s50 offen sc1")
        e("s_mov_b64 exec, -1")
        e.label(fin)
```

```python
from gen_common import *

SQ = 202
MASK = 204
TW1, TW2, TW3 = 136, 150, 164
WREG = 178
XOLD = 186
POOL0, POOLN = 16, 24
ADDR = 206
REGION = 288 * 8
COLBUF = 8 * REGION
L_EX = 8192
L_OUT = L_EX + 2 * COLBUF


class Pool:
    def __init__(self):
        self.free = [POOL0 + 2 * i for i in range(POOLN)]
    def get(self):
        return self.free.pop(0)
    def put(self, r):
        assert r not in self.free
        self.free.append(r)


def P(r):
    return f"v[{r}:{r+1}]"


class FFT:
    def __init__(self, e):
        self.e = e
        self.pool = Pool()

    def add(self, a, b, free=()):
        d = self._dst(free); self.e(f"v_pk_add_f32 {P(d)}, {P(a)}, {P(b)}"); return d
    def sub(self, a, b, free=()):
        d = self._dst(free); self.e(f"v_pk_add_f32 {P(d)}, {P(a)}, {P(b)} neg_lo:[0,1] neg_hi:[0,1]"); return d
    def addmi(self, a, b, free=()):
        d = self._dst(free); self.e(f"v_pk_add_f32 {P(d)}, {P(a)}, {P(b)} op_sel:[0,1] op_sel_hi:[1,0] neg_hi:[0,1]"); return d
    def addpi(self, a, b, free=()):
        d = self._dst(free); self.e(f"v_pk_add_f32 {P(d)}, {P(a)}, {P(b)} op_sel:[0,1] op_sel_hi:[1,0] neg_lo:[0,1]"); return d
    def addrot(self, a, b, sign, free=()):
        return self.addmi(a, b, free) if sign < 0 else self.addpi(a, b, free)
    def fma_s(self, q, p, neg=False, free=()):
        d = self._dst(free)
        m = " neg_lo:[1,0,0] neg_hi:[1,0,0]" if neg else ""
        self.e(f"v_pk_fma_f32 {P(d)}, {P(q)}, {P(SQ)}, {P(p)}{m}"); return d
    def fma_srot(self, q, p, sign, free=()):
        d = self._dst(free)
        m = "neg_hi:[1,0,0]" if sign < 0 else "neg_lo:[1,0,0]"
        self.e(f"v_pk_fma_f32 {P(d)}, {P(q)}, {P(SQ)}, {P(p)} op_sel:[1,0,0] op_sel_hi:[0,1,1] {m}"); return d
    def cmul(self, a, w, conj=False):
        t = self.pool.get()
        self.e(f"v_pk_mul_f32 {P(t)}, {P(a)}, {P(w)} op_sel:[0,0] op_sel_hi:[1,0]")
        m = "neg_hi:[1,0,0]" if conj else "neg_lo:[1,0,0]"
        self.e(f"v_pk_fma_f32 {P(t)}, {P(a)}, {P(w)}, {P(t)} op_sel:[1,1,0] op_sel_hi:[0,1,1] {m}")
        self.pool.put(a)
        return t
    def _dst(self, free):
        d = self.pool.get()
        for r in free:
            self.pool.put(r)
        return d

    def dft4(self, u, sign):
        p0 = self.add(u[0], u[2]); p1 = self.sub(u[0], u[2], free=(u[0], u[2]))
        p2 = self.add(u[1], u[3]); p3 = self.sub(u[1], u[3], free=(u[1], u[3]))
        y0 = self.add(p0, p2); y2 = self.sub(p0, p2, free=(p0, p2))
        y1 = self.addrot(p1, p3, sign); y3 = self.addrot(p1, p3, -sign, free=(p1, p3))
        return [y0, y1, y2, y3]

    def dft8(self, z, sign):
        a = []; b = []
        for j in range(4):
            a.append(self.add(z[j], z[j+4])); b.append(self.sub(z[j], z[j+4], free=(z[j], z[j+4])))
        ev = self.dft4(a, sign)
        p0 = self.addrot(b[0], b[2], sign); p1 = self.addrot(b[0], b[2], -sign, free=(b[0], b[2]))
        t1 = self.addrot(b[1], b[1], sign, free=(b[1],))
        t3 = self.addrot(b[3], b[3], -sign, free=(b[3],))
        q2 = self.sub(t1, t3); q3 = self.add(t1, t3, free=(t1, t3))
        x1 = self.fma_s(q2, p0); x5 = self.fma_s(q2, p0, neg=True, free=(q2, p0))
        x3 = self.fma_srot(q3, p1, sign); x7 = self.fma_srot(q3, p1, -sign, free=(q3, p1))
        return [ev[0], x1, ev[1], x3, ev[2], x5, ev[3], x7]

    def twiddle(self, z, tw, conj):
        return [z[0]] + [self.cmul(z[k], tw + 2*(k-1), conj) for k in range(1, 8)]

    def write(self, z, addr, offs, b128=False):
        if b128:
            raise NotImplementedError
        for r, o in zip(z, offs):
            self.e(f"ds_write_b64 v{addr}, {P(r)} offset:{o}")
            self.pool.put(r)

    def read(self, addr, offs):
        z = [self.pool.get() for _ in offs]
        for r, o in zip(z, offs):
            self.e(f"ds_read_b64 {P(r)}, v{addr} offset:{o}")
        self.e("s_waitcnt lgkmcnt(0)")
        return z


def wq_hook(e, p):
    sk = e.L("wqh")
    e(f"s_cmp_eq_u32 s{S_LAYER}, 0")
    e(f"s_cbranch_scc1 {sk}")
    for ks in range(3 * p, 3 * p + 3):
        e(f"s_add_u32 s49, s58, {ks * 1024}")
        e(f"buffer_load_dwordx4 {vr(G_A + 4*ks, 4)}, v14, {srd(SRD_WS)}, s49 offen sc1")
    e.label(sk)


def tw_loads(e):
    e.make_srd(SRD_T, S_TW, 2048)
    e("v_and_b32 v4, 255, v0")
    e("v_lshlrev_b32 v4, 3, v4")
    e("v_and_b32 v5, 31, v0")
    e("v_lshlrev_b32 v5, 6, v5")
    e("v_and_b32 v6, 3, v0")
    e("v_lshlrev_b32 v6, 9, v6")
    e(f"buffer_load_dwordx2 {P(TW1)}, v4, {srd(SRD_T)}, 0 offen")
    e(f"buffer_load_dwordx2 {P(TW2)}, v5, {srd(SRD_T)}, 0 offen")
    e(f"buffer_load_dwordx2 {P(TW3)}, v6, {srd(SRD_T)}, 0 offen")


def tw_powers(e):
    def cm(d, a, b):
        e(f"v_pk_mul_f32 {P(d)}, {P(a)}, {P(b)} op_sel:[0,0] op_sel_hi:[1,0]")
        e(f"v_pk_fma_f32 {P(d)}, {P(a)}, {P(b)}, {P(d)} op_sel:[1,1,0] op_sel_hi:[0,1,1] neg_lo:[1,0,0]")
    w = lambda base, k: base + 2 * (k - 1)
    for (k, a, b) in ((2, 1, 1), (3, 2, 1), (4, 2, 2), (5, 4, 1), (6, 3, 3), (7, 4, 3)):
        for base in (TW1, TW2, TW3):
            cm(w(base, k), w(base, a), w(base, b))


def sfilter(e, s_xin, s_xout, s_part, s_wqok):
    A = ADDR
    e("v_lshlrev_b32 v4, 4, v0")
    for hg in range(4):
        e(f"s_add_u32 s50, s{s_part}, {hg * 8192}")
        e(f"buffer_load_dwordx4 {vr(16+4*hg,4)}, v4, {srd(SRD_WS)}, s50 offen sc1")
    e(f"s_lshr_b32 s51, s{S_WAVE}, 2")
    e("v_and_b32 v5, 255, v0")
    e("v_lshrrev_b32 v6, 5, v5")
    e("v_mul_u32_u24 v6, 36864, v6")
    e("v_lshrrev_b32 v7, 4, v5")
    e("v_and_b32 v7, 1, v7")
    e("s_lshr_b32 s52, s2, 1")
    e("s_and_b32 s52, s52, 1")
    e("v_xor_b32 v7, s52, v7")
    e("v_lshl_add_u32 v6, v7, 7, v6")
    e("v_and_b32 v7, 15, v5")
    e("v_lshl_add_u32 v6, v7, 3, v6")
    e("s_lshl_b32 s53, s2, 8")
    e("s_lshl_b32 s54, s51, 2")
    e("s_add_u32 s53, s53, s54")
    e(f"s_add_u32 s53, s53, s{s_xin}")
    for j in range(8):
        e(f"s_add_u32 s50, s53, {j * 8 * 36864}")
        e(f"buffer_load_dword v{32+j}, v6, {srd(SRD_WS)}, s50 offen sc1")
    e("s_lshl_b32 s54, s2, 1")
    e("s_add_u32 s54, s54, s51")
    e("s_lshl_b32 s54, s54, 13")
    e(f"s_add_u32 s54, s54, {WT}")
    e("v_lshlrev_b32 v8, 5, v5")
    e(f"buffer_load_dwordx4 {vr(WREG,4)}, v8, {srd(SRD_WS)}, s54 offen sc1")
    e(f"buffer_load_dwordx4 {vr(WREG+4,4)}, v8, {srd(SRD_WS)}, s54 offen offset:16 sc1")
    e(f"v_mov_b32 v{SQ}, 0x3f3504f3")
    e(f"v_mov_b32 v{SQ+1}, 0x3f3504f3")
    e(f"v_mov_b32 v{MASK}, 1.0")
    e("s_lshl_b32 s55, s2, 1")
    e("s_or_b32 s55, s55, s51")
    e("s_cmp_eq_u32 s55, 0")
    e("s_cselect_b32 s56, 0, 1.0")
    e(f"v_mov_b32 v{MASK+1}, s56")
    e(f"s_mul_i32 s57, s51, {COLBUF}")
    e(f"s_add_u32 s57, s57, {L_EX}")
    e(f"v_lshlrev_b32 v{A}, 3, v5")
    e(f"v_add_u32 v{A}, s57, v{A}")
    e("v_lshrrev_b32 v9, 5, v5")
    e(f"v_mul_u32_u24 v9, {REGION}, v9")
    e("v_add_u32 v9, s57, v9")
    e("v_and_b32 v10, 31, v5")
    e(f"v_lshl_add_u32 v{A+1}, v10, 3, v9")
    e("v_lshrrev_b32 v11, 2, v10")
    e("v_mul_u32_u24 v11, 288, v11")
    e("v_add_u32 v11, v11, v9")
    e("v_and_b32 v12, 3, v5")
    e(f"v_lshl_add_u32 v{A+2}, v12, 3, v11")
    e(f"v_lshl_add_u32 v{A+3}, v12, 6, v11")
    e(f"s_mul_i32 s58, s{S_HG}, 9")
    e(f"s_add_u32 s58, s58, s{S_WAVE}")
    e("s_mul_i32 s58, s58, 18432")
    e(f"s_add_u32 s58, s58, {WQF}")
    e(f"v_lshlrev_b32 v14, 4, v{V_LANE}")
    e("s_waitcnt vmcnt(10)")
    for r in range(4):
        e(f"v_add_f32 v{16+r}, v{16+r}, v{20+r}")
        e(f"v_add_f32 v{24+r}, v{24+r}, v{28+r}")
    for r in range(4):
        e(f"v_add_f32 v{16+r}, v{16+r}, v{24+r}")
    for r in range(4):
        e.inv_sigma(16 + r, 13, scale="0x3a000000")
    e("v_lshlrev_b32 v4, 4, v0")
    e("ds_write_b128 v4, v[16:19]")
    e("s_waitcnt lgkmcnt(0)")
    e("s_barrier")
    e("v_lshlrev_b32 v4, 2, v5")
    for j in range(8):
        e(f"ds_read_b32 v{40+j}, v4 offset:{j*1024}")
    e("s_waitcnt vmcnt(2)")
    e.stamp("f x")
    for j in range(8):
        e(f"v_lshlrev_b32 v{XOLD+2*j}, 16, v{32+j}")
        e(f"v_and_b32 v{XOLD+2*j+1}, 0xffff0000, v{32+j}")
    e("s_waitcnt lgkmcnt(0)")
    f = FFT(e)
    z = []
    safe = [16, 18, 20, 22, 24, 26, 28, 30]
    for j in range(8):
        f.pool.free.remove(safe[j])
        e(f"v_pk_mul_f32 {P(safe[j])}, {P(XOLD+2*j)}, v[{40+2*(j//2)}:{41+2*(j//2)}] op_sel:[0,{j%2}] op_sel_hi:[1,{j%2}]")
        z.append(safe[j])
    nm = e.L("nomask")
    e("s_cmp_lg_u32 s55, 0")
    e(f"s_cbranch_scc1 {nm}")
    for j in range(8):
        e(f"v_pk_mul_f32 {P(z[j])}, {P(z[j])}, {P(MASK)}")
    e.label(nm)
    z = f.dft8(z, -1); z = f.twiddle(z, TW1, False)
    f.write(z, A, [k * REGION for k in range(8)])
    e("s_waitcnt lgkmcnt(0)")
    e("s_barrier")
    z = f.read(A + 1, [j * 256 for j in range(8)])
    z = f.dft8(z, -1); z = f.twiddle(z, TW2, False)
    f.write(z, A + 1, [k * 288 for k in range(8)])
    z = f.read(A + 2, [j * 32 for j in range(8)])
    z = f.dft8(z, -1); z = f.twiddle(z, TW3, False)
    f.write(z, A + 2, [k * 32 for k in range(8)])
    z = f.read(A + 3, [e_ * 32 + t * 8 for e_ in range(2) for t in range(4)])
    z = f.dft4(z[:4], -1) + f.dft4(z[4:], -1)
    e("s_waitcnt vmcnt(0)")
    wq_hook(e, 0)
    wt = f.pool.get()
    for i in range(8):
        e(f"v_lshlrev_b32 v{wt}, 16, v{WREG+i}")
        e(f"v_and_b32 v{wt+1}, 0xffff0000, v{WREG+i}")
        z[i] = f.cmul(z[i], wt)
    f.pool.put(wt)
    wq_hook(e, 1)
    z = f.dft4(z[:4], +1) + f.dft4(z[4:], +1)
    f.write(z, A + 3, [e_ * 32 + t * 8 for e_ in range(2) for t in range(4)])
    z = f.read(A + 2, [k * 32 for k in range(8)])
    wq_hook(e, 2)
    z = f.twiddle(z, TW3, True); z = f.dft8(z, +1)
    f.write(z, A + 2, [j * 32 for j in range(8)])
    z = f.read(A + 1, [k * 288 for k in range(8)])
    wq_hook(e, 3)
    z = f.twiddle(z, TW2, True); z = f.dft8(z, +1)
    wq_hook(e, 4)
    f.write(z, A + 1, [j * 256 for j in range(8)])
    e("s_waitcnt lgkmcnt(0)")
    e("s_barrier")
    z = f.read(A, [k * REGION for k in range(8)])
    wq_hook(e, 5)
    z = f.twiddle(z, TW1, True); z = f.dft8(z, +1)
    e.stamp("f inv")
    e(f"s_mov_b32 s{s_wqok}, s{S_LAYER}")
    e("v_lshlrev_b32 v4, 3, v5")
    e("s_lshl_b32 s54, s51, 2")
    e(f"s_add_u32 s54, s54, {L_OUT}")
    e("v_add_u32 v4, s54, v4")
    for j in range(8):
        e(f"v_pk_fma_f32 {P(z[j])}, {P(z[j])}, {P(MASK)}, {P(XOLD+2*j)}")
        e(f"v_cvt_pk_bf16_f32 v{z[j]}, v{z[j]}, v{z[j]+1}")
        e(f"ds_write_b32 v4, v{z[j]} offset:{j*2048}")
    e("s_waitcnt lgkmcnt(0)")
    e("s_barrier")
    e("v_lshlrev_b32 v4, 4, v0")
    e(f"ds_read_b128 v[16:19], v4 offset:{L_OUT}")
    e(f"ds_read_b128 v[20:23], v4 offset:{L_OUT + 8192}")
    e("v_lshrrev_b32 v6, 4, v0")
    e("v_mul_u32_u24 v6, 36864, v6")
    e("v_lshrrev_b32 v7, 3, v0")
    e("v_and_b32 v7, 1, v7")
    e("v_xor_b32 v7, s52, v7")
    e("v_lshl_add_u32 v6, v7, 7, v6")
    e("v_and_b32 v7, 7, v0")
    e("v_lshl_add_u32 v6, v7, 4, v6")
    e("s_lshl_b32 s53, s2, 8")
    e(f"s_add_u32 s53, s53, s{s_xout}")
    e(f"s_add_u32 s50, s53, {32 * 36864}")
    e("s_waitcnt lgkmcnt(0)")
    e(f"buffer_store_dwordx4 v[16:19], v6, {srd(SRD_WS)}, s53 offen sc1")
    e(f"buffer_store_dwordx4 v[20:23], v6, {srd(SRD_WS)}, s50 offen sc1")
```

```python
from gen_common import *

WD, WD2, WA = 208, 220, 216


def p0(e, after_gemm):
    nz = e.L("nozero")
    e("s_cmp_lg_u32 s2, 0")
    e(f"s_cbranch_scc1 {nz}")
    e("v_mov_b32 v12, 0")
    e("v_lshlrev_b32 v9, 8, v0")
    e(f"buffer_store_dword v12, v9, {srd(SRD_WS)}, 0 offen sc1")
    e.label(nz)
    e.make_srd(SRD_A, S_AX, XBYTES)
    e(f"s_lshl_b32 s50, s{S_QB}, 5")
    e(f"v_add_u32 v4, s50, v{V_R16}")
    e("v_mul_u32_u24 v4, 1152, v4")
    e(f"v_lshl_add_u32 v4, v{V_GQ}, 4, v4")
    for m in range(5):
        skip = None
        if m == 4:
            skip = e.L("p0dma")
            e(f"s_cmp_ge_u32 s{S_WAVE}, 4")
            e(f"s_cbranch_scc1 {skip}")
        e(f"s_add_u32 s50, s{S_WAVE}, {8*m}")
        e("s_cmp_ge_u32 s50, 18")
        e("s_cselect_b32 s51, 18, 0")
        e("s_cselect_b32 s52, 18432, 0")
        e("s_sub_u32 s51, s50, s51")
        e("s_lshl_b32 s51, s51, 6")
        e("s_add_u32 s51, s51, s52")
        e("s_lshl_b32 m0, s50, 10")
        e(f"buffer_load_dwordx4 v4, {srd(SRD_A)}, s51 offen lds")
        if skip:
            e.label(skip)
    e.make_srd(SRD_T, S_FT, 36 * 18432)
    e(f"v_lshlrev_b32 v5, 4, v{V_LANE}")
    e(f"s_mul_i32 s56, s{S_HG}, 9")
    e(f"s_add_u32 s57, s56, s{S_WAVE}")
    e("s_mul_i32 s57, s57, 18432")
    e.load_a_frags(SRD_T, 57, G_A, vlane16=5)
    nx, w2 = e.L("p0nx"), e.L("p0w")
    e(f"s_cmp_ge_u32 s{S_WAVE}, 2")
    e(f"s_cbranch_scc1 {nx}")
    e("s_add_u32 s57, s56, 8")
    e("s_mul_i32 s57, s57, 18432")
    e.load_a_frags(SRD_T, 57, G_AX, vlane16=5)
    e("s_waitcnt vmcnt(36)")
    e(f"s_branch {w2}")
    e.label(nx)
    e("s_waitcnt vmcnt(18)")
    e.label(w2)
    wz = e.L("p0wz")
    e("s_cmp_lg_u32 s2, 0")
    e(f"s_cbranch_scc1 {wz}")
    e("s_waitcnt vmcnt(0)")
    e.label(wz)
    e("s_barrier")
    e.stamp("p0 loaded")
    ng = e.L("nogo")
    e(f"s_or_b32 s50, s2, s{S_WAVE}")
    e("s_cmp_lg_u32 s50, 0")
    e(f"s_cbranch_scc1 {ng}")
    e.make_srd(SRD_A, S_DBG, 256)
    e("v_mov_b32 v9, 0")
    e("v_mov_b32 v10, 1")
    e("s_mov_b64 exec, 1")
    e(f"buffer_store_dword v10, v9, {srd(SRD_A)}, 0 offen sc1")
    e("s_mov_b64 exec, -1")
    e("s_waitcnt vmcnt(0)")
    e.label(ng)
    e.make_srd(SRD_A, S_WR, S * 289 * 2)
    e.make_srd(SRD_B, S_WI, S * 289 * 2)
    e("s_lshr_b32 s50, s2, 2")
    e("s_and_b32 s51, s2, 3")
    e("s_lshr_b32 s52, s50, 3")
    e("s_and_b32 s53, s50, 7")
    e("s_lshl_b32 s53, s53, 3")
    e("s_add_u32 s52, s52, s53")
    e(f"v_and_b32 v6, 7, v{V_LANE}")
    e("v_lshlrev_b32 v7, 6, v6")
    e("v_add_u32 v7, s52, v7")
    e("v_mul_u32_u24 v7, 578, v7")
    e("s_mul_i32 s54, s51, 72")
    e(f"s_mul_i32 s58, s{S_WAVE}, 9")
    e("s_add_u32 s54, s54, s58")
    e(f"v_lshrrev_b32 v8, 3, v{V_LANE}")
    e("s_lshl_b32 s55, s50, 7")
    e(f"s_add_u32 s{S_X+5}, s55, {WT}")
    for rnd in range(2):
        d, d2, a = WD + 4 * rnd, WD2 + 4 * rnd, WA + 2 * rnd
        if rnd == 0:
            e("v_add_u32 v9, s54, v8")
        else:
            e("s_add_u32 s58, s54, 8")
            e("v_mov_b32 v9, s58")
        e("v_cmp_eq_u32 vcc, 0, v9")
        e("v_mov_b32 v10, 288")
        e("v_cndmask_b32 v10, v9, v10, vcc")
        e(f"v_lshl_add_u32 v{a}, v10, 1, v7")
        e("v_lshlrev_b32 v9, 13, v9")
        e(f"v_lshl_add_u32 v{a+1}, v6, 4, v9")
        if rnd == 1:
            e("s_mov_b64 exec, 0xff")
        for f3 in range(4):
            e(f"s_mov_b32 s59, {f3 * 512 * 578}")
            e(f"buffer_load_ushort v{d+f3}, v{a}, {srd(SRD_A)}, s59 offen")
            e(f"buffer_load_ushort v{d2+f3}, v{a}, {srd(SRD_B)}, s59 offen")
    e("s_mov_b64 exec, -1")
    e.make_srd(SRD_B, S_DBG, 256)
    e("v_mov_b32 v9, 0")
    e(f"buffer_load_dword v252, v9, {srd(SRD_B)}, 0 offen sc1")
    e(f"s_and_b32 s50, s{S_WAVE}, 1")
    e("s_mul_i32 s50, s50, 18432")
    e(f"v_lshlrev_b32 v56, 4, v{V_LANE}")
    e("v_add_u32 v57, 18432, v56")
    e("v_subrev_u32 v57, s50, v57")
    e("v_add_u32 v56, s50, v56")
    e.g144_both("frag", 56, 57, vm_fn=lambda ks, ex: 17 - ks + 17)
    after_gemm()
    e(f"s_mov_b32 s{S_X}, {X0}")
    e(f"s_mov_b32 s{S_X+1}, {PART0}")
    e.xhat_epilogue(S_X, S_X + 1, pre_store=lambda: wt_store(e))


def wt_store(e):
    e("s_waitcnt vmcnt(3)")
    for r in range(4):
        e(f"v_lshl_or_b32 v{WD+r}, v{WD2+r}, 16, v{WD+r}")
        e(f"v_lshl_or_b32 v{WD+4+r}, v{WD2+4+r}, 16, v{WD+4+r}")
    e(f"buffer_store_dwordx4 {vr(WD,4)}, v{WA+1}, {srd(SRD_WS)}, s{S_X+5} offen sc1")
    e("s_mov_b64 exec, 0xff")
    e(f"buffer_store_dwordx4 {vr(WD+4,4)}, v{WA+3}, {srd(SRD_WS)}, s{S_X+5} offen sc1")
    e("s_mov_b64 exec, -1")
```

```python
from gen_common import *

PA = 64
PB = 16
PACC = 140
TILE = 18432
L_PX = 81920


def slot_to_j(e, vkap, s_ks, dst):
    lo, done = e.L("jlo"), e.L("jdone")
    e(f"s_cmp_ge_u32 s{s_ks}, 16")
    e(f"s_cbranch_scc0 {lo}")
    e(f"s_sub_u32 s58, s{s_ks}, 16")
    e("s_lshl_b32 s58, s58, 4")
    e(f"v_lshrrev_b32 v13, 1, v{vkap}")
    e("v_add_u32 v13, s58, v13")
    e("v_mul_u32_u24 v13, 18, v13")
    e(f"v_and_b32 v14, 1, v{vkap}")
    e(f"v_add3_u32 v{dst}, v13, v14, 16")
    e(f"s_branch {done}")
    e.label(lo)
    e(f"s_lshl_b32 s58, s{s_ks}, 1")
    e(f"v_lshrrev_b32 v13, 4, v{vkap}")
    e("v_add_u32 v13, s58, v13")
    e("v_mul_u32_u24 v13, 18, v13")
    e(f"v_bfe_u32 v14, v{vkap}, 2, 1")
    e("v_lshl_add_u32 v13, v14, 3, v13")
    e(f"v_bfe_u32 v14, v{vkap}, 3, 1")
    e("v_lshl_add_u32 v13, v14, 2, v13")
    e(f"v_and_b32 v14, 3, v{vkap}")
    e(f"v_add_u32 v{dst}, v13, v14")
    e.label(done)


def load_ft_rows(e):
    e("s_lshl_b32 s57, s60, 3")
    e(f"s_add_u32 s57, s57, s{S_WAVE}")
    idle = e.L("ft_idle")
    e("s_cmp_ge_u32 s57, 36")
    e(f"s_cbranch_scc1 {idle}")
    e.make_srd(SRD_T, S_FT, 36 * TILE)
    e(f"v_lshlrev_b32 v14, 4, v{V_LANE}")
    e(f"s_mul_i32 s59, s57, {TILE}")
    e.load_a_frags(SRD_T, 59, PA, vlane16=14)
    e.label(idle)


def stage_wo_rows(e):
    e.make_srd(SRD_A, S_WO, D * D * 2)
    e(f"s_lshr_b32 s50, s{S_WAVE}, 2")
    e("s_lshl_b32 s51, s61, 1")
    e("s_add_u32 s51, s51, s50")
    e(f"s_and_b32 s50, s{S_WAVE}, 3")
    e("s_lshl_b32 s50, s50, 3")
    e(f"v_lshrrev_b32 v4, 3, v{V_LANE}")
    e("v_add_u32 v12, s50, v4")
    slot_to_j(e, 12, 51, 15)
    e("v_mul_u32_u24 v7, 1152, v15")
    e(f"v_and_b32 v5, 7, v{V_LANE}")
    e("v_xor_b32 v5, v5, v4")
    e("v_lshl_add_u32 v7, v5, 4, v7")
    e(f"s_mul_i32 s52, s{S_WAVE}, {9 * 1024}")
    for kp in range(9):
        e(f"s_add_u32 m0, s52, {kp * 1024}")
        e(f"s_mov_b32 s53, {kp * 128}")
        e(f"buffer_load_dwordx4 v7, {srd(SRD_A)}, s53 offen lds")


def gemm_loop(e, mode):
    def rd(kk):
        b = PB + 16 * (kk % 3)
        if mode == "tr" and kk == 16:
            for T in range(4):
                e(f"v_add_u32 v{8+T}, 65536, v{8+T}")
        for T in range(4):
            if mode == "tr":
                off = (kk % 16) * 4096
                e(f"ds_read_b64_tr_b16 {vr(b+4*T,2)}, v{8+T} offset:{off}")
                e(f"ds_read_b64_tr_b16 {vr(b+4*T+2,2)}, v{8+T} offset:{off + 512}")
            else:
                e(f"ds_read_b128 {vr(b+4*T,4)}, v{8 + (kk & 1)} offset:{T * TILE + (kk >> 1) * 1024}")
    per = 8 if mode == "tr" else 4
    rd(0)
    for kk in range(18):
        if kk + 1 < 18:
            rd(kk + 1)
            e(f"s_waitcnt lgkmcnt({per})")
        else:
            e("s_waitcnt lgkmcnt(0)")
        b = PB + 16 * (kk % 3)
        for T in range(4):
            c = "0" if kk == 0 else vr(PACC + 4*T, 4)
            e(f"v_mfma_f32_16x16x32_bf16 {vr(PACC+4*T,4)}, {vr(PA+4*kk,4)}, {vr(b+4*T,4)}, {c}")
    for T in range(4):
        e(f"v_cvt_pk_bf16_f32 v{PACC+4*T}, v{PACC+4*T}, v{PACC+4*T+1}")
        e(f"v_cvt_pk_bf16_f32 v{PACC+4*T+1}, v{PACC+4*T+2}, v{PACC+4*T+3}")


def prep_q(e):
    e(f"s_and_b32 s56, s{S_WAVE}, 1")
    e(f"v_lshrrev_b32 v4, 3, v{V_LANE}")
    e("v_bfe_u32 v5, v4, 1, 1")
    e("s_lshl_b32 s55, s56, 1")
    e("v_or_b32 v5, s55, v5")
    e(f"v_bfe_u32 v6, v{V_LANE}, 1, 2")
    e("v_xor_b32 v5, v5, v6")
    e(f"v_and_b32 v6, 1, v{V_LANE}")
    e("v_lshlrev_b32 v6, 4, v6")
    kvjob, staged = e.L("kvjob"), e.L("staged")
    e("s_cmp_eq_u32 s61, 9")
    e(f"s_cbranch_scc1 {kvjob}")
    e.make_srd(SRD_A, S_WQ, D * D * 2)
    e("v_mul_u32_u24 v7, 1152, v4")
    e("v_lshl_add_u32 v7, v5, 5, v7")
    e("v_add_u32 v7, v7, v6")
    e("s_lshl_b32 s54, s61, 7")
    for m in range(9):
        e(f"s_add_u32 s50, s{S_WAVE}, {8*m}")
        e(f"s_mul_i32 s52, s50, {8 * 1152}")
        e("s_add_u32 s52, s52, s54")
        e("s_lshl_b32 m0, s50, 10")
        e(f"buffer_load_dwordx4 v7, {srd(SRD_A)}, s52 offen lds")
    e(f"s_branch {staged}")
    e.label(kvjob)
    e.make_srd(SRD_A, S_WK, D * DH * 2)
    e.make_srd(SRD_B, S_WV, D * DH * 2)
    e("v_mul_u32_u24 v7, 36, v4")
    e("v_lshrrev_b32 v13, 1, v5")
    e("v_lshl_add_u32 v7, v13, 5, v7")
    e("v_add_u32 v7, v7, v6")
    e("v_and_b32 v13, 1, v5")
    e("v_cmp_eq_u32 s[62:63], 0, v13")
    for m in range(9):
        e(f"s_add_u32 s50, s{S_WAVE}, {8*m}")
        e(f"s_mul_i32 s52, s50, {8 * 36}")
        e("v_add_u32 v14, s52, v7")
        e("s_lshl_b32 m0, s50, 10")
        e("s_mov_b64 exec, s[62:63]")
        e(f"buffer_load_dwordx4 v14, {srd(SRD_A)}, 0 offen lds")
        e("s_not_b64 exec, s[62:63]")
        e(f"buffer_load_dwordx4 v14, {srd(SRD_B)}, 0 offen lds")
        e("s_mov_b64 exec, -1")
    e.label(staged)
    load_ft_rows(e)
    e("s_waitcnt vmcnt(0)")
    e("s_barrier")
    fin = e.L("pq_fin")
    e("s_cmp_ge_u32 s57, 36")
    e(f"s_cbranch_scc1 {fin}")
    nodc = e.L("pq_nodc")
    e("s_cmp_lg_u32 s57, 0")
    e(f"s_cbranch_scc1 {nodc}")
    e(f"v_cmp_eq_u32 vcc, 1, v{V_R16}")
    e("v_mov_b32 v13, 0")
    for r in range(72):
        e(f"v_cndmask_b32 v{PA+r}, v{PA+r}, v13, vcc")
    e.label(nodc)
    e(f"v_lshrrev_b32 v4, 2, v{V_R16}")
    e(f"v_and_b32 v5, 3, v{V_R16}")
    e(f"v_lshl_add_u32 v7, v{V_GQ}, 3, v4")
    e("v_lshlrev_b32 v7, 7, v7")
    e("v_lshl_add_u32 v7, v5, 3, v7")
    e("v_bfe_u32 v6, v4, 1, 1")
    e(f"v_and_b32 v5, 1, v{V_GQ}")
    e("v_lshl_or_b32 v6, v5, 1, v6")
    e("v_lshl_add_u32 v8, v6, 5, v7")
    e("v_xor_b32 v9, 32, v8")
    e("v_xor_b32 v10, 64, v8")
    e("v_xor_b32 v11, 96, v8")
    gemm_loop(e, "tr")
    e(f"s_lshr_b32 s50, s{S_WAVE}, 1")
    e("s_lshl_b32 s50, s50, 12")
    e(f"s_add_u32 s50, s50, {L_PX}")
    e("s_lshl_b32 s51, s56, 9")
    e("s_add_u32 s50, s50, s51")
    e(f"v_lshrrev_b32 v4, 1, v{V_GQ}")
    e(f"v_lshl_add_u32 v4, v4, 4, v{V_R16}")
    e("v_lshlrev_b32 v4, 4, v4")
    e(f"v_and_b32 v5, 1, v{V_GQ}")
    e("v_lshl_add_u32 v4, v5, 3, v4")
    e("v_add_u32 v4, s50, v4")
    for T in range(4):
        e(f"ds_write_b64 v4, {vr(PACC+4*T,2)} offset:{T*1024}")
    e.label(fin)
    e("s_waitcnt lgkmcnt(0)")
    e("s_barrier")
    fin2 = e.L("pq_fin2")
    e("s_cmp_ge_u32 s57, 36")
    e(f"s_cbranch_scc1 {fin2}")
    e(f"s_lshr_b32 s50, s{S_WAVE}, 1")
    e("s_lshl_b32 s50, s50, 12")
    e("s_lshl_b32 s51, s56, 11")
    e("s_add_u32 s50, s50, s51")
    e(f"s_add_u32 s50, s50, {L_PX}")
    e(f"v_lshlrev_b32 v4, 4, v{V_LANE}")
    e("v_add_u32 v5, s50, v4")
    e("ds_read_b128 v[16:19], v5")
    e("ds_read_b128 v[20:23], v5 offset:1024")
    e("s_lshl_b32 s54, s61, 2")
    e("s_lshl_b32 s55, s56, 1")
    e("s_add_u32 s54, s54, s55")
    e("s_mul_i32 s54, s54, 18")
    e("s_lshr_b32 s55, s57, 1")
    e("s_add_u32 s54, s54, s55")
    e("s_lshl_b32 s54, s54, 10")
    e(f"s_add_u32 s54, s54, {WQF}")
    e("s_waitcnt lgkmcnt(0)")
    e(f"buffer_store_dwordx4 v[16:19], v4, {srd(SRD_WS)}, s54 offen sc1")
    e(f"s_add_u32 s54, s54, {TILE}")
    e(f"buffer_store_dwordx4 v[20:23], v4, {srd(SRD_WS)}, s54 offen sc1")
    e.label(fin2)
    e.stamp("pq mm")


def prep_o(e):
    stage_wo_rows(e)
    load_ft_rows(e)
    e("s_waitcnt vmcnt(0)")
    e("s_barrier")
    fin = e.L("po_fin")
    e("s_cmp_ge_u32 s57, 36")
    e(f"s_cbranch_scc1 {fin}")
    e(f"v_and_b32 v4, 7, v{V_R16}")
    e(f"v_xor_b32 v5, v4, v{V_GQ}")
    e("v_lshlrev_b32 v5, 4, v5")
    e("v_lshl_add_u32 v5, v4, 7, v5")
    e(f"v_lshrrev_b32 v6, 3, v{V_R16}")
    e(f"v_mul_u32_u24 v6, {9 * 1024}, v6")
    e("v_add_u32 v8, v5, v6")
    e("v_xor_b32 v9, 64, v8")
    gemm_loop(e, "frag")
    e(f"s_lshl_b32 s50, s{S_WAVE}, 11")
    e(f"s_add_u32 s50, s50, {L_PX}")
    e(f"v_lshlrev_b32 v4, 5, v{V_R16}")
    e(f"v_lshl_add_u32 v4, v{V_GQ}, 3, v4")
    e("v_add_u32 v4, s50, v4")
    for T in range(4):
        e(f"ds_write_b64 v4, {vr(PACC+4*T,2)} offset:{T*512}")
    e(f"v_lshrrev_b32 v5, 2, v{V_R16}")
    e(f"v_lshl_add_u32 v5, v{V_GQ}, 3, v5")
    e("v_lshlrev_b32 v5, 5, v5")
    e(f"v_and_b32 v6, 3, v{V_R16}")
    e("v_lshl_add_u32 v5, v6, 3, v5")
    e("v_add_u32 v5, s50, v5")
    e("s_waitcnt lgkmcnt(0)")
    for u in range(2):
        e(f"ds_read_b64_tr_b16 {vr(16+4*u,2)}, v5 offset:{u*1024}")
        e(f"ds_read_b64_tr_b16 {vr(18+4*u,2)}, v5 offset:{u*1024 + 128}")
    e(f"v_lshlrev_b32 v4, 4, v{V_LANE}")
    e("s_mul_i32 s54, s57, 18")
    e("s_lshl_b32 s55, s61, 1")
    e("s_add_u32 s54, s54, s55")
    e("s_lshl_b32 s54, s54, 10")
    e(f"s_add_u32 s54, s54, {WOF}")
    e("s_waitcnt lgkmcnt(0)")
    e(f"buffer_store_dwordx4 v[16:19], v4, {srd(SRD_WS)}, s54 offen sc1")
    e(f"buffer_store_dwordx4 v[20:23], v4, {srd(SRD_WS)}, s54 offen offset:1024 sc1")
    e.label(fin)


def prep_t(e):
    stage_wo_rows(e)
    e("s_waitcnt vmcnt(0)")
    e("s_barrier")
    e(f"v_lshrrev_b32 v4, 2, v{V_R16}")
    e(f"v_and_b32 v5, 3, v{V_R16}")
    e(f"v_mul_u32_u24 v6, {9 * 1024}, v{V_GQ}")
    e("v_lshrrev_b32 v7, 1, v5")
    e("v_and_b32 v5, 1, v5")
    e("v_lshl_add_u32 v6, v5, 3, v6")
    e(f"v_lshlrev_b32 v12, 4, v{V_LANE}")
    e(f"s_and_b32 s50, s{S_WAVE}, 3")
    e("s_lshl_b32 s50, s50, 1")
    e("v_add_u32 v7, s50, v7")
    for h in range(2):
        e(f"v_add_u32 v8, {4*h}, v4")
        e("v_xor_b32 v9, v7, v8")
        e("v_lshlrev_b32 v9, 4, v9")
        e("v_lshl_add_u32 v9, v8, 7, v9")
        e(f"v_add_u32 v{10+h}, v9, v6")
    for it in range(5):
        skip = None
        if it == 4:
            skip = e.L("pt_skip")
            e(f"s_cmp_ge_u32 s{S_WAVE}, 4")
            e(f"s_cbranch_scc1 {skip}")
        e(f"s_add_u32 s51, s{S_WAVE}, {8*it}")
        e("s_lshr_b32 s52, s51, 2")
        e("s_lshl_b32 s52, s52, 10")
        e("v_add_u32 v13, s52, v10")
        e("v_add_u32 v14, s52, v11")
        for u in range(2):
            e(f"ds_read_b64_tr_b16 {vr(16+4*u,2)}, v13 offset:{u*4*9*1024}")
            e(f"ds_read_b64_tr_b16 {vr(18+4*u,2)}, v14 offset:{u*4*9*1024}")
        e("s_mul_i32 s54, s51, 18")
        e("s_lshl_b32 s55, s61, 1")
        e("s_add_u32 s54, s54, s55")
        e("s_lshl_b32 s54, s54, 10")
        e(f"s_add_u32 s54, s54, {WO2}")
        e("s_waitcnt lgkmcnt(0)")
        e(f"buffer_store_dwordx4 v[16:19], v12, {srd(SRD_WS)}, s54 offen sc1")
        e(f"buffer_store_dwordx4 v[20:23], v12, {srd(SRD_WS)}, s54 offen offset:1024 sc1")
        e("s_nop 1")
        if skip:
            e.label(skip)


def prep_phase1(e):
    o, t, done, hi, o4, o3 = [e.L(n) for n in ("prepo", "prept", "prepdone", "prephi", "prepo4", "prepo3")]
    e(f"s_mov_b32 s{S_X+6}, 0")
    e("s_and_b32 s62, s2, 7")
    e("s_sub_u32 s63, s2, 144")
    e("s_lshr_b32 s63, s63, 3")
    e("s_cmp_ge_u32 s62, 5")
    e(f"s_cbranch_scc1 {hi}")
    e("s_cmp_ge_u32 s63, 10")
    e(f"s_cbranch_scc1 {o4}")
    e("s_mov_b32 s60, s62")
    e("s_mov_b32 s61, s63")
    prep_q(e)
    e(f"s_mov_b32 s{S_X+6}, 1")
    e(f"s_branch {done}")
    e.label(o4)
    e("s_cmp_eq_u32 s63, 12")
    e("s_cselect_b32 s61, s62, 99")
    e(f"s_cbranch_scc1 {t}")
    e("s_cmp_ge_u32 s63, 12")
    e(f"s_cbranch_scc1 {done}")
    e("s_lshl_b32 s61, s62, 1")
    e("s_add_u32 s61, s61, s63")
    e("s_sub_u32 s61, s61, 10")
    e("s_cmp_ge_u32 s61, 9")
    e(f"s_cbranch_scc1 {done}")
    e("s_mov_b32 s60, 4")
    e(f"s_branch {o}")
    e.label(hi)
    e("s_cmp_eq_u32 s63, 12")
    e("s_cselect_b32 s61, s62, 99")
    e(f"s_cbranch_scc1 {t}")
    e("s_cmp_eq_u32 s2, 253")
    e("s_cselect_b32 s61, 8, 99")
    e(f"s_cbranch_scc1 {t}")
    e("s_cmp_ge_u32 s63, 12")
    e(f"s_cbranch_scc1 {done}")
    e("s_cmp_ge_u32 s63, 9")
    e(f"s_cbranch_scc1 {o3}")
    e("s_sub_u32 s60, s62, 5")
    e("s_mov_b32 s61, s63")
    e(f"s_branch {o}")
    e.label(o3)
    e("s_sub_u32 s61, s62, 5")
    e("s_mul_i32 s61, s61, 3")
    e("s_add_u32 s61, s61, s63")
    e("s_sub_u32 s61, s61, 9")
    e("s_mov_b32 s60, 3")
    e.label(o)
    prep_o(e)
    e(f"s_branch {done}")
    e.label(t)
    prep_t(e)
    e.label(done)
```

```python
S, D, H, DH = 2048, 576, 32, 18
NWG = 256
XBYTES = S * D * 2

CNT = 0
NSHARD = 32
BAR_BYTES = NSHARD * 256
CNT_GROUP = 6 * BAR_BYTES
CNT_WQ = CNT_GROUP + 32768
CNT_BYTES = 90112
X0 = 0x20000
X1 = X0 + XBYTES
X2 = X1 + XBYTES
X3 = X2 + XBYTES
PART0 = X3 + XBYTES
PART2 = PART0 + 32768
WT = PART2 + 32768
WQF = WT + XBYTES
WOF = WQF + 40 * 18432
WO2 = WOF + 36 * 18432
KVB = 151552
KV0 = WO2 + 36 * 18432
KV1 = KV0 + KVB
O0 = KV1 + KVB
O1 = O0 + XBYTES
PROF = O1 + XBYTES
WS_END = PROF + 256 * 8 * 256

CHUNK = 18944
K2_OFF = 8192
V_OFF = 9216
VT = 1216

LDS_BYTES = 163840
L_XT2 = 113664
L_MISC = KVB
L_QL = L_MISC
QL_PITCH = 296
L_RED = L_MISC
L_SS = L_MISC + 9728
L_INV = L_SS + 512
L_FLAG = L_INV + 128
L_STAT = L_SS
```

```python
import math, struct

def f2u(x):
    return struct.unpack("<I", struct.pack("<f", x))[0]

def bf16(x):
    u = f2u(x)
    return (u + 0x7fff + ((u >> 16) & 1)) >> 16

def tables():
    c = math.sqrt(2 / 576)
    s = [".p2align 8"]
    vals = [bf16(c * math.cos(2 * math.pi * n / 576)) if n % 288 != 144 else 0 for n in range(576)]
    vals += [bf16(1 / 24), bf16(-1 / 24)]
    for n, v in enumerate(vals):
        s.append(f".set C{n}, {v}")
    s.append(r"""
.altmacro
.macro emit2 a, b
.short C\a, C\b
.endm
.macro ftp k, off, d
emit2 %((\k*(\d)+\off)%576), %((\k*((\d)+1)+\off)%576)
.endm
.macro fip k, d
emit2 %((\k)*\d%576), %(((\k)*\d+144)%576)
.endm
.type TAB_FT,@object
TAB_FT:
.set mtg, 0
.rept 36
.set ks, 0
.rept 18
.set l, 0
.rept 64
.set f, 16*mtg + (l & 15)
.if f == 0
.short C576, C577, C576, C577, C576, C577, C576, C577
.elseif f == 1
.short C576, C576, C576, C576, C576, C576, C576, C576
.else
.set d0, 32*ks + 8*(l >> 4)
.set kk, f >> 1
.set off, 144*(f & 1)
ftp kk, off, d0
ftp kk, off, d0+2
ftp kk, off, d0+4
ftp kk, off, d0+6
.endif
.set l, l+1
.endr
.set ks, ks+1
.endr
.set mtg, mtg+1
.endr
.size TAB_FT, 663552
.type TAB_FI,@object
TAB_FI:
.set mtg, 0
.rept 36
.set ks, 0
.rept 18
.set l, 0
.rept 64
.set d, 16*mtg + (l & 15)
.set k0, 16*ks + 4*(l >> 4)
.if k0 == 0
emit2 %(576+(d&1)), 576
.else
fip k0, d
.endif
fip k0+1, d
fip k0+2, d
fip k0+3, d
.set l, l+1
.endr
.set ks, ks+1
.endr
.set mtg, mtg+1
.endr
.size TAB_FI, 663552
.noaltmacro
""")
    s.append(".p2align 8\n.type TAB_TW,@object\nTAB_TW:")
    def emit(vals):
        for i in range(0, len(vals), 8):
            s.append(".long " + ",".join(hex(v) for v in vals[i:i+8]))
    v = []
    for t in range(256):
        a = -2 * math.pi * t / 2048
        v += [f2u(math.cos(a)), f2u(math.sin(a))]
    emit(v)
    s.append(".size TAB_TW, 2048")
    return struct.unpack("<I", struct.pack("<f", x))[0]

def bf16(x):
    u = f2u(x)
    return (u + 0x7fff + ((u >> 16) & 1)) >> 16

def tables():
    c = math.sqrt(2 / 576)
    s = [".p2align 8"]
    vals = [bf16(c * math.cos(2 * math.pi * n / 576)) if n % 288 != 144 else 0 for n in range(576)]
    vals += [bf16(1 / 24), bf16(-1 / 24)]
    for n, v in enumerate(vals):
        s.append(f".set C{n}, {v}")
    s.append(r"""
.altmacro
.macro emit2 a, b
.short C\a, C\b
.endm
.macro ftp k, off, d
emit2 %((\k*(\d)+\off)%576), %((\k*((\d)+1)+\off)%576)
.endm
.macro fip k, d
emit2 %((\k)*\d%576), %(((\k)*\d+144)%576)
.endm
.type TAB_FT,@object
TAB_FT:
.set mtg, 0
.rept 36
.set ks, 0
.rept 18
.set l, 0
.rept 64
.set f, 16*mtg + (l & 15)
.if f == 0
.short C576, C577, C576, C577, C576, C577, C576, C577
.elseif f == 1
.short C576, C576, C576, C576, C576, C576, C576, C576
.else
.set d0, 32*ks + 8*(l >> 4)
.set kk, f >> 1
.set off, 144*(f & 1)
ftp kk, off, d0
ftp kk, off, d0+2
ftp kk, off, d0+4
ftp kk, off, d0+6
.endif
.set l, l+1
.endr
.set ks, ks+1
.endr
.set mtg, mtg+1
.endr
.size TAB_FT, 663552
.type TAB_FI,@object
TAB_FI:
.set mtg, 0
.rept 36
.set ks, 0
.rept 18
.set l, 0
.rept 64
.set d, 16*mtg + (l & 15)
.set k0, 16*ks + 4*(l >> 4)
.if k0 == 0
emit2 %(576+(d&1)), 576
.else
fip k0, d
.endif
fip k0+1, d
fip k0+2, d
fip k0+3, d
.set l, l+1
.endr
.set ks, ks+1
.endr
.set mtg, mtg+1
.endr
.size TAB_FI, 663552
.noaltmacro
""")
    s.append(".p2align 8\n.type TAB_TW,@object\nTAB_TW:")
    def emit(vals):
        for i in range(0, len(vals), 8):
            s.append(".long " + ",".join(hex(v) for v in vals[i:i+8]))
    for n, m in ((2048, 256), (256, 32), (32, 4)):
        v = []
        for k in range(1, 8):
            for t in range(m):
                a = -2 * math.pi * ((t * k) % n) / n
                v += [f2u(math.cos(a)), f2u(math.sin(a))]
        emit(v)
    s.append(f".size TAB_TW, {7 * (256 + 32 + 4) * 8}")
    return "\n".join(s) + "\n"
```

```python
import sys
from gen_common import *
import gen_p0, gen_fft, gen_prep, gen_attn, tables

NAME = "interleave_layers__spectral_gfnet__grouped_kv_mqa__prompt_kernel"

HEADER = """; Kernarg layout (88 bytes, ptrs only, base s[0:1]):
; @launch grid=(256,1,1) block=(512,1,1) lds=163840
.amdgcn_target "amdgcn-amd-amdhsa--gfx950"
.text
.globl {n}
.p2align 8
.type {n},@function
{n}:
"""

FOOTER = """.section .rodata,"a"
.p2align 6
.amdhsa_kernel {n}
  .amdhsa_next_free_vgpr {v}
  .amdhsa_next_free_sgpr {s}
  .amdhsa_accum_offset {v}
  .amdhsa_group_segment_fixed_size 0
  .amdhsa_kernarg_size 88
  .amdhsa_user_sgpr_count 2
  .amdhsa_user_sgpr_kernarg_segment_ptr 1
  .amdhsa_system_sgpr_workgroup_id_x 1
  .amdhsa_float_denorm_mode_32 3
.end_amdhsa_kernel
"""


DBG_SLOTS = [("p0 loaded", 1, 0), ("p0 done", 1, 0), ("bar0", 1, 0), ("s done", 1, 0), ("bar1", 1, 0), ("bar2", 1, 0),
             ("kv loaded", 1, 0), ("attn done", 1, 0), ("bar4", 1, 0), ("bar1", 1, 1), ("bar2", 1, 1), ("attn done", 1, 1),
             ("bar3", 1, 1), ("end", 1, 1)]


def build(stop=99, profile=False, dbgprof=False):
    e = Gen()
    e.profile = profile
    if dbgprof:
        e.dbgprof = DBG_SLOTS
    A = gen_attn

    def halt(k):
        if stop == k:
            e("s_branch L_fin")

    def fft_wg(fn):
        sk = e.L("fftwg")
        e("s_cmp_ge_u32 s2, 144")
        e(f"s_cbranch_scc1 {sk}")
        fn(e)
        e.label(sk)

    e.prologue()
    e(f"s_mov_b32 s{S_X+6}, 0")
    e(f"s_mov_b32 s{A.S_WQOK}, 0")
    e.stamp('start')
    gen_p0.p0(e, lambda: fft_wg(gen_fft.tw_loads))
    e.stamp('p0 done')
    e.arrive(0, go_check=True)
    e.label("L_layer")
    nof, sdone, p5 = e.L("nofft"), e.L("sdone"), e.L("prep5")
    e("s_cmp_ge_u32 s2, 144")
    e(f"s_cbranch_scc1 {nof}")
    gen_fft.tw_powers(e)
    e.wait(0, per_layer=True)
    e.stamp('bar0')
    e(f"s_cmp_eq_u32 s{S_LAYER}, 0")
    e.sel(S_X, X0, X2)
    e.sel(S_X+1, X1, X3)
    e.sel(S_X+2, PART0, PART2)
    gen_fft.sfilter(e, S_X, S_X + 1, S_X + 2, A.S_WQOK)
    e(f"s_branch {sdone}")
    e.label(nof)
    e("s_waitcnt vmcnt(0)")
    e(f"s_cmp_lg_u32 s{S_LAYER}, 0")
    e(f"s_cbranch_scc1 {p5}")
    gen_prep.prep_phase1(e)
    e(f"s_branch {sdone}")
    e.label(p5)
    A.wq_main(e)
    e(f"s_mov_b32 s{A.S_WQOK}, 1")
    e.label(sdone)
    e.stamp('s done')
    e.arrive(1, per_layer=True)
    nsig = e.L("nosig")
    e(f"s_or_b32 s50, s{S_WAVE}, s{S_LAYER}")
    e("s_cmp_lg_u32 s50, 0")
    e(f"s_cbranch_scc1 {nsig}")
    e(f"s_cmp_eq_u32 s{S_X+6}, 0")
    e(f"s_cbranch_scc1 {nsig}")
    e.signal_word(CNT_WQ)
    e.label(nsig)
    nq = e.L("nowq")
    e(f"s_cmp_lg_u32 s{A.S_WQOK}, 0")
    e(f"s_cbranch_scc1 {nq}")
    e(f"s_cmp_eq_u32 s{S_WAVE}, 7")
    e(f"s_cbranch_scc1 {nq}")
    A.wq_ready_spin(e)
    A.wq_main(e)
    e(f"s_mov_b32 s{A.S_WQOK}, 1")
    e.label(nq)
    e.wait(1, per_layer=True)
    e.stamp('bar1')
    halt(1)
    e(f"s_cmp_eq_u32 s{S_LAYER}, 0")
    e.sel(A.S_XIN, X1, X3)
    e.sel(A.S_KV, KV0, KV1)
    e.sel(A.S_OB, O0, O1)
    A.p2(e)
    e.stamp('p2 done')
    e(f"s_mov_b32 s{A.S_FB}, 0")
    e.label("L_redo")
    A.attention_setup(e)
    e.wait(2, per_layer=True, target=2 * (256 // NSHARD), first_sleep=0)
    e.stamp('bar2')
    halt(2)
    A.attention(e)
    e.stamp('attn done')
    e.arrive(group=True)
    last = e.L("last")
    e(f"s_cmp_lg_u32 s{S_LAYER}, 0")
    e(f"s_cbranch_scc1 {last}")
    A.tail_weights(e, True, 60)
    e.wait(group=True, first_sleep=4)
    e.stamp('bar3')
    halt(3)
    A.p4(e)
    fft_wg(gen_fft.tw_loads)
    e(f"s_mov_b32 s{S_X}, {X2}")
    e(f"s_mov_b32 s{S_X+1}, {PART2}")
    e.xhat_epilogue(S_X, S_X + 1)
    e.stamp('p4 done')
    e.arrive(3)
    halt(4)
    e(f"s_mov_b32 s{S_LAYER}, 1")
    e("s_branch L_layer")
    e.label(last)
    A.p8_pre(e)
    e.wait(group=True, first_sleep=4)
    e.stamp('bar3')
    A.p8(e)
    A.out_epilogue(e)
    e.label("L_fin")
    e.dump_stamps()
    e.label("L_end")
    e("s_endpgm")
    e.label("L_code_end")
    n = e.fix_hazards()
    errs = e.check_waits([(w, g) for w in (0, 1, 2, 4, 6, 7) for g in (0, 5, 150, 200)])
    for x in errs[:40]:
        print("WAITCHECK:", x, file=sys.stderr)
    mv, ms = e.max_regs()
    print(f"instructions={sum(1 for i in e.ins if i.mn)} nops_inserted={n} vgpr={mv} sgpr={ms} waiterrs={len(errs)}", file=sys.stderr)
    assert mv <= 256 and ms <= 102
    if profile:
        open("stamps.txt", "w").write("\n".join(e.stamp_names))
    return HEADER.format(n=NAME) + e.text() + FOOTER.format(n=NAME, v=256, s=102) + tables.tables()


if __name__ == "__main__":
    stop = int(sys.argv[2]) if len(sys.argv) > 2 else 99
    prof = len(sys.argv) > 3 and sys.argv[3] == "prof"
    dbg = len(sys.argv) > 3 and sys.argv[3] == "dbg"
    open(sys.argv[1], "w").write(build(stop, prof, dbg))
```

```python
import re

REG_RE = re.compile(r"^(-|\|)?([vsa])(\d+)\|?$")
RANGE_RE = re.compile(r"^(-|\|)?([vsa])\[(\d+):(\d+)\]\|?$")
TRANS = ("v_exp_f32", "v_log_f32", "v_rcp_f32", "v_rsq_f32", "v_sqrt_f32", "v_sin_f32", "v_cos_f32",
         "v_exp_f16", "v_rcp_iflag_f32")


def regs_of(op):
    op = op.strip()
    m = REG_RE.match(op)
    if m:
        return {(m.group(2), int(m.group(3)))}
    m = RANGE_RE.match(op)
    if m:
        return {(m.group(2), i) for i in range(int(m.group(3)), int(m.group(4)) + 1)}
    if op == "vcc":
        return {("s", "vcc_lo"), ("s", "vcc_hi")}
    if op in ("vcc_lo", "vcc_hi"):
        return {("s", op)}
    if op == "exec":
        return {("s", "exec_lo"), ("s", "exec_hi")}
    if op in ("exec_lo", "exec_hi"):
        return {("s", op)}
    if op == "m0":
        return {("s", "m0")}
    return set()


class Ins:
    __slots__ = ("text", "mn", "ops", "mods", "defs", "uses", "kind", "label", "target", "passes", "srcc", "sdata")

    def __init__(self, text):
        self.text = text
        self.label = None
        self.target = None
        self.passes = 0
        self.srcc = set()
        self.sdata = set()
        self.defs = set()
        self.uses = set()
        t = text.split(";")[0].strip()
        if t.endswith(":") and " " not in t:
            self.label = t[:-1]
            self.mn = None
            self.kind = "label"
            self.ops = []
            self.mods = ""
            return
        if not t or t.startswith("."):
            self.mn = None
            self.kind = "dir"
            self.ops = []
            self.mods = ""
            return
        parts = t.split(None, 1)
        self.mn = mn = parts[0]
        rest = parts[1] if len(parts) > 1 else ""
        toks = []
        depth = 0
        cur = ""
        for ch in rest:
            if ch == "[":
                depth += 1
            if ch == "]":
                depth -= 1
            if ch == "," and depth == 0:
                toks.append(cur.strip())
                cur = ""
            else:
                cur += ch
        if cur.strip():
            toks.append(cur.strip())
        mods = ""
        if toks:
            last = toks[-1].split(None, 1)
            if len(last) > 1:
                toks[-1] = last[0]
                mods = last[1]
        self.ops = toks
        self.mods = mods
        self._classify()

    def _classify(self):
        mn, ops = self.mn, self.ops
        R = lambda i: regs_of(ops[i]) if i < len(ops) else set()
        allr = lambda a: set().union(*[regs_of(o) for o in ops[a:]]) if len(ops) > a else set()
        if mn.startswith("v_mfma"):
            self.kind = "mfma"
            self.defs = R(0)
            self.uses = R(1) | R(2) | R(3)
            self.srcc = R(3)
            if "32x32x16" in mn or "32x32x8" in mn:
                self.passes = 8
            elif "16x16x32" in mn or "16x16x16" in mn:
                self.passes = 4
            else:
                raise ValueError("unknown mfma " + mn)
        elif mn.startswith("v_"):
            self.kind = "valu"
            if mn.startswith("v_cmp"):
                self.defs = R(0)
                self.uses = allr(1)
            elif mn.startswith("v_readfirstlane") or mn.startswith("v_readlane"):
                self.defs = R(0)
                self.uses = allr(1)
            elif mn.startswith("v_permlane") and "swap" in mn:
                self.defs = R(0) | R(1)
                self.uses = R(0) | R(1)
            elif mn.startswith(("v_add_co", "v_sub_co", "v_addc_co", "v_subb_co")):
                self.defs = R(0) | R(1)
                self.uses = allr(2)
            elif mn.startswith("v_cndmask"):
                self.defs = R(0)
                self.uses = allr(1)
                if len(ops) == 3:
                    self.uses |= regs_of("vcc")
            elif mn.startswith(("v_fmac", "v_dot2c", "v_pk_fmac", "v_writelane")):
                self.defs = R(0)
                self.uses = allr(0)
            else:
                self.defs = R(0)
                self.uses = allr(1)
            if "dst_unused:UNUSED_PRESERVE" in self.mods:
                self.uses |= R(0)
        elif mn.startswith("buffer_"):
            self.kind = "vmem"
            lds = re.search(r"\blds\b", self.mods) is not None
            if lds:
                self.uses = allr(0) | {("s", "m0")}
            elif mn.startswith("buffer_load"):
                self.defs = R(0)
                self.uses = allr(1)
                if "d16" in mn:
                    self.uses |= R(0)
            elif mn.startswith("buffer_store"):
                self.uses = allr(0)
                self.sdata = R(0)
            elif mn.startswith("buffer_atomic"):
                self.uses = allr(0)
                if re.search(r"\bsc0\b", self.mods):
                    self.defs = R(0)
            else:
                self.uses = allr(0)
        elif mn.startswith("global_"):
            self.kind = "vmem"
            if mn.startswith("global_load"):
                self.defs = R(0)
                self.uses = allr(1)
            else:
                self.uses = allr(0)
                self.sdata = R(1)
        elif mn.startswith("ds_"):
            self.kind = "ds"
            if mn.startswith(("ds_read", "ds_bpermute", "ds_permute", "ds_swizzle")):
                self.defs = R(0)
                self.uses = allr(1)
            else:
                self.uses = allr(0)
        elif mn.startswith(("s_load", "s_memtime", "s_memrealtime")):
            self.kind = "smem"
            self.defs = R(0)
            self.uses = allr(1)
        elif mn in ("s_branch",) or mn.startswith("s_cbranch"):
            self.kind = "branch"
            self.target = self.ops[0]
            if "vcc" in mn:
                self.uses = regs_of("vcc")
            if "exec" in mn:
                self.uses = regs_of("exec")
        elif mn in ("s_waitcnt", "s_nop", "s_barrier", "s_endpgm", "s_sleep", "s_setprio"):
            self.kind = "ctl"
        elif mn.startswith("s_"):
            self.kind = "salu"
            if mn.startswith(("s_cmp", "s_bitcmp")):
                self.uses = allr(0)
            elif "saveexec" in mn:
                self.defs = R(0) | regs_of("exec")
                self.uses = allr(1) | regs_of("exec")
            elif mn.startswith(("s_addk", "s_mulk")):
                self.defs = R(0)
                self.uses = R(0)
            else:
                self.defs = R(0)
                self.uses = allr(1)
        else:
            raise ValueError("unknown instruction: " + self.text)

    def states(self):
        if self.mn is None:
            return 0
        if self.mn == "s_nop":
            return int(self.ops[0], 0) + 1
        return 1


def is_v(rs):
    return {r for r in rs if r[0] in "va"}


def is_s(rs):
    return {r for r in rs if r[0] == "s"}


def need(p, c):
    n = 0
    pv, ps = is_v(p.defs), is_s(p.defs)
    if p.kind == "valu" and p.mn.startswith("v_dot"):
        if c.mn == p.mn:
            ab = set().union(*[regs_of(o) for o in c.ops[1:3]])
            if pv & ab:
                n = max(n, 3)
        elif pv & (c.uses | c.defs):
            n = max(n, 3)
    if p.kind == "valu":
        if c.kind == "mfma" and pv & is_v(c.uses):
            n = max(n, 2)
        if c.kind == "valu":
            if p.mn in TRANS and c.mn not in TRANS and pv & c.uses:
                n = max(n, 1)
            if p.mn in TRANS and c.mn in TRANS and pv & c.uses:
                n = max(n, 1)
            if c.mn.startswith(("v_readfirstlane", "v_readlane")) and pv & c.uses:
                n = max(n, 1)
            if (c.mn.startswith("v_permlane") or "dpp" in c.mn or "quad_perm" in c.mods or "row_" in c.mods) and pv & c.uses:
                n = max(n, 2)
            if ps & is_s(c.uses):
                n = max(n, 4 if c.mn.startswith(("v_readlane", "v_writelane")) else 2)
            if "sdwa" in p.mn and "dst_sel:DWORD" not in p.mods and pv & (c.uses | c.defs):
                n = max(n, 1)
        if c.kind == "vmem" and ps & is_s(c.uses):
            n = max(n, 5)
        if c.kind == "salu" and ps & is_s(c.uses):
            n = max(n, 4)
        if c.kind == "branch" and ps & is_s(c.uses):
            n = max(n, 5)
    if p.kind == "mfma":
        big = p.passes == 8
        if c.kind in ("valu", "vmem", "ds") and pv & (c.uses | c.defs):
            n = max(n, 12 if big else 8)
        if c.kind == "mfma":
            ab = (regs_of(c.ops[1]) | regs_of(c.ops[2]))
            if pv & ab:
                n = max(n, 12 if big else 8)
            if pv & c.srcc:
                if not (pv == c.srcc and p.passes == c.passes):
                    n = max(n, 10 if big else 6)
            elif pv & c.defs:
                n = max(n, 10 if big else 6)
        if c.kind == "valu" and p.srcc & is_v(c.defs):
            n = max(n, 7 if big else 3)
    if p.kind == "vmem" and len(p.sdata) >= 3 and p.sdata & is_v(c.defs):
        n = max(n, 2 if c.kind in ("valu", "mfma") else 1)
    if p.kind == "salu" and ("s", "m0") in p.defs and c.kind == "vmem" and ("s", "m0") in c.uses:
        n = max(n, 1)
    return n


class Prog:
    def __init__(self):
        self.ins = []

    def __call__(self, text):
        for line in text.split("\n"):
            line = line.strip()
            if line:
                self.ins.append(Ins(line))

    def label(self, name):
        self.ins.append(Ins(name + ":"))

    def _preds(self):
        labels = {i.label: n for n, i in enumerate(self.ins) if i.label}
        preds = [[] for _ in self.ins]
        for n, i in enumerate(self.ins):
            if i.kind == "branch":
                if i.target not in labels:
                    raise ValueError("undefined label " + i.target)
                preds[labels[i.target]].append(n)
            if n + 1 < len(self.ins) and i.mn not in ("s_branch", "s_endpgm"):
                preds[n + 1].append(n)
        return preds

    def fix_hazards(self, maxd=13):
        total = 0
        while True:
            preds = self._preds()
            ins = self.ins
            inserts = {}
            for n, c in enumerate(ins):
                if c.mn is None or c.kind in ("ctl",):
                    continue
                worst = 0
                stack = [(p, 0) for p in preds[n]]
                seen = {}
                while stack:
                    p, d = stack.pop()
                    if seen.get(p, 99) <= d:
                        continue
                    seen[p] = d
                    pi = ins[p]
                    if pi.mn is not None:
                        k = need(pi, c)
                        if k > d:
                            worst = max(worst, k - d)
                    nd = d + pi.states()
                    if nd < maxd:
                        for q in preds[p]:
                            stack.append((q, nd))
                if worst:
                    inserts[n] = worst
            if not inserts:
                break
            first = True
            out = []
            last = -99
            for n, c in enumerate(ins):
                if n in inserts and n - last > 16:
                    k = inserts[n]
                    out.append(Ins(f"s_nop {k - 1}"))
                    total += 1
                    last = n
                out.append(c)
            self.ins = out
        return total

    def check_waits(self, cases=None):
        errors = {}
        for wave, wg in (cases or [(None, None)]):
            for k, v in self._check_waits_case(wave, wg).items():
                errors.setdefault(k, v + f"   [wave {wave}, wg {wg}]")
        return list(errors.values())

    def _check_waits_case(self, wave, wg, s_wave=26, s_layer=45):
        ins = self.ins
        labels = {i.label: n for n, i in enumerate(ins) if i.label}
        NOSCC = ("s_mov_b32", "s_mov_b64", "s_mul_i32", "s_mul_hi_u32", "s_cselect_b32", "s_cselect_b64", "s_getpc_b64")
        CMP = {"eq": lambda a, b: a == b, "lg": lambda a, b: a != b, "ge": lambda a, b: a >= b, "gt": lambda a, b: a > b,
               "le": lambda a, b: a <= b, "lt": lambda a, b: a < b}
        state = {}
        start = (0, None)
        state[start] = ({}, {}, frozenset(), None)
        work = [start]
        errors = {}
        while work:
            key = work.pop()
            n, layer = key
            vm, lg, sm, scc = state[key]
            vm, lg, sm = dict(vm), dict(lg), set(sm)
            i = ins[n]
            succ = []
            if i.mn is not None:
                touched = i.uses | i.defs
                for tag, d in (("vmcnt", vm), ("lgkmcnt", lg)):
                    for op in d:
                        hit = ins[op].defs & touched
                        if hit and op != n:
                            errors[(n, op)] = f"{tag}: line {n} '{i.text}' touches {sorted(hit)[:3]} of in-flight '{ins[op].text}'"
                for r in sm:
                    if r in touched:
                        errors[(n, r)] = f"smem: line {n} '{i.text}' touches in-flight {r}"
                if i.mn == "s_waitcnt":
                    t = " ".join(i.ops) + " " + i.mods
                    m = re.search(r"vmcnt\((\d+)\)", t)
                    if m:
                        k = int(m.group(1))
                        vm = {op: c for op, c in vm.items() if c < k}
                    m = re.search(r"lgkmcnt\((\d+)\)", t)
                    if m:
                        k = int(m.group(1))
                        if k == 0:
                            lg = {}
                            sm = set()
                        else:
                            lg = {op: c for op, c in lg.items() if c < k}
                elif i.kind == "vmem":
                    vm = {op: min(c + 1, 64) for op, c in vm.items()}
                    if i.defs:
                        vm[n] = 0
                elif i.kind == "ds":
                    lg = {op: min(c + 1, 16) for op, c in lg.items()}
                    if i.defs:
                        lg[n] = 0
                elif i.kind == "smem":
                    sm |= i.defs
                elif i.kind == "salu":
                    m = re.match(r"s_cmp_(eq|lg|ge|gt|le|lt)_u32$", i.mn)
                    if m:
                        known = {f"s{s_wave}": wave, "s2": wg, f"s{s_layer}": layer}
                        a = known.get(i.ops[0])
                        try:
                            b = int(i.ops[1], 0)
                        except ValueError:
                            b = None
                        scc = CMP[m.group(1)](a, b) if (a is not None and b is not None) else None
                    elif i.mn not in NOSCC:
                        scc = None
                    if i.mn == "s_mov_b32" and i.ops[0] == f"s{s_layer}":
                        layer = int(i.ops[1], 0)
            if i.kind == "branch":
                taken = None
                if i.mn == "s_branch":
                    taken = True
                elif i.mn == "s_cbranch_scc1" and scc is not None:
                    taken = scc
                elif i.mn == "s_cbranch_scc0" and scc is not None:
                    taken = not scc
                if taken is not False:
                    succ.append(labels[i.target])
                if taken is not True and n + 1 < len(ins):
                    succ.append(n + 1)
            elif i.mn != "s_endpgm" and n + 1 < len(ins):
                succ.append(n + 1)
            for s_ in succ:
                k2 = (s_, layer)
                if k2 not in state:
                    state[k2] = (vm, lg, frozenset(sm), scc)
                    work.append(k2)
                else:
                    ovm, olg, osm, oscc = state[k2]
                    nvm = dict(ovm)
                    for op, c in vm.items():
                        nvm[op] = min(c, nvm.get(op, 99))
                    nlg = dict(olg)
                    for op, c in lg.items():
                        nlg[op] = min(c, nlg.get(op, 99))
                    nsm = osm | frozenset(sm)
                    nscc = oscc if oscc == scc else None
                    if nvm != ovm or nlg != olg or nsm != osm or nscc != oscc:
                        state[k2] = (nvm, nlg, nsm, nscc)
                        work.append(k2)
        return errors

    def max_regs(self):
        mv = ms = 0
        for i in self.ins:
            for r in i.defs | i.uses:
                if r[0] == "v":
                    mv = max(mv, r[1] + 1)
                elif r[0] == "s" and isinstance(r[1], int):
                    ms = max(ms, r[1] + 1)
        return mv, ms

    def text(self):
        out = []
        for i in self.ins:
            out.append(i.text if (i.label or i.kind == "dir") else "  " + i.text)
        return "\n".join(out) + "\n"
```

```python
from gen_common import *

RES = 244
KA = 208
SA, SB, OA, OB = 16, 32, 48, 136
PA_, PB_ = 152, 160
K1, K2 = 168, 172
V0, V1 = 176, 180
QA1, QA2, QB1, QB2 = 184, 188, 192, 196
AK1, AK2, AV = 198, 199, 200
L_REDX = 0
L_OX = 0
S_XIN, S_KV, S_OB, S_FB = S_X, S_X + 1, S_X + 2, S_X + 4
QSCALE = "0x3eae1a93"


def xtile_bases(e, va, vb, base=L_XT2):
    e(f"s_and_b32 s50, s{S_WAVE}, 1")
    e(f"v_and_b32 v4, 1, v{V_GQ}")
    e("v_xor_b32 v4, s50, v4")
    e(f"v_lshlrev_b32 v5, 9, v{V_GQ}")
    e("v_lshl_add_u32 v5, v4, 7, v5")
    e(f"v_lshl_add_u32 v5, v{V_R16}, 3, v5")
    e(f"v_add_u32 v{va}, {base}, v5")
    e(f"v_xor_b32 v{vb}, 128, v{va}")


def tile_dma(e, s_src, lds_base, vlane16):
    e(f"s_mul_i32 s54, s{S_QB}, 36864")
    e(f"s_add_u32 s54, s54, s{s_src}")
    for m in range(5):
        skip = None
        if m == 4:
            skip = e.L("tdma")
            e(f"s_cmp_ge_u32 s{S_WAVE}, 4")
            e(f"s_cbranch_scc1 {skip}")
        e(f"s_add_u32 s50, s{S_WAVE}, {8*m}")
        e("s_lshl_b32 s50, s50, 10")
        if lds_base:
            e(f"s_add_u32 m0, s50, {lds_base}")
        else:
            e("s_mov_b32 m0, s50")
        e("s_add_u32 s50, s50, s54")
        e(f"buffer_load_dwordx4 v{vlane16}, {srd(SRD_WS)}, s50 offen sc1 lds")
        if skip:
            e.label(skip)


def wq_main(e, v=60):
    e(f"v_lshlrev_b32 v{v}, 4, v{V_LANE}")
    e(f"s_mul_i32 s57, s{S_HG}, 9")
    e(f"s_add_u32 s57, s57, s{S_WAVE}")
    e(f"s_mul_i32 s57, s57, 18432")
    e(f"s_add_u32 s57, s57, {WQF}")
    e.load_a_frags(SRD_WS, 57, G_A, flags="sc1", vlane16=v)


def wq_extra(e):
    nx = e.L("wqnx")
    e(f"s_cmp_ge_u32 s{S_WAVE}, 2")
    e(f"s_cbranch_scc1 {nx}")
    e(f"v_lshlrev_b32 v60, 4, v{V_LANE}")
    e(f"s_mul_i32 s57, s{S_HG}, 9")
    e("s_add_u32 s57, s57, 8")
    e(f"s_mul_i32 s57, s57, 18432")
    e(f"s_add_u32 s57, s57, {WQF}")
    e.load_a_frags(SRD_WS, 57, G_AX, flags="sc1", vlane16=60)
    e.label(nx)


S_WQOK = S_X + 7


def wq_ready_spin(e):
    lp, ok = e.L("wqspin"), e.L("wqok")
    e(f"v_mov_b32 v4, {CNT_WQ}")
    e("s_mov_b32 s48, 0")
    e.label(lp)
    e(f"buffer_load_dword v5, v4, {srd(SRD_WS)}, 0 offen sc1")
    e("s_waitcnt vmcnt(0)")
    e("v_readfirstlane_b32 s49, v5")
    e("s_add_u32 s48, s48, 1")
    e(f"s_cmp_gt_u32 s48, {SPIN_LIMIT}")
    e(f"s_cbranch_scc1 {ok}")
    e("s_cmp_ge_u32 s49, 50")
    e(f"s_cbranch_scc1 {ok}")
    e("s_sleep 2")
    e(f"s_branch {lp}")
    e.label(ok)


def p2(e):
    e(f"v_lshlrev_b32 v60, 4, v{V_LANE}")
    tile_dma(e, S_XIN, L_XT2, 60)
    nk = e.L("p2nk")
    e(f"s_cmp_lt_u32 s{S_WAVE}, 6")
    e(f"s_cbranch_scc1 {nk}")
    e(f"s_add_u32 s57, s{S_HG}, 36")
    e("s_mul_i32 s57, s57, 18432")
    e(f"s_add_u32 s57, s57, {WQF}")
    e.load_a_frags(SRD_WS, 57, G_AX, flags="sc1", vlane16=60)
    e.label(nk)
    e(f"v_mov_b32 v4, {L_FLAG}")
    e("v_mov_b32 v5, 0")
    e("ds_write_b32 v4, v5")
    xtile_bases(e, 56, 57)
    kvw, wd = e.L("p2kv"), e.L("p2wd")
    e(f"s_cmp_ge_u32 s{S_WAVE}, 6")
    e(f"s_cbranch_scc1 {kvw}")
    e("s_waitcnt vmcnt(0) lgkmcnt(0)")
    e("s_barrier")
    e.stamp("p2 loaded")
    e(f"s_branch {wd}")
    e.label(kvw)
    e("s_setprio 3")
    e("s_waitcnt vmcnt(18) lgkmcnt(0)")
    e("s_barrier")
    kv_project(e)
    e("s_setprio 0")
    e.stamp("kv signal")
    e.label(wd)
    hv = e.L("havewq")
    e(f"s_cmp_lg_u32 s{S_WQOK}, 0")
    e(f"s_cbranch_scc1 {hv}")
    wq_main(e)
    e.label(hv)
    wq_extra(e)
    e.g144_both("x", 56, 57, vm_fn=lambda ks, ex: 17 - ks)
    e(f"s_mov_b32 s{S_WQOK}, 0")
    e.stamp("q gemm")
    e("s_waitcnt lgkmcnt(0)")
    e("s_barrier")
    e(f"s_and_b32 s50, s{S_WAVE}, 1")
    e("s_lshl_b32 s50, s50, 6")
    e(f"s_add_u32 s50, s50, {L_INV}")
    e(f"v_lshlrev_b32 v4, 2, v{V_R16}")
    e("v_add_u32 v4, s50, v4")
    e("v_xor_b32 v5, 64, v4")
    e("ds_read_b32 v58, v4")
    e("ds_read_b32 v59, v5")
    e("s_waitcnt lgkmcnt(0)")
    e(f"v_mul_f32 v58, {QSCALE}, v58")
    e(f"v_mul_f32 v59, {QSCALE}, v59")
    q_stage(e)
    rdone = e.L("resdone")
    e(f"s_cmp_lg_u32 s{S_LAYER}, 0")
    e(f"s_cbranch_scc1 {rdone}")
    e(f"s_mul_i32 s50, s{S_HG}, 36")
    e(f"s_lshl_b32 s51, s{S_WAVE}, 2")
    e("s_add_u32 s51, s51, s50")
    e("s_lshl_b32 s51, s51, 8")
    e(f"s_add_u32 s51, s51, {L_XT2}")
    e("s_add_u32 s52, s50, 32")
    e("s_lshl_b32 s52, s52, 8")
    e(f"s_add_u32 s52, s52, {L_XT2}")
    e(f"s_and_b32 s53, s{S_WAVE}, 1")
    e(f"v_lshrrev_b32 v4, 1, v{V_GQ}")
    e("v_xor_b32 v5, s53, v4")
    e(f"v_lshlrev_b32 v6, 8, v{V_GQ}")
    e(f"v_lshl_add_u32 v6, v{V_R16}, 3, v6")
    e("v_lshl_add_u32 v7, v5, 7, v6")
    e("v_xor_b32 v8, 128, v7")
    e("v_add_u32 v9, s51, v7")
    e("v_add_u32 v10, s51, v8")
    e("v_add_u32 v11, s52, v7")
    e(f"ds_read_b64 {vr(RES,2)}, v9")
    e(f"ds_read_b64 {vr(RES+2,2)}, v10")
    e(f"ds_read_b64 {vr(RES+4,2)}, v11")
    e.label(rdone)
    e("s_waitcnt lgkmcnt(0)")
    e("s_barrier")
    e(f"s_and_b32 s50, s{S_WAVE}, 3")
    e("s_mul_i32 s50, s50, 72")
    e(f"s_add_u32 s50, s50, {L_QL}")
    e(f"v_and_b32 v4, 31, v{V_LANE}")
    e(f"v_mul_u32_u24 v4, {QL_PITCH}, v4")
    e("v_add_u32 v4, s50, v4")
    e(f"v_lshrrev_b32 v5, 5, v{V_LANE}")
    e("v_lshl_add_u32 v5, v5, 4, v4")
    e(f"ds_read2_b32 {vr(QA1,2)}, v5 offset0:0 offset1:1")
    e(f"ds_read2_b32 {vr(QA1+2,2)}, v5 offset0:2 offset1:3")
    e(f"ds_read2_b32 {vr(QB1,2)}, v5 offset0:9 offset1:10")
    e(f"ds_read2_b32 {vr(QB1+2,2)}, v5 offset0:11 offset1:12")
    e(f"ds_read_b32 v{QA2}, v4 offset:32")
    e(f"ds_read_b32 v{QB2}, v4 offset:68")
    e(f"v_cmp_gt_u32 vcc, 32, v{V_LANE}")
    e("v_mov_b32 v6, 0")
    e("s_waitcnt lgkmcnt(0)")
    e(f"v_cndmask_b32 v{QA2}, v6, v{QA2}, vcc")
    e(f"v_cndmask_b32 v{QB2}, v6, v{QB2}, vcc")


def kv_project(e):
    def rd(ks):
        b = 16 + 4 * (ks % 3)
        e(f"ds_read_b64 {vr(b,2)}, v56 offset:{ks*2048}")
        e(f"ds_read_b64 {vr(b+2,2)}, v56 offset:{ks*2048+256}")
    e("v_mov_b32 v8, 0")
    e("v_mov_b32 v9, 0")
    rd(0)
    rd(1)
    for ks in range(18):
        if ks + 2 < 18:
            rd(ks + 2)
        e(f"s_waitcnt vmcnt({17 - ks}) lgkmcnt({min(2, 17 - ks) * 2})")
        b = 16 + 4 * (ks % 3)
        c = "0" if ks == 0 else "v[10:13]"
        e(f"v_mfma_f32_16x16x32_bf16 v[10:13], {vr(G_AX+4*ks,4)}, {vr(b,4)}, {c}")
        first = b
        if ks == 0:
            e(f"v_and_b32 v15, 0xffff, v{b}")
            e(f"v_cmp_eq_u32 vcc, 0, v{V_GQ}")
            e(f"v_cndmask_b32 v14, v{b}, v15, vcc")
            first = 14
        e(f"v_dot2c_f32_bf16 v8, v{first}, v{first}")
        e(f"v_dot2c_f32_bf16 v9, v{b+1}, v{b+1}")
        e(f"v_dot2c_f32_bf16 v8, v{b+2}, v{b+2}")
        e(f"v_dot2c_f32_bf16 v9, v{b+3}, v{b+3}")
    e("v_add_f32 v9, v8, v9")
    e.sum_over_gq(9, 14)
    e.inv_sigma(9, 14)
    e(f"s_and_b32 s64, s{S_WAVE}, 1")
    e("s_lshl_b32 s65, s64, 6")
    e(f"s_add_u32 s65, s65, {L_INV}")
    e(f"v_lshlrev_b32 v4, 2, v{V_R16}")
    e("v_add_u32 v4, s65, v4")
    e("ds_write_b32 v4, v9")
    d = 52
    for r in range(4):
        e(f"v_mul_f32 v{10+r}, v{10+r}, v9")
    e(f"v_cvt_pk_bf16_f32 v{d}, v10, v11")
    e(f"v_cvt_pk_bf16_f32 v{d+1}, v12, v13")
    nv = e.L("kv_nv")
    e(f"s_bitcmp0_b32 s{S_HG}, 0")
    e(f"s_cbranch_scc1 {nv}")
    e("s_lshl_b32 s50, s64, 9")
    e(f"s_add_u32 s50, s50, {L_REDX}")
    e(f"v_lshlrev_b32 v4, 5, v{V_R16}")
    e(f"v_lshl_add_u32 v4, v{V_GQ}, 3, v4")
    e("v_add_u32 v4, s50, v4")
    e(f"ds_write_b64 v4, {vr(d,2)}")
    e(f"v_lshrrev_b32 v5, 2, v{V_R16}")
    e(f"v_lshl_add_u32 v5, v{V_GQ}, 2, v5")
    e("v_lshlrev_b32 v5, 5, v5")
    e(f"v_and_b32 v6, 3, v{V_R16}")
    e("v_lshl_add_u32 v5, v6, 3, v5")
    e("v_add_u32 v5, s50, v5")
    e("s_waitcnt lgkmcnt(0)")
    e(f"ds_read_b64_tr_b16 {vr(d,2)}, v5")
    e("s_waitcnt lgkmcnt(0)")
    e.label(nv)
    e(f"s_and_b32 s51, s{S_QB}, 31")
    e("s_lshr_b32 s52, s51, 2")
    e(f"s_mul_i32 s52, s52, {CHUNK}")
    e("s_and_b32 s51, s51, 3")
    e(f"s_lshr_b32 s53, s{S_QB}, 5")
    e("s_lshl_b32 s53, s53, 2")
    e("s_add_u32 s51, s51, s53")
    e(f"s_add_u32 s52, s52, s{S_KV}")
    h0, h1, h2, h3, hd = [e.L(f"kvst{i}") for i in range(5)]
    e(f"s_cmp_eq_u32 s{S_HG}, 1")
    e(f"s_cbranch_scc1 {h1}")
    e(f"s_cmp_eq_u32 s{S_HG}, 2")
    e(f"s_cbranch_scc1 {h2}")
    e(f"s_cmp_eq_u32 s{S_HG}, 3")
    e(f"s_cbranch_scc1 {h3}")
    e("s_lshl_b32 s53, s51, 10")
    e("s_add_u32 s53, s53, s52")
    e("s_lshl_b32 s50, s64, 8")
    e("s_add_u32 s53, s53, s50")
    e(f"v_lshrrev_b32 v4, 1, v{V_GQ}")
    e("v_lshlrev_b32 v4, 9, v4")
    e(f"v_lshl_add_u32 v4, v{V_R16}, 4, v4")
    e(f"v_and_b32 v5, 1, v{V_GQ}")
    e("v_lshl_add_u32 v4, v5, 3, v4")
    e(f"buffer_store_dwordx2 {vr(d,2)}, v4, {srd(SRD_WS)}, s53 offen sc1")
    e(f"s_branch {hd}")
    e.label(h2)
    e("s_lshl_b32 s53, s51, 7")
    e("s_add_u32 s53, s53, s52")
    e(f"s_add_u32 s53, s53, {K2_OFF}")
    e("s_lshl_b32 s50, s64, 6")
    e("s_add_u32 s53, s53, s50")
    e(f"v_lshlrev_b32 v4, 2, v{V_R16}")
    e("s_mov_b64 exec, 0xffff")
    e(f"buffer_store_dword v{d}, v4, {srd(SRD_WS)}, s53 offen sc1")
    e("s_mov_b64 exec, -1")
    e(f"s_branch {hd}")
    e.label(h1)
    e(f"s_mul_i32 s53, s51, {VT}")
    e("s_add_u32 s53, s53, s52")
    e(f"s_add_u32 s53, s53, {V_OFF}")
    e("s_mul_i32 s50, s64, 608")
    e("s_add_u32 s53, s53, s50")
    e(f"v_and_b32 v5, 1, v{V_GQ}")
    e("v_mul_u32_u24 v4, 304, v5")
    e(f"v_lshl_add_u32 v4, v{V_R16}, 4, v4")
    e(f"v_lshrrev_b32 v5, 1, v{V_GQ}")
    e("v_lshl_add_u32 v4, v5, 3, v4")
    e(f"buffer_store_dwordx2 {vr(d,2)}, v4, {srd(SRD_WS)}, s53 offen sc1")
    e(f"s_branch {hd}")
    e.label(h3)
    e(f"s_mul_i32 s53, s51, {VT}")
    e("s_add_u32 s53, s53, s52")
    e(f"s_add_u32 s53, s53, {V_OFF + 256}")
    e("s_mul_i32 s50, s64, 608")
    e("s_add_u32 s53, s53, s50")
    e(f"v_and_b32 v5, 1, v{V_GQ}")
    e("v_mul_u32_u24 v4, 304, v5")
    e(f"v_lshl_add_u32 v4, v{V_R16}, 4, v4")
    e(f"v_lshrrev_b32 v5, 1, v{V_GQ}")
    e("v_lshl_add_u32 v4, v5, 3, v4")
    e("v_mov_b32 v6, 0x3f803f80")
    e(f"v_cmp_eq_u32 vcc, 2, v{V_R16}")
    e(f"v_cndmask_b32 v{d}, v{d}, v6, vcc")
    e(f"v_cndmask_b32 v{d+1}, v{d+1}, v6, vcc")
    e(f"v_cmp_gt_u32 vcc, 3, v{V_R16}")
    e("s_and_saveexec_b64 s[62:63], vcc")
    e(f"buffer_store_dwordx2 {vr(d,2)}, v4, {srd(SRD_WS)}, s53 offen sc1")
    e("s_mov_b64 exec, s[62:63]")
    e.label(hd)
    e("s_waitcnt vmcnt(0)")
    e.signal(2, per_layer=True)


def q_stage(e):
    accA, accB, accX = G_ACC, G_ACC + 4, G_ACC + 8
    e(f"s_and_b32 s50, s{S_WAVE}, 1")
    e("s_lshl_b32 s51, s50, 4")
    e(f"v_add_u32 v4, s51, v{V_R16}")
    e("v_xor_b32 v5, 16, v4")
    e(f"v_mul_u32_u24 v4, {QL_PITCH}, v4")
    e(f"v_mul_u32_u24 v5, {QL_PITCH}, v5")
    e(f"v_lshlrev_b32 v6, 3, v{V_GQ}")
    e(f"v_add_u32 v6, {L_QL}, v6")
    e("v_add_u32 v4, v4, v6")
    e("v_add_u32 v5, v5, v6")
    e(f"s_lshl_b32 s52, s{S_WAVE}, 5")
    e("v_add_u32 v7, s52, v4")
    e("v_add_u32 v8, s52, v5")
    for r in range(4):
        e(f"v_mul_f32 v{accA+r}, v{accA+r}, v58")
        e(f"v_mul_f32 v{accB+r}, v{accB+r}, v59")
    e(f"v_cvt_pk_bf16_f32 v10, v{accA}, v{accA+1}")
    e(f"v_cvt_pk_bf16_f32 v11, v{accA+2}, v{accA+3}")
    e(f"v_cvt_pk_bf16_f32 v12, v{accB}, v{accB+1}")
    e(f"v_cvt_pk_bf16_f32 v13, v{accB+2}, v{accB+3}")
    e("ds_write_b64 v7, v[10:11]")
    e("ds_write_b64 v8, v[12:13]")
    nx = e.L("qs_nx")
    e(f"s_cmp_ge_u32 s{S_WAVE}, 2")
    e(f"s_cbranch_scc1 {nx}")
    for r in range(4):
        e(f"v_mul_f32 v{accX+r}, v{accX+r}, v58")
    e(f"v_cvt_pk_bf16_f32 v14, v{accX}, v{accX+1}")
    e(f"v_cvt_pk_bf16_f32 v15, v{accX+2}, v{accX+3}")
    e("ds_write_b64 v4, v[14:15] offset:256")
    e.label(nx)


def max16(e, s, dst):
    e(f"v_max3_f32 v{dst}, v{s}, v{s+1}, v{s+2}")
    for r in range(3, 15, 2):
        e(f"v_max3_f32 v{dst}, v{dst}, v{s+r}, v{s+r+1}")
    e(f"v_max_f32 v{dst}, v{dst}, v{s+15}")


def set_m(e, m, q2):
    e(f"v_sub_f32 v{m}, 0, v{m}")
    e(f"v_cvt_pk_bf16_f32 v4, v{m}, v{m}")
    e("v_lshlrev_b32 v4, 16, v4")
    e(f"v_sub_f32 v5, v{m}, v4")
    e("v_cvt_pk_bf16_f32 v4, v4, v5")
    e(f"v_cmp_gt_u32 vcc, 32, v{V_LANE}")
    e("v_mov_b32 v5, 0")
    e(f"v_cndmask_b32 v{q2+1}, v5, v4, vcc")


def qk(e, s, q1, q2):
    e(f"v_mfma_f32_32x32x16_bf16 {vr(s,16)}, {vr(K1,4)}, {vr(q1,4)}, 0")
    e(f"v_mfma_f32_32x32x8_bf16 {vr(s,16)}, {vr(K2,2)}, {vr(q2,2)}, {vr(s,16)}")


def cross_half_max(e, v):
    e(f"v_mov_b32 v4, v{v}")
    e(f"v_permlane32_swap_b32 v4, v{v}")
    e(f"v_max_f32 v{v}, v{v}, v4")


def half(e, s_exp, p_out, s_new, q1, q2, o_acc, p_in, pre, mid_k, pre_pv, mid_v, extra=None):
    ex = lambda r: e(f"v_exp_f32 v{s_exp+r}, v{s_exp+r}")
    cv = lambda k: e(f"v_cvt_pk_bf16_f32 v{p_out+k}, v{s_exp+2*k}, v{s_exp+2*k+1}")

    def grp(g):
        for r in range(4 * g, 4 * g + 4):
            ex(r)
        cv(2 * g); cv(2 * g + 1)
        if extra:
            extra(g)
    if pre:
        e(pre)
    e(f"v_mfma_f32_32x32x16_bf16 {vr(s_new,16)}, {vr(K1,4)}, {vr(q1,4)}, 0")
    grp(0)
    e(f"v_mfma_f32_32x32x8_bf16 {vr(s_new,16)}, {vr(K2,2)}, {vr(q2,2)}, {vr(s_new,16)}")
    for x in mid_k:
        e(x)
    grp(1)
    if pre_pv:
        e(pre_pv)
    e(f"v_mfma_f32_32x32x16_bf16 {vr(o_acc,16)}, {vr(V0,4)}, {vr(p_in,4)}, {vr(o_acc,16)}")
    grp(2)
    e(f"v_mfma_f32_32x32x16_bf16 {vr(o_acc,16)}, {vr(V1,4)}, {vr(p_in+4,4)}, {vr(o_acc,16)}")
    for x in mid_v:
        e(x)
    grp(3)


VL16, VOA, VOB = 201, 202, 203
VXO, VXP = 252, 253
WO2R = 208
S_DM0, S_DKV, S_TWB, S_OST, S_OST2 = 84, 85, 86, 87, 88


def key_tile(e, t, xa=None, xb=None):
    nk = (t + 1) * 1024 if t < 3 else CHUNK
    nk2 = (t + 1) * 128 if t < 3 else CHUNK
    half(e, SA, PA_, SB, QB1, QB2, OB, PB_, None,
         [f"ds_read_b128 {vr(K1,4)}, v{AK1} offset:{nk}", f"ds_read_b32 v{K2}, v{AK2} offset:{nk2}"],
         None,
         [f"ds_read_b128 {vr(V0,4)}, v{AV} offset:{t*VT}", f"ds_read_b128 {vr(V1,4)}, v{AV} offset:{t*VT+608}"], xa)
    half(e, SB, PB_, SA, QA1, QA2, OA, PA_, "s_waitcnt lgkmcnt(2)", [], "s_waitcnt lgkmcnt(0)", [], xb)


def next_chunk(e):
    e(f"v_add_u32 v{AK1}, {CHUNK}, v{AK1}")
    e(f"v_add_u32 v{AK2}, {CHUNK}, v{AK2}")
    e(f"v_add_u32 v{AV}, {CHUNK}, v{AV}")


def attention_setup(e):
    e(f"v_lshlrev_b32 v{VL16}, 4, v{V_LANE}")
    e(f"s_lshl_b32 s{S_DM0}, s{S_WAVE}, 10")
    e(f"s_add_u32 s{S_DKV}, s{S_DM0}, s{S_KV}")
    e(f"s_lshr_b32 s51, s{S_WAVE}, 2")
    e("s_lshl_b32 s52, s51, 12")
    e(f"v_add_u32 v{AK1}, s52, v{VL16}")
    e("s_lshl_b32 s52, s51, 9")
    e(f"s_add_u32 s52, s52, {K2_OFF}")
    e(f"v_and_b32 v5, 31, v{V_LANE}")
    e(f"v_lshlrev_b32 v{AK2}, 2, v5")
    e(f"v_add_u32 v{AK2}, s52, v{AK2}")
    e(f"s_mul_i32 s52, s51, {4*VT}")
    e(f"s_add_u32 s52, s52, {V_OFF}")
    e("v_subrev_u32 v6, 16, v5")
    e("v_cmp_gt_u32 vcc, 19, v5")
    e("v_cndmask_b32 v6, v6, v5, vcc")
    e(f"v_lshrrev_b32 v7, 5, v{V_LANE}")
    e("v_mul_u32_u24 v7, 304, v7")
    e("v_lshl_add_u32 v7, v6, 4, v7")
    e(f"v_add_u32 v{AV}, s52, v7")
    e(f"v_mov_b32 v{K2+1}, 0x3f803f80")
    e(f"v_mov_b32 v{QA2+1}, 0")
    e(f"v_mov_b32 v{QB2+1}, 0")
    for r in range(16):
        e(f"v_mov_b32 v{OA+r}, 0")
        e(f"v_mov_b32 v{OB+r}, 0")
    for r in range(8):
        e(f"v_mov_b32 v{PB_+r}, 0")
        e(f"v_mov_b32 v{V0+r}, 0")
    def region(dst, s_w):
        lo, dn = e.L("xr_lo"), e.L("xr_dn")
        e(f"s_cmp_lt_u32 s{s_w}, 4")
        e(f"s_cbranch_scc1 {lo}")
        e(f"s_and_b32 s52, s{s_w}, 1")
        e(f"s_bfe_u32 s53, s{s_w}, 0x10001")
        e("s_mul_i32 s54, s53, 768")
        e("s_add_u32 s54, s54, 4096")
        e("s_mul_i32 s52, s52, s54")
        e("s_mul_i32 s53, s53, 9216")
        e("s_add_u32 s52, s52, s53")
        e(f"s_branch {dn}")
        e.label(lo)
        e(f"s_mul_i32 s52, s{s_w}, 2560")
        e(f"s_add_u32 s52, s52, {L_MISC}")
        e.label(dn)
        e(f"v_add_u32 v{dst}, s52, v{VL16}")
    region(VXO, S_WAVE)
    e(f"s_xor_b32 s50, s{S_WAVE}, 4")
    region(VXP, 50)
    e(f"s_and_b32 s52, s{S_WAVE}, 3")
    e(f"s_mul_i32 s53, s{S_QB}, 36864")
    e(f"s_add_u32 s53, s53, s{S_OB}")
    e(f"v_bfe_u32 v4, v{V_LANE}, 4, 1")
    e("v_mul_u32_u24 v4, 18432, v4")
    e(f"v_lshl_add_u32 v{VOA}, v{V_R16}, 4, v4")
    e(f"v_lshrrev_b32 v5, 5, v{V_LANE}")
    e(f"v_lshl_add_u32 v{VOB}, v5, 8, v{VOA}")
    e(f"s_lshl_b32 s54, s{S_HG}, 2")
    e("s_add_u32 s54, s54, s52")
    e("s_lshl_b32 s54, s54, 10")
    e("s_lshl_b32 s55, s51, 9")
    e("s_add_u32 s54, s54, s55")
    e(f"s_add_u32 s{S_OST}, s54, s53")
    e(f"s_lshl_b32 s54, s{S_HG}, 3")
    e("s_lshl_b32 s55, s52, 1")
    e("s_add_u32 s54, s54, s55")
    e("s_add_u32 s54, s54, s51")
    e("s_lshr_b32 s55, s54, 4")
    e("s_add_u32 s55, s55, 16")
    e("s_lshl_b32 s55, s55, 10")
    e("s_bfe_u32 s56, s54, 0x20002")
    e("s_lshl_b32 s56, s56, 8")
    e("s_add_u32 s55, s55, s56")
    e("s_and_b32 s56, s54, 3")
    e("s_lshl_b32 s56, s56, 2")
    e("s_add_u32 s55, s55, s56")
    e(f"s_add_u32 s{S_OST2}, s55, s53")
    l1, ld = e.L("as_l1"), e.L("as_ld")
    e(f"s_mul_i32 s{S_TWB}, s{S_HG}, 9")
    e(f"s_add_u32 s{S_TWB}, s{S_TWB}, s{S_WAVE}")
    e(f"s_mul_i32 s{S_TWB}, s{S_TWB}, 18432")
    e(f"s_cmp_lg_u32 s{S_LAYER}, 0")
    e(f"s_cbranch_scc1 {l1}")
    e.make_srd(SRD_B, S_WS, WS_END)
    e(f"s_add_u32 s89, s{S_TWB}, {WOF}")
    e(f"s_branch {ld}")
    e.label(l1)
    e.make_srd(SRD_B, S_FI, 36 * 18432)
    e(f"s_mov_b32 s89, s{S_TWB}")
    e.label(ld)


def kv_round(e, m):
    skip = None
    if m == 18:
        skip = e.L("kvd")
        e(f"s_cmp_ge_u32 s{S_WAVE}, 4")
        e(f"s_cbranch_scc1 {skip}")
    e(f"s_add_u32 m0, s{S_DM0}, {m * 8192}")
    e(f"s_add_u32 s50, s{S_DKV}, {m * 8192}")
    e(f"buffer_load_dwordx4 v{VL16}, {srd(SRD_WS)}, s50 offen sc1 lds")
    if skip:
        e.label(skip)


def attention(e):
    mainl = e.L("attn_main")
    for m in range(3):
        kv_round(e, m)
    e(f"v_and_b32 v5, 31, v{V_LANE}")
    e("s_waitcnt vmcnt(0)")
    e("s_barrier")
    e.stamp("kv loaded")
    fbmax, haveM = e.L("fbmax"), e.L("haveM")
    e(f"s_cmp_lg_u32 s{S_FB}, 0")
    e(f"s_cbranch_scc1 {fbmax}")
    e(f"v_lshlrev_b32 v8, 4, v{V_LANE}")
    e("v_lshlrev_b32 v9, 2, v5")
    e(f"ds_read_b128 {vr(K1,4)}, v8")
    e(f"ds_read_b32 v{K2}, v9 offset:{K2_OFF}")
    e("s_waitcnt lgkmcnt(0)")
    qk(e, SA, QA1, QA2)
    qk(e, SB, QB1, QB2)
    max16(e, SA, 10)
    max16(e, SB, 11)
    cross_half_max(e, 10)
    cross_half_max(e, 11)
    e(f"s_branch {haveM}")
    e.label(fbmax)
    for m in range(3, 19):
        kv_round(e, m)
    e("s_waitcnt vmcnt(0)")
    e("s_barrier")
    fl = e.L("fbloop")
    e("v_mov_b32 v10, 0xff800000")
    e("v_mov_b32 v11, 0xff800000")
    e(f"v_mov_b32 v8, v{AK1}")
    e(f"v_mov_b32 v9, v{AK2}")
    e("s_mov_b32 s52, 0")
    e.label(fl)
    for t in range(4):
        e(f"ds_read_b128 {vr(K1,4)}, v8 offset:{t*1024}")
        e(f"ds_read_b32 v{K2}, v9 offset:{t*128}")
        e("s_waitcnt lgkmcnt(0)")
        qk(e, SA, QA1, QA2)
        qk(e, SB, QB1, QB2)
        max16(e, SA, 12)
        max16(e, SB, 13)
        e("v_max_f32 v10, v10, v12")
        e("v_max_f32 v11, v11, v13")
    e(f"v_add_u32 v8, {CHUNK}, v8")
    e(f"v_add_u32 v9, {CHUNK}, v9")
    e("s_add_u32 s52, s52, 1")
    e("s_cmp_lt_u32 s52, 8")
    e(f"s_cbranch_scc1 {fl}")
    cross_half_max(e, 10)
    cross_half_max(e, 11)
    e(f"s_lshl_b32 s52, s{S_WAVE}, 9")
    e(f"s_add_u32 s52, s52, {L_QL}")
    e(f"v_lshlrev_b32 v8, 3, v{V_LANE}")
    e("v_add_u32 v9, s52, v8")
    e("ds_write_b64 v9, v[10:11]")
    e("s_waitcnt lgkmcnt(0)")
    e("s_barrier")
    e(f"s_xor_b32 s52, s{S_WAVE}, 4")
    e("s_lshl_b32 s52, s52, 9")
    e(f"s_add_u32 s52, s52, {L_QL}")
    e("v_add_u32 v9, s52, v8")
    e("ds_read_b64 v[12:13], v9")
    e("s_waitcnt lgkmcnt(0)")
    e("v_max_f32 v10, v10, v12")
    e("v_max_f32 v11, v11, v13")
    e.label(haveM)
    set_m(e, 10, QA2)
    set_m(e, 11, QB2)
    e(f"ds_read_b128 {vr(K1,4)}, v{AK1}")
    e(f"ds_read_b32 v{K2}, v{AK2}")
    e("s_waitcnt lgkmcnt(0)")
    qk(e, SA, QA1, QA2)
    e.cyc_begin()
    e("s_nop 12")
    key_tile(e, 0, lambda g: kv_round(e, 3 + g), lambda g: kv_round(e, 7 + g))
    key_tile(e, 1, lambda g: kv_round(e, 11 + g), lambda g: kv_round(e, 15 + g))

    def wo2(ks):
        if ks >= 11:
            return
        sk = e.L("wo2h")
        e(f"s_cmp_eq_u32 s{S_LAYER}, 0")
        e(f"s_cbranch_scc1 {sk}")
        e(f"s_add_u32 s50, s{S_TWB}, {WO2 + ks * 1024}")
        e(f"buffer_load_dwordx4 {vr(WO2R + 4*ks, 4)}, v{VL16}, {srd(SRD_WS)}, s50 offen sc1")
        e.label(sk)
    key_tile(e, 2, lambda g: (wo2(g), wo2(8 + g)), lambda g: wo2(4 + g))
    w1, wd = e.L("kvw1"), e.L("kvwd")
    e(f"s_cmp_lg_u32 s{S_LAYER}, 0")
    e(f"s_cbranch_scc1 {w1}")
    e("s_waitcnt vmcnt(0)")
    e(f"s_branch {wd}")
    e.label(w1)
    e("s_waitcnt vmcnt(11)")
    e.label(wd)
    e("s_barrier")

    def twl(ks):
        if ks < 18:
            e(f"s_add_u32 s50, s89, {ks * 1024}")
            e(f"buffer_load_dwordx4 {vr(G_A + 4*ks, 4)}, v{VL16}, {srd(SRD_B)}, s50 offen sc1")
    key_tile(e, 3, lambda g: (twl(g), twl(8 + g), twl(16 + g) if g < 2 else None), lambda g: twl(4 + g) or twl(12 + g))
    next_chunk(e)
    e("s_mov_b32 s52, 1")
    e(".p2align 6")
    e.label(mainl)
    for t in range(4):
        key_tile(e, t)
    next_chunk(e)
    e("s_add_u32 s52, s52, 1")
    e("s_cmp_lt_u32 s52, 8")
    e(f"s_cbranch_scc1 {mainl}")
    e(f"v_mfma_f32_32x32x16_bf16 {vr(OB,16)}, {vr(V0,4)}, {vr(PB_,4)}, {vr(OB,16)}")
    e(f"v_mfma_f32_32x32x16_bf16 {vr(OB,16)}, {vr(V1,4)}, {vr(PB_+4,4)}, {vr(OB,16)}")
    e.cyc_end(0)
    e.stamp("attn loop")
    nofl = e.L("nofl")
    e("s_mov_b32 s53, 0x5d000000")
    e(f"v_cmp_nlt_f32 vcc, v{OA+10}, s53")
    e(f"v_cmp_nlt_f32 s[54:55], v{OB+10}, s53")
    e("s_or_b64 vcc, vcc, s[54:55]")
    e("s_cmp_eq_u32 vcc_lo, 0")
    e(f"s_cbranch_scc1 {nofl}")
    e(f"v_mov_b32 v4, {L_FLAG}")
    e("v_mov_b32 v5, 1")
    e("ds_write_b32 v4, v5")
    e.label(nofl)
    g1, gd = e.L("give1"), e.L("gived")
    e(f"s_cmp_ge_u32 s{S_WAVE}, 4")
    e(f"s_cbranch_scc1 {g1}")
    for q in range(2):
        e(f"ds_write_b128 v{VXO}, {vr(OB+4*q,4)} offset:{q*1024}")
    e("s_mov_b32 exec_hi, 0")
    e(f"ds_write_b128 v{VXO}, {vr(OB+8,4)} offset:2048")
    e("s_mov_b64 exec, -1")
    e(f"s_branch {gd}")
    e.label(g1)
    for q in range(2):
        e(f"ds_write_b128 v{VXO}, {vr(OA+4*q,4)} offset:{q*1024}")
    e("s_mov_b32 exec_hi, 0")
    e(f"ds_write_b128 v{VXO}, {vr(OA+8,4)} offset:2048")
    e("s_mov_b64 exec, -1")
    for r in range(12):
        e(f"v_mov_b32 v{OA+r}, v{OB+r}")
    e.label(gd)
    e(f"v_mov_b32 v7, {L_FLAG}")
    e("s_waitcnt lgkmcnt(0)")
    e("s_barrier")
    e("ds_read_b32 v8, v7")
    for q in range(2):
        e(f"ds_read_b128 {vr(16+4*q,4)}, v{VXP} offset:{q*1024}")
    e(f"ds_read_b128 {vr(24,4)}, v{VXP} offset:2048")
    e("s_waitcnt lgkmcnt(0)")
    e("v_readfirstlane_b32 s50, v8")
    fbgo = e.L("fbgo")
    e(f"s_cmp_lg_u32 s{S_FB}, 0")
    e(f"s_cbranch_scc1 {fbgo}")
    e("s_cmp_eq_u32 s50, 0")
    e(f"s_cbranch_scc1 {fbgo}")
    e(f"s_mov_b32 s{S_FB}, 1")
    e("s_branch L_redo")
    e.label(fbgo)
    for r in range(11):
        e(f"v_add_f32 v{OA+r}, v{OA+r}, v{16+r}")
    e(f"v_mov_b32 v8, v{OA+10}")
    e(f"v_permlane32_swap_b32 v8, v{OA+10}")
    e("v_rcp_f32 v8, v8")
    for r in range(10):
        e(f"v_mul_f32 v{OA+r}, v{OA+r}, v8")
    for k in range(5):
        e(f"v_cvt_pk_bf16_f32 v{16+k}, v{OA+2*k}, v{OA+2*k+1}")
    e(f"buffer_store_dwordx4 v[16:19], v{VOB}, {srd(SRD_WS)}, s{S_OST} offen sc1")
    e("s_mov_b32 exec_hi, 0")
    e(f"buffer_store_dword v20, v{VOA}, {srd(SRD_WS)}, s{S_OST2} offen sc1")
    e("s_mov_b64 exec, -1")


def tail_weights(e, extra, vtmp):
    l1, done = e.L("tw_l1"), e.L("tw_done")
    dst = G_AX if extra else G_A
    if extra:
        e(f"s_cmp_ge_u32 s{S_WAVE}, 2")
        e(f"s_cbranch_scc1 {done}")
    e(f"v_lshlrev_b32 v{vtmp}, 4, v{V_LANE}")
    e(f"s_mul_i32 s59, s{S_HG}, 9")
    if extra:
        e("s_add_u32 s57, s59, 8")
    else:
        e(f"s_add_u32 s57, s59, s{S_WAVE}")
    e("s_mul_i32 s57, s57, 18432")
    e(f"s_cmp_lg_u32 s{S_LAYER}, 0")
    e(f"s_cbranch_scc1 {l1}")
    e(f"s_add_u32 s57, s57, {WOF}")
    e.load_a_frags(SRD_WS, 57, dst, flags="sc1", vlane16=vtmp)
    e(f"s_branch {done}")
    e.label(l1)
    e.make_srd(SRD_T, S_FI, 36 * 18432)
    e.load_a_frags(SRD_T, 57, dst, vlane16=vtmp)
    e.label(done)


def frag_bases(e):
    e(f"s_and_b32 s50, s{S_WAVE}, 1")
    e("s_mul_i32 s50, s50, 18432")
    e(f"v_lshlrev_b32 v56, 4, v{V_LANE}")
    e("v_add_u32 v57, 18432, v56")
    e("v_subrev_u32 v57, s50, v57")
    e("v_add_u32 v56, s50, v56")


def p4(e):
    e(f"v_lshlrev_b32 v60, 4, v{V_LANE}")
    tile_dma(e, S_OB, 0, 60)
    for t in range(3):
        a = G_ACC + 4 * t
        e(f"v_lshlrev_b32 v{a}, 16, v{RES+2*t}")
        e(f"v_and_b32 v{a+1}, 0xffff0000, v{RES+2*t}")
        e(f"v_lshlrev_b32 v{a+2}, 16, v{RES+2*t+1}")
        e(f"v_and_b32 v{a+3}, 0xffff0000, v{RES+2*t+1}")
    frag_bases(e)
    e("s_waitcnt vmcnt(0)")
    e("s_barrier")
    e.stamp("p4 loaded")
    e.g144_both("frag", 56, 57, zero_init=False)
    e.stamp("p4 gemm")


L_X3 = 40960


def p8_pre(e):
    e(f"v_lshlrev_b32 v60, 4, v{V_LANE}")
    tile_dma(e, S_XIN, L_X3, 60)
    lo, done = e.L("p8p_lo"), e.L("p8p_done")
    e(f"s_cmp_lt_u32 s{S_WAVE}, 2")
    e(f"s_cbranch_scc1 {lo}")
    for ks in range(11, 18):
        e(f"s_add_u32 s50, s{S_TWB}, {WO2 + ks * 1024}")
        e(f"buffer_load_dwordx4 {vr(136 + 4*(ks-11), 4)}, v60, {srd(SRD_WS)}, s50 offen sc1")
    e(f"s_branch {done}")
    e.label(lo)
    e(f"s_mul_i32 s57, s{S_HG}, 9")
    e("s_add_u32 s57, s57, 8")
    e("s_mul_i32 s57, s57, 18432")
    e.make_srd(SRD_T, S_FI, 36 * 18432)
    e.load_a_frags(SRD_T, 57, G_AX, vlane16=60)
    e.label(done)


def p8(e):
    e(f"v_lshlrev_b32 v60, 4, v{V_LANE}")
    tile_dma(e, S_OB, 0, 60)
    xtile_bases(e, 58, 59, L_X3)
    e(f"s_mul_i32 s58, s{S_HG}, 9")
    e("s_add_u32 s58, s58, 8")
    e("s_mul_i32 s58, s58, 18432")
    e(f"s_add_u32 s58, s58, {WO2}")
    e(f"s_add_u32 s59, s{S_TWB}, {WO2}")
    noex, fin = e.L("p8_noex"), e.L("p8_fin")

    def round_acc(n):
        for t in range(n):
            a = G_ACC + 4 * t
            e(f"v_cvt_pk_bf16_f32 v52, v{a}, v{a+1}")
            e(f"v_cvt_pk_bf16_f32 v53, v{a+2}, v{a+3}")
            e(f"v_lshlrev_b32 v{a}, 16, v52")
            e(f"v_and_b32 v{a+1}, 0xffff0000, v52")
            e(f"v_lshlrev_b32 v{a+2}, 16, v53")
            e(f"v_and_b32 v{a+3}, 0xffff0000, v53")

    def wo_stream(ks):
        e(f"s_add_u32 s50, s58, {ks*1024}")
        e(f"buffer_load_dwordx4 {vr(G_AX+4*ks,4)}, v60, {srd(SRD_WS)}, s50 offen sc1")
        if ks < 7:
            e(f"s_add_u32 s50, s59, {(11+ks)*1024}")
            e(f"buffer_load_dwordx4 {vr(G_A+4*ks,4)}, v60, {srd(SRD_WS)}, s50 offen sc1")
    e(f"s_cmp_ge_u32 s{S_WAVE}, 2")
    e(f"s_cbranch_scc1 {noex}")
    e("s_waitcnt vmcnt(4)")
    e("s_barrier")
    e.stamp("x3 loaded")
    e.g144("x", 58, 59, True, wo_stream)
    round_acc(3)
    frag_bases(e)
    e("s_waitcnt vmcnt(25)")
    e("s_barrier")
    e.g144("frag", 56, 57, True, zero_init=False, vm_fn=lambda ks, ex: 24 - 2*ks if ks <= 6 else 17 - ks,
           a_main=lambda ks: WO2R + 4*ks if ks < 11 else G_A + 4*(ks-11))
    e(f"s_branch {fin}")
    e.label(noex)
    e("s_waitcnt vmcnt(11)")
    e("s_barrier")
    e.stamp("x3 loaded")
    e.g144("x", 58, 59, False)
    round_acc(2)
    frag_bases(e)
    e("s_waitcnt vmcnt(0)")
    e("s_barrier")
    e.g144("frag", 56, 57, False, zero_init=False, a_main=lambda ks: WO2R + 4*ks if ks < 11 else 136 + 4*(ks-11))
    e.label(fin)
    e.stamp("p4 gemm")


def out_epilogue(e):
    accA, accB, accX = G_ACC, G_ACC + 4, G_ACC + 8
    if getattr(e, "perturb", None):
        sk = e.L("pert")
        e(f"s_or_b32 s50, s2, s{S_WAVE}")
        e("s_cmp_lg_u32 s50, 0")
        e(f"s_cbranch_scc1 {sk}")
        e("s_mov_b64 exec, 1")
        e(f"v_add_f32 v{accA}, {e.perturb}, v{accA}")
        e("s_mov_b64 exec, -1")
        e.label(sk)
    e.make_srd(SRD_A, S_OUT, XBYTES)
    e(f"s_and_b32 s50, s{S_WAVE}, 1")
    e("s_lshl_b32 s51, s50, 4")
    e(f"s_lshl_b32 s52, s{S_QB}, 5")
    e("s_add_u32 s51, s51, s52")
    e(f"v_add_u32 v4, s51, v{V_R16}")
    e("v_xor_b32 v5, 16, v4")
    e("v_mul_u32_u24 v4, 1152, v4")
    e("v_mul_u32_u24 v5, 1152, v5")
    e(f"v_lshl_add_u32 v4, v{V_GQ}, 3, v4")
    e(f"v_lshl_add_u32 v5, v{V_GQ}, 3, v5")
    e(f"s_mul_i32 s53, s{S_HG}, 288")
    e(f"s_lshl_b32 s54, s{S_WAVE}, 5")
    e("s_add_u32 s54, s54, s53")
    e("s_add_u32 s55, s53, 256")
    e(f"v_cvt_pk_bf16_f32 v10, v{accA}, v{accA+1}")
    e(f"v_cvt_pk_bf16_f32 v11, v{accA+2}, v{accA+3}")
    e(f"buffer_store_dwordx2 v[10:11], v4, {srd(SRD_A)}, s54 offen")
    e(f"v_cvt_pk_bf16_f32 v12, v{accB}, v{accB+1}")
    e(f"v_cvt_pk_bf16_f32 v13, v{accB+2}, v{accB+3}")
    e(f"buffer_store_dwordx2 v[12:13], v5, {srd(SRD_A)}, s54 offen")
    nx = e.L("oe_nx")
    e(f"s_cmp_ge_u32 s{S_WAVE}, 2")
    e(f"s_cbranch_scc1 {nx}")
    e(f"v_cvt_pk_bf16_f32 v14, v{accX}, v{accX+1}")
    e(f"v_cvt_pk_bf16_f32 v15, v{accX+2}, v{accX+3}")
    e(f"buffer_store_dwordx2 v[14:15], v4, {srd(SRD_A)}, s55 offen")
    e.label(nx)
```

```python
from asmlib import Prog
from layout import *

S_AX, S_WR, S_WI = 4, 6, 8
S_WQ, S_WK, S_WV, S_WO = 12, 14, 16, 18
S_OUT, S_DBG, S_WS = 20, 22, 24
S_WAVE, S_QB = 26, 27
SRD_WS, SRD_A, SRD_B, SRD_T = 28, 32, 36, 40
S_HG, S_LAYER, S_GT, S_GRP = 44, 45, 46, 47
S_T = 48
S_FT, S_FI, S_TW = 66, 68, 70
S_X = 72

V_TID, V_LANE, V_R16, V_GQ = 0, 1, 2, 3

G_A = 64
G_AX = 136
G_B = 16
G_ACC = 40

SPIN_LIMIT = 60000


def srd(r):
    return f"s[{r}:{r+3}]"


def sp(r):
    return f"s[{r}:{r+1}]"


def vr(r, n=1):
    return f"v{r}" if n == 1 else f"v[{r}:{r+n-1}]"


class Gen(Prog):
    def __init__(self):
        super().__init__()
        self.uid = 0

    profile = False
    codepf = True
    nstamp = 0

    def stamp(self, name=""):
        if self.dbgprof:
            return self.dbg_stamp(name)
        if not self.profile:
            return
        names = self.__dict__.setdefault("stamp_names", [])
        if name in names and name in ("p4 gemm", "bar3", "po staged", "x3 loaded"):
            k = names.index(name)
        else:
            k = self.nstamp
            self.nstamp += 1
            names.append(name)
        assert k < 30
        self("s_memrealtime s[96:97]")
        if name == "start":
            self("v_mov_b32 v255, -1")
        self(f"s_lshl_b32 s98, s{S_LAYER}, 5")
        self(f"s_add_u32 m0, s98, {k}")
        self("s_waitcnt lgkmcnt(0)")
        self("v_writelane_b32 v255, s96, m0")

    dbgprof = None

    def dbg_stamp(self, name):
        cnt = self.__dict__.setdefault("dbg_seen", {})
        cnt[name] = cnt.get(name, 0) + 1
        slots = [(i, l) for i, (n, occ, l) in enumerate(self.dbgprof) if n == name and occ == cnt[name]]
        if name == "start":
            slots = [(-1, 0)]
        for i, layer in slots:
            e = self
            sk = e.L("dst")
            e(f"s_or_b32 s92, s{S_WAVE}, s2")
            e("s_cmp_lg_u32 s92, 0")
            e(f"s_cbranch_scc1 {sk}")
            e(f"s_cmp_lg_u32 s{S_LAYER}, {layer}")
            e(f"s_cbranch_scc1 {sk}")
            e("s_memrealtime s[96:97]")
            e(f"s_mov_b32 s92, s{S_DBG}")
            e(f"s_mov_b32 s93, s{S_DBG+1}")
            e("s_mov_b32 s94, 256")
            e("s_mov_b32 s95, 0x20000")
            e("s_waitcnt lgkmcnt(0)")
            if i < 0:
                e("s_not_b32 s96, s96")
            e("v_mov_b32 v255, s96")
            e("v_mov_b32 v254, 0")
            e("s_mov_b64 exec, 1")
            e(f"buffer_store_dword v255, v254, s[92:95], 0 offen offset:{4*(i+2)}")
            e("s_mov_b64 exec, -1")
            e.label(sk)

    def cyc_begin(self):
        if self.profile:
            self("s_memtime s[92:93]")
            self("s_memrealtime s[94:95]")
            self("s_waitcnt lgkmcnt(0)")

    def cyc_end(self, slot):
        if not self.profile:
            return
        e = self
        e("s_memtime s[96:97]")
        e("s_memrealtime s[98:99]")
        e("s_waitcnt lgkmcnt(0)")
        e("s_sub_u32 s96, s96, s92")
        e("s_sub_u32 s98, s98, s94")
        e(f"s_lshl_b32 s97, s{S_LAYER}, 5")
        e("s_add_u32 m0, s97, 30")
        e("v_writelane_b32 v255, s96, m0")
        e("s_add_u32 m0, s97, 31")
        e("v_writelane_b32 v255, s98, m0")

    def dump_stamps(self):
        self.stamp("end")
        if self.profile:
            e = self
            e("s_lshl_b32 s96, s2, 3")
            e(f"s_add_u32 s96, s96, s{S_WAVE}")
            e("s_lshl_b32 s96, s96, 8")
            e(f"s_add_u32 s96, s96, {PROF}")
            e(f"v_lshlrev_b32 v4, 2, v{V_LANE}")
            e(f"buffer_store_dword v255, v4, {srd(SRD_WS)}, s96 offen")

    def L(self, base):
        self.uid += 1
        return f"L_{base}_{self.uid}"

    def sel(self, dst, a, b):
        self(f"s_mov_b32 s{dst}, {b}")
        self(f"s_cselect_b32 s{dst}, {a}, s{dst}")

    def make_srd(self, r, base, size):
        self(f"s_mov_b32 s{r}, s{base}")
        self(f"s_mov_b32 s{r+1}, s{base+1}")
        self(f"s_mov_b32 s{r+2}, {size}")
        self(f"s_mov_b32 s{r+3}, 0x20000")

    def prologue(self):
        e = self
        e.label("L_code_begin")
        e("s_cmp_ge_u32 s2, 256")
        e("s_cbranch_scc1 L_end")
        e("s_getpc_b64 s[36:37]")
        e("s_and_b32 s36, s36, 0xffffff00")
        e("s_mov_b32 s38, L_code_end-L_code_begin")
        e("s_mov_b32 s39, 0x20000")
        e("s_lshr_b32 s3, s2, 3")
        e("s_lshl_b32 s3, s3, 11")
        e("v_lshlrev_b32 v4, 2, v0")
        e("v_add_u32 v4, s3, v4")
        if self.codepf: e("buffer_load_dword v253, v4, s[36:39], 0 offen")
        e("s_load_dwordx4 s[4:7], s[0:1], 0")
        e("s_load_dwordx2 s[8:9], s[0:1], 16")
        e("s_load_dwordx8 s[12:19], s[0:1], 32")
        e("s_load_dwordx4 s[20:23], s[0:1], 64")
        e("s_load_dwordx2 s[24:25], s[0:1], 80")
        e(f"v_and_b32 v{V_LANE}, 63, v0")
        e("v_lshrrev_b32 v4, 6, v0")
        e(f"v_and_b32 v{V_R16}, 15, v0")
        e(f"v_lshrrev_b32 v{V_GQ}, 4, v{V_LANE}")
        e(f"v_readfirstlane_b32 s{S_WAVE}, v4")
        e("s_and_b32 s48, s2, 7")
        e("s_lshr_b32 s49, s2, 3")
        e("s_lshl_b32 s48, s48, 3")
        e("s_lshr_b32 s50, s49, 2")
        e(f"s_add_u32 s{S_QB}, s48, s50")
        e(f"s_and_b32 s{S_HG}, s49, 3")
        e(f"s_mov_b32 s{S_LAYER}, 0")
        for reg, sym in ((S_FT, "TAB_FT"), (S_FI, "TAB_FI"), (S_TW, "TAB_TW")):
            e(f"s_getpc_b64 {sp(reg)}")
            e(f"s_add_u32 s{reg}, s{reg}, {sym}@rel32@lo+4")
            e(f"s_addc_u32 s{reg+1}, s{reg+1}, {sym}@rel32@hi+12")
        e("s_waitcnt lgkmcnt(0)")
        self.make_srd(SRD_WS, S_WS, WS_END)
        if self.pretouch:
            self.touch_pages()

    pretouch = 0

    def touch_pages(self):
        e = self
        sk = e.L("notouch")
        e(f"s_cmp_lg_u32 s{S_WAVE}, 0")
        e(f"s_cbranch_scc1 {sk}")
        e("s_cmp_ge_u32 s2, 16")
        e(f"s_cbranch_scc1 {sk}")
        st = self.pretouch
        for k in range(1, (WS_END + st - 1) // st):
            e(f"s_mov_b32 s48, {min(k * st, WS_END - 64)}")
            e(f"s_load_dword s49, {sp(S_WS)}, s48")
        for k in range(0, XBYTES, st):
            e(f"s_mov_b32 s48, {k}")
            e(f"s_load_dword s49, {sp(S_OUT)}, s48")
        e.label(sk)

    def bar_offset(self, k, per_layer, group, dst):
        e = self
        if group:
            e(f"s_lshl_b32 s{dst}, s{S_LAYER}, 14")
            e(f"s_lshl_b32 s49, s{S_QB}, 8")
            e(f"s_add_u32 s{dst}, s{dst}, s49")
            e(f"s_add_u32 s{dst}, s{dst}, {CNT + CNT_GROUP}")
        elif per_layer:
            e(f"s_mul_i32 s{dst}, s{S_LAYER}, {3*BAR_BYTES}")
            e(f"s_add_u32 s{dst}, s{dst}, {CNT + k*BAR_BYTES}")
        else:
            e(f"s_mov_b32 s{dst}, {CNT + k*BAR_BYTES}")

    def signal(self, k=0, per_layer=False, group=False):
        e = self
        self.bar_offset(k, per_layer, group, 48)
        if not group:
            e(f"s_and_b32 s49, s2, {NSHARD-1}")
            e("s_lshl_b32 s49, s49, 8")
            e("s_add_u32 s48, s48, s49")
        e("v_mov_b32 v4, s48")
        e("v_mov_b32 v5, 1")
        e("s_mov_b64 exec, 1")
        e(f"buffer_atomic_add v5, v4, {srd(SRD_WS)}, 0 offen sc1")
        e("s_mov_b64 exec, -1")

    def arrive(self, k=0, per_layer=False, group=False, go_check=False):
        e = self
        e("s_waitcnt vmcnt(0) lgkmcnt(0)")
        e("s_barrier")
        e.stamp("drained" if not group else "drained g")
        skip = e.L("arr")
        e(f"s_cmp_lg_u32 s{S_WAVE}, 0")
        e(f"s_cbranch_scc1 {skip}")
        if go_check:
            lp, ok = e.L("go"), e.L("gook")
            e("v_readfirstlane_b32 s48, v252")
            e("s_cmp_lg_u32 s48, 0")
            e(f"s_cbranch_scc1 {ok}")
            self.make_srd(SRD_A, S_DBG, 256)
            e("v_mov_b32 v4, 0")
            e("s_mov_b32 s48, 0")
            e.label(lp)
            e(f"buffer_load_dword v5, v4, {srd(SRD_A)}, 0 offen sc1")
            e("s_waitcnt vmcnt(0)")
            e("v_cmp_eq_u32 vcc, 0, v5")
            e("s_add_u32 s48, s48, 1")
            e(f"s_cmp_gt_u32 s48, {SPIN_LIMIT}")
            e(f"s_cbranch_scc1 {ok}")
            e(f"s_cbranch_vccz {ok}")
            e("s_sleep 1")
            e(f"s_branch {lp}")
            e.label(ok)
        self.signal(k, per_layer, group)
        e.label(skip)

    def signal_word(self, off):
        e = self
        e(f"v_mov_b32 v4, {off}")
        e("v_mov_b32 v5, 1")
        e("s_mov_b64 exec, 1")
        e(f"buffer_atomic_add v5, v4, {srd(SRD_WS)}, 0 offen sc1")
        e("s_mov_b64 exec, -1")

    def wait(self, k=0, per_layer=False, group=False, target=None, word=None, first_sleep=10, poller=7):
        e = self
        done, lp = e.L("wdone"), e.L("poll")
        e(f"s_cmp_lg_u32 s{S_WAVE}, {poller}")
        e(f"s_cbranch_scc1 {done}")
        if word is not None:
            e(f"v_mov_b32 v4, {word}")
        else:
            self.bar_offset(k, per_layer, group, 48)
            if group:
                e("v_mov_b32 v4, s48")
            else:
                e(f"v_and_b32 v4, {NSHARD-1}, v{V_LANE}")
                e("v_lshlrev_b32 v4, 8, v4")
                e("v_add_u32 v4, s48, v4")
        if target is None:
            target = 4 if group else 256 // NSHARD
        e("s_mov_b32 s48, 0")
        e("s_setprio 3")
        if first_sleep:
            e(f"s_sleep {first_sleep}")
        e.label(lp)
        e(f"buffer_load_dword v5, v4, {srd(SRD_WS)}, 0 offen sc1")
        e("s_waitcnt vmcnt(0)")
        e(f"v_cmp_gt_u32 vcc, {target}, v5")
        e("s_add_u32 s48, s48, 1")
        e(f"s_cmp_gt_u32 s48, {SPIN_LIMIT}")
        e(f"s_cbranch_scc1 {done}")
        e(f"s_cbranch_vccz {done}")
        e("s_sleep 2")
        e(f"s_branch {lp}")
        e.label(done)
        e("s_setprio 0")
        e("s_barrier")

    def load_a_frags(self, srdreg, s_tile_base, dst, ksteps=range(18), flags="", vlane16=None):
        e = self
        cur = None
        for ks in ksteps:
            hi = ks // 4
            if hi != cur:
                e(f"s_add_u32 s49, s{s_tile_base}, {hi * 4096}")
                cur = hi
            off = (ks % 4) * 1024
            o = f" offset:{off}" if off else ""
            e(f"buffer_load_dwordx4 {vr(dst + 4*ks, 4)}, v{vlane16}, {srd(srdreg)}, s49 offen{o} {flags}".rstrip())

    def g144(self, bmode, vbA, vbB, extra, after_step=None, zero_init=True, vm_fn=None, a_main=None):
        e = self
        accA, accB, accX = G_ACC, G_ACC + 4, G_ACC + 8

        def rd(ks):
            b = G_B + 8 * (ks % 3)
            if bmode == "row":
                e(f"ds_read_b128 {vr(b,4)}, v{vbA[ks & 1]} offset:{(ks >> 1)*1024}")
                e(f"ds_read_b128 {vr(b+4,4)}, v{vbB[ks & 1]} offset:{(ks >> 1)*1024}")
                return 2
            if bmode == "frag":
                e(f"ds_read_b128 {vr(b,4)}, v{vbA} offset:{ks*1024}")
                e(f"ds_read_b128 {vr(b+4,4)}, v{vbB} offset:{ks*1024}")
                return 2
            e(f"ds_read_b64 {vr(b,2)}, v{vbA} offset:{ks*2048}")
            e(f"ds_read_b64 {vr(b+2,2)}, v{vbA} offset:{ks*2048+256}")
            e(f"ds_read_b64 {vr(b+4,2)}, v{vbB} offset:{ks*2048}")
            e(f"ds_read_b64 {vr(b+6,2)}, v{vbB} offset:{ks*2048+256}")
            return 4
        per = 4 if bmode == "x" else 2
        rd(0)
        rd(1)
        for ks in range(18):
            if ks + 2 < 18:
                rd(ks + 2)
            left = min(2, 17 - ks) * per
            if vm_fn is not None:
                e(f"s_waitcnt vmcnt({vm_fn(ks, extra)}) lgkmcnt({left})")
            else:
                e(f"s_waitcnt lgkmcnt({left})")
            b = G_B + 8 * (ks % 3)
            a = a_main(ks) if a_main else G_A + 4 * ks
            cA = "0" if (ks == 0 and zero_init) else vr(accA, 4)
            cB = "0" if (ks == 0 and zero_init) else vr(accB, 4)
            cX = "0" if (ks == 0 and zero_init) else vr(accX, 4)
            e(f"v_mfma_f32_16x16x32_bf16 {vr(accA,4)}, {vr(a,4)}, {vr(b,4)}, {cA}")
            e(f"v_mfma_f32_16x16x32_bf16 {vr(accB,4)}, {vr(a,4)}, {vr(b+4,4)}, {cB}")
            if extra:
                e(f"v_mfma_f32_16x16x32_bf16 {vr(accX,4)}, {vr(G_AX+4*ks,4)}, {vr(b,4)}, {cX}")
            if after_step:
                after_step(ks)

    def g144_both(self, bmode, vbA, vbB, after_step=None, zero_init=True, vm_fn=None):
        e = self
        noex, done = e.L("g_noex"), e.L("g_done")
        e(f"s_cmp_ge_u32 s{S_WAVE}, 2")
        e(f"s_cbranch_scc1 {noex}")
        self.g144(bmode, vbA, vbB, True, after_step, zero_init, vm_fn)
        e(f"s_branch {done}")
        e.label(noex)
        self.g144(bmode, vbA, vbB, False, after_step, zero_init, vm_fn)
        e.label(done)

    def sum_over_gq(self, v, t):
        e = self
        e(f"v_mov_b32 v{t}, v{v}")
        e(f"v_permlane16_swap_b32 v{t}, v{v}")
        e(f"v_add_f32 v{v}, v{v}, v{t}")
        e(f"v_mov_b32 v{t}, v{v}")
        e(f"v_permlane32_swap_b32 v{t}, v{v}")
        e(f"v_add_f32 v{v}, v{v}, v{t}")

    def bf16_round(self, v, t):
        e = self
        e(f"v_cvt_pk_bf16_f32 v{t}, v{v}, v{v}")
        e(f"v_lshlrev_b32 v{v}, 16, v{t}")

    def inv_sigma(self, v, t, scale=None):
        e = self
        e(f"v_mul_f32 v{v}, 0x3ae38e39, v{v}")
        self.bf16_round(v, t)
        e(f"v_add_f32 v{v}, 0x3727c5ac, v{v}")
        self.bf16_round(v, t)
        e(f"v_sqrt_f32 v{v}, v{v}")
        self.bf16_round(v, t)
        e(f"v_rcp_f32 v{v}, v{v}")
        if scale is not None:
            e(f"v_mul_f32 v{v}, {scale}, v{v}")

    def xhat_epilogue(self, s_xdst, s_part, pre_store=None, post_barrier=None):
        e = self
        accA, accB, accX = G_ACC, G_ACC + 4, G_ACC + 8
        e(f"s_mul_i32 s50, s{S_QB}, 144")
        e(f"s_mul_i32 s51, s{S_HG}, 36")
        e("s_add_u32 s50, s50, s51")
        e(f"s_lshl_b32 s51, s{S_WAVE}, 2")
        e("s_add_u32 s51, s51, s50")
        e("s_lshl_b32 s51, s51, 8")
        e(f"s_add_u32 s51, s51, s{s_xdst}")
        e("s_add_u32 s52, s50, 32")
        e("s_lshl_b32 s52, s52, 8")
        e(f"s_add_u32 s52, s52, s{s_xdst}")
        e(f"s_and_b32 s53, s{S_WAVE}, 1")
        e(f"v_lshrrev_b32 v4, 1, v{V_GQ}")
        e(f"v_xor_b32 v5, s53, v4")
        e(f"v_lshlrev_b32 v6, 8, v{V_GQ}")
        e(f"v_lshl_add_u32 v6, v{V_R16}, 3, v6")
        e("v_lshl_add_u32 v7, v5, 7, v6")
        e("v_xor_b32 v8, 128, v7")
        e(f"v_mul_f32 v9, v{accA}, v{accA}")
        e(f"v_mul_f32 v10, v{accB}, v{accB}")
        e(f"v_mul_f32 v11, v{accA+1}, v{accA+1}")
        e(f"v_mul_f32 v12, v{accB+1}, v{accB+1}")
        nodc = e.L("nodc")
        e(f"s_or_b32 s53, s{S_HG}, s{S_WAVE}")
        e("s_cmp_lg_u32 s53, 0")
        e(f"s_cbranch_scc1 {nodc}")
        e(f"v_cmp_eq_u32 vcc, 0, v{V_GQ}")
        e("v_mov_b32 v13, 0")
        e("v_cndmask_b32 v11, v11, v13, vcc")
        e("v_cndmask_b32 v12, v12, v13, vcc")
        e.label(nodc)
        e("v_add_f32 v9, v9, v11")
        e("v_add_f32 v10, v10, v12")
        for r in (2, 3):
            e(f"v_fmac_f32 v9, v{accA+r}, v{accA+r}")
            e(f"v_fmac_f32 v10, v{accB+r}, v{accB+r}")
        e(f"v_cvt_pk_bf16_f32 v14, v{accA}, v{accA+1}")
        e(f"v_cvt_pk_bf16_f32 v15, v{accA+2}, v{accA+3}")
        e(f"buffer_store_dwordx2 v[14:15], v7, {srd(SRD_WS)}, s51 offen sc1")
        e(f"v_cvt_pk_bf16_f32 v52, v{accB}, v{accB+1}")
        e(f"v_cvt_pk_bf16_f32 v53, v{accB+2}, v{accB+3}")
        e(f"buffer_store_dwordx2 v[52:53], v8, {srd(SRD_WS)}, s51 offen sc1")
        if pre_store:
            pre_store()
        self.sum_over_gq(9, 13)
        self.sum_over_gq(10, 13)
        e(f"s_and_b32 s53, s{S_WAVE}, 1")
        e(f"s_lshl_b32 s54, s{S_WAVE}, 7")
        e("s_lshl_b32 s55, s53, 6")
        e("s_add_u32 s54, s54, s55")
        e(f"v_lshlrev_b32 v11, 2, v{V_R16}")
        e(f"v_add_u32 v11, s54, v11")
        e("v_xor_b32 v12, 64, v11")
        e(f"v_add_u32 v11, {L_STAT}, v11")
        e(f"v_add_u32 v12, {L_STAT}, v12")
        e("ds_write_b32 v11, v9")
        e("ds_write_b32 v12, v10")
        noex = e.L("ep_noex")
        e(f"s_cmp_ge_u32 s{S_WAVE}, 2")
        e(f"s_cbranch_scc1 {noex}")
        e(f"v_mul_f32 v9, v{accX}, v{accX}")
        for r in (1, 2, 3):
            e(f"v_fmac_f32 v9, v{accX+r}, v{accX+r}")
        e(f"v_cvt_pk_bf16_f32 v54, v{accX}, v{accX+1}")
        e(f"v_cvt_pk_bf16_f32 v55, v{accX+2}, v{accX+3}")
        e(f"buffer_store_dwordx2 v[54:55], v7, {srd(SRD_WS)}, s52 offen sc1")
        self.sum_over_gq(9, 13)
        e(f"v_lshlrev_b32 v11, 2, v{V_R16}")
        e(f"v_add_u32 v11, s55, v11")
        e(f"v_add_u32 v11, {L_STAT + 8*128}, v11")
        e("ds_write_b32 v11, v9")
        e.label(noex)
        e("s_waitcnt lgkmcnt(0)")
        e("s_barrier")
        if post_barrier:
            post_barrier()
        fin = e.L("ep_fin")
        e(f"s_cmp_lg_u32 s{S_WAVE}, 0")
        e(f"s_cbranch_scc1 {fin}")
        e(f"v_and_b32 v4, 31, v{V_LANE}")
        e("v_lshlrev_b32 v4, 2, v4")
        e(f"v_add_u32 v14, {L_STAT}, v4")
        for t in range(9):
            e(f"ds_read_b32 v{5+t}, v14 offset:{t*128}")
        e("s_waitcnt lgkmcnt(0)")
        for t in range(1, 9):
            e(f"v_add_f32 v5, v5, v{5+t}")
        e(f"s_lshl_b32 s50, s{S_HG}, 13")
        e(f"s_lshl_b32 s51, s{S_QB}, 7")
        e("s_add_u32 s50, s50, s51")
        e(f"s_add_u32 s50, s50, s{s_part}")
        e("s_mov_b32 exec_hi, 0")
        e(f"buffer_store_dword v5, v4, {srd(SRD_WS)}, s50 offen sc1")
        e("s_mov_b64 exec, -1")
        e.label(fin)
```

```python
from gen_common import *

SQ = 202
MASK = 204
TW1, TW2, TW3 = 136, 150, 164
WREG = 178
XOLD = 186
POOL0, POOLN = 16, 24
ADDR = 206
REGION = 288 * 8
COLBUF = 8 * REGION
L_EX = 8192
L_OUT = L_EX + 2 * COLBUF


class Pool:
    def __init__(self):
        self.free = [POOL0 + 2 * i for i in range(POOLN)]
    def get(self):
        return self.free.pop(0)
    def get_quad(self):
        for r in sorted(self.free):
            if r + 2 in self.free:
                self.free.remove(r); self.free.remove(r + 2)
                return r
        raise RuntimeError("no free quad")
    def put(self, r):
        assert r not in self.free
        self.free.append(r)


def P(r):
    return f"v[{r}:{r+1}]"


class FFT:
    def __init__(self, e):
        self.e = e
        self.pool = Pool()

    def add(self, a, b, free=()):
        d = self._dst(free); self.e(f"v_pk_add_f32 {P(d)}, {P(a)}, {P(b)}"); return d
    def sub(self, a, b, free=()):
        d = self._dst(free); self.e(f"v_pk_add_f32 {P(d)}, {P(a)}, {P(b)} neg_lo:[0,1] neg_hi:[0,1]"); return d
    def addmi(self, a, b, free=()):
        d = self._dst(free); self.e(f"v_pk_add_f32 {P(d)}, {P(a)}, {P(b)} op_sel:[0,1] op_sel_hi:[1,0] neg_hi:[0,1]"); return d
    def addpi(self, a, b, free=()):
        d = self._dst(free); self.e(f"v_pk_add_f32 {P(d)}, {P(a)}, {P(b)} op_sel:[0,1] op_sel_hi:[1,0] neg_lo:[0,1]"); return d
    def addrot(self, a, b, sign, free=()):
        return self.addmi(a, b, free) if sign < 0 else self.addpi(a, b, free)
    def fma_s(self, q, p, neg=False, free=()):
        d = self._dst(free)
        m = " neg_lo:[1,0,0] neg_hi:[1,0,0]" if neg else ""
        self.e(f"v_pk_fma_f32 {P(d)}, {P(q)}, {P(SQ)}, {P(p)}{m}"); return d
    def fma_srot(self, q, p, sign, free=()):
        d = self._dst(free)
        m = "neg_hi:[1,0,0]" if sign < 0 else "neg_lo:[1,0,0]"
        self.e(f"v_pk_fma_f32 {P(d)}, {P(q)}, {P(SQ)}, {P(p)} op_sel:[1,0,0] op_sel_hi:[0,1,1] {m}"); return d
    def cmul(self, a, w, conj=False):
        t = self.pool.get()
        self.e(f"v_pk_mul_f32 {P(t)}, {P(a)}, {P(w)} op_sel:[0,0] op_sel_hi:[1,0]")
        m = "neg_hi:[1,0,0]" if conj else "neg_lo:[1,0,0]"
        self.e(f"v_pk_fma_f32 {P(t)}, {P(a)}, {P(w)}, {P(t)} op_sel:[1,1,0] op_sel_hi:[0,1,1] {m}")
        self.pool.put(a)
        return t
    forced = None
    def _dst(self, free):
        if self.forced:
            d = self.forced.pop(0)
        else:
            d = self.pool.get()
        for r in free:
            self.pool.put(r)
        return d

    def dft4(self, u, sign, quads=False):
        p0 = self.add(u[0], u[2]); p1 = self.sub(u[0], u[2], free=(u[0], u[2]))
        p2 = self.add(u[1], u[3]); p3 = self.sub(u[1], u[3], free=(u[1], u[3]))
        if quads:
            qa = self.pool.get_quad(); qb = self.pool.get_quad()
            self.forced = [qa, qb, qa + 2, qb + 2]
        y0 = self.add(p0, p2); y2 = self.sub(p0, p2, free=(p0, p2))
        y1 = self.addrot(p1, p3, sign); y3 = self.addrot(p1, p3, -sign, free=(p1, p3))
        self.forced = None
        return [y0, y1, y2, y3]

    def dft8(self, z, sign):
        a = []; b = []
        for j in range(4):
            a.append(self.add(z[j], z[j+4])); b.append(self.sub(z[j], z[j+4], free=(z[j], z[j+4])))
        ev = self.dft4(a, sign)
        p0 = self.addrot(b[0], b[2], sign); p1 = self.addrot(b[0], b[2], -sign, free=(b[0], b[2]))
        t1 = self.addrot(b[1], b[1], sign, free=(b[1],))
        t3 = self.addrot(b[3], b[3], -sign, free=(b[3],))
        q2 = self.sub(t1, t3); q3 = self.add(t1, t3, free=(t1, t3))
        x1 = self.fma_s(q2, p0); x5 = self.fma_s(q2, p0, neg=True, free=(q2, p0))
        x3 = self.fma_srot(q3, p1, sign); x7 = self.fma_srot(q3, p1, -sign, free=(q3, p1))
        return [ev[0], x1, ev[1], x3, ev[2], x5, ev[3], x7]

    def twiddle(self, z, tw, conj):
        return [z[0]] + [self.cmul(z[k], tw + 2*(k-1), conj) for k in range(1, 8)]

    def write(self, z, addr, offs, b128=False):
        if b128:
            raise NotImplementedError
        for r, o in zip(z, offs):
            self.e(f"ds_write_b64 v{addr}, {P(r)} offset:{o}")
            self.pool.put(r)

    def write_quads(self, z, addr, offs):
        for i, o in enumerate(offs):
            r = z[2*i]
            assert z[2*i+1] == r + 2
            self.e(f"ds_write_b128 v{addr}, v[{r}:{r+3}] offset:{o}")
            self.pool.put(r); self.pool.put(r + 2)

    def read_quads(self, addr, offs):
        z = []
        for o in offs:
            r = self.pool.get_quad()
            self.e(f"ds_read_b128 v[{r}:{r+3}], v{addr} offset:{o}")
            z += [r, r + 2]
        self.e("s_waitcnt lgkmcnt(0)")
        return z

    def read(self, addr, offs):
        z = [self.pool.get() for _ in offs]
        for r, o in zip(z, offs):
            self.e(f"ds_read_b64 {P(r)}, v{addr} offset:{o}")
        self.e("s_waitcnt lgkmcnt(0)")
        return z


def wq_hook(e, p):
    sk = e.L("wqh")
    e(f"s_cmp_eq_u32 s{S_LAYER}, 0")
    e(f"s_cbranch_scc1 {sk}")
    for ks in range(3 * p, 3 * p + 3):
        e(f"s_add_u32 s49, s58, {ks * 1024}")
        e(f"buffer_load_dwordx4 {vr(G_A + 4*ks, 4)}, v14, {srd(SRD_WS)}, s49 offen sc1")
    e.label(sk)


def tw_loads(e):
    e.make_srd(SRD_T, S_TW, 2048)
    e("v_and_b32 v4, 255, v0")
    e("v_lshlrev_b32 v4, 3, v4")
    e("v_and_b32 v5, 31, v0")
    e("v_lshlrev_b32 v5, 6, v5")
    e("v_and_b32 v6, 3, v0")
    e("v_lshlrev_b32 v6, 9, v6")
    e(f"buffer_load_dwordx2 {P(TW1)}, v4, {srd(SRD_T)}, 0 offen")
    e(f"buffer_load_dwordx2 {P(TW2)}, v5, {srd(SRD_T)}, 0 offen")
    e(f"buffer_load_dwordx2 {P(TW3)}, v6, {srd(SRD_T)}, 0 offen")


def tw_powers(e):
    def cm(d, a, b):
        e(f"v_pk_mul_f32 {P(d)}, {P(a)}, {P(b)} op_sel:[0,0] op_sel_hi:[1,0]")
        e(f"v_pk_fma_f32 {P(d)}, {P(a)}, {P(b)}, {P(d)} op_sel:[1,1,0] op_sel_hi:[0,1,1] neg_lo:[1,0,0]")
    w = lambda base, k: base + 2 * (k - 1)
    for (k, a, b) in ((2, 1, 1), (3, 2, 1), (4, 2, 2), (5, 4, 1), (6, 3, 3), (7, 4, 3)):
        for base in (TW1, TW2, TW3):
            cm(w(base, k), w(base, a), w(base, b))


def sfilter(e, s_xin, s_xout, s_part, s_wqok):
    A = ADDR
    e("v_lshlrev_b32 v4, 4, v0")
    for hg in range(4):
        e(f"s_add_u32 s50, s{s_part}, {hg * 8192}")
        e(f"buffer_load_dwordx4 {vr(16+4*hg,4)}, v4, {srd(SRD_WS)}, s50 offen sc1")
    e(f"s_lshr_b32 s51, s{S_WAVE}, 2")
    e("v_and_b32 v5, 255, v0")
    e("v_lshrrev_b32 v6, 5, v5")
    e("v_mul_u32_u24 v6, 36864, v6")
    e("v_lshrrev_b32 v7, 4, v5")
    e("v_and_b32 v7, 1, v7")
    e("s_lshr_b32 s52, s2, 1")
    e("s_and_b32 s52, s52, 1")
    e("v_xor_b32 v7, s52, v7")
    e("v_lshl_add_u32 v6, v7, 7, v6")
    e("v_and_b32 v7, 15, v5")
    e("v_lshl_add_u32 v6, v7, 3, v6")
    e("s_lshl_b32 s53, s2, 8")
    e("s_lshl_b32 s54, s51, 2")
    e("s_add_u32 s53, s53, s54")
    e(f"s_add_u32 s53, s53, s{s_xin}")
    for j in range(8):
        e(f"s_add_u32 s50, s53, {j * 8 * 36864}")
        e(f"buffer_load_dword v{32+j}, v6, {srd(SRD_WS)}, s50 offen sc1")
    e("s_lshl_b32 s54, s2, 1")
    e("s_add_u32 s54, s54, s51")
    e("s_lshl_b32 s54, s54, 13")
    e(f"s_add_u32 s54, s54, {WT}")
    e("v_lshlrev_b32 v8, 5, v5")
    e(f"buffer_load_dwordx4 {vr(WREG,4)}, v8, {srd(SRD_WS)}, s54 offen sc1")
    e(f"buffer_load_dwordx4 {vr(WREG+4,4)}, v8, {srd(SRD_WS)}, s54 offen offset:16 sc1")
    e(f"v_mov_b32 v{SQ}, 0x3f3504f3")
    e(f"v_mov_b32 v{SQ+1}, 0x3f3504f3")
    e(f"v_mov_b32 v{MASK}, 1.0")
    e("s_lshl_b32 s55, s2, 1")
    e("s_or_b32 s55, s55, s51")
    e("s_cmp_eq_u32 s55, 0")
    e("s_cselect_b32 s56, 0, 1.0")
    e(f"v_mov_b32 v{MASK+1}, s56")
    e(f"s_mul_i32 s57, s51, {COLBUF}")
    e(f"s_add_u32 s57, s57, {L_EX}")
    e(f"v_lshlrev_b32 v{A}, 3, v5")
    e(f"v_add_u32 v{A}, s57, v{A}")
    e("v_lshrrev_b32 v9, 5, v5")
    e(f"v_mul_u32_u24 v9, {REGION}, v9")
    e("v_add_u32 v9, s57, v9")
    e("v_and_b32 v10, 31, v5")
    e(f"v_lshl_add_u32 v{A+1}, v10, 3, v9")
    e("v_lshrrev_b32 v11, 2, v10")
    e("v_mul_u32_u24 v11, 288, v11")
    e("v_add_u32 v11, v11, v9")
    e("v_and_b32 v12, 3, v5")
    e(f"v_lshl_add_u32 v{A+2}, v12, 3, v11")
    e(f"v_lshl_add_u32 v{A+3}, v12, 6, v11")
    e(f"s_mul_i32 s58, s{S_HG}, 9")
    e(f"s_add_u32 s58, s58, s{S_WAVE}")
    e("s_mul_i32 s58, s58, 18432")
    e(f"s_add_u32 s58, s58, {WQF}")
    e(f"v_lshlrev_b32 v14, 4, v{V_LANE}")
    e("s_waitcnt vmcnt(10)")
    for r in range(4):
        e(f"v_add_f32 v{16+r}, v{16+r}, v{20+r}")
        e(f"v_add_f32 v{24+r}, v{24+r}, v{28+r}")
    for r in range(4):
        e(f"v_add_f32 v{16+r}, v{16+r}, v{24+r}")
    for r in range(4):
        e.inv_sigma(16 + r, 13, scale="0x3a000000")
    e("v_lshlrev_b32 v4, 4, v0")
    e("ds_write_b128 v4, v[16:19]")
    e("s_waitcnt lgkmcnt(0)")
    e("s_barrier")
    e("v_lshlrev_b32 v4, 2, v5")
    for j in range(8):
        e(f"ds_read_b32 v{40+j}, v4 offset:{j*1024}")
    e("s_waitcnt vmcnt(2)")
    for j in range(8):
        e(f"v_lshlrev_b32 v{XOLD+2*j}, 16, v{32+j}")
        e(f"v_and_b32 v{XOLD+2*j+1}, 0xffff0000, v{32+j}")
    e("s_waitcnt lgkmcnt(0)")
    f = FFT(e)
    z = []
    safe = [16, 18, 20, 22, 24, 26, 28, 30]
    for j in range(8):
        f.pool.free.remove(safe[j])
        e(f"v_pk_mul_f32 {P(safe[j])}, {P(XOLD+2*j)}, v[{40+2*(j//2)}:{41+2*(j//2)}] op_sel:[0,{j%2}] op_sel_hi:[1,{j%2}]")
        z.append(safe[j])
    nm = e.L("nomask")
    e("s_cmp_lg_u32 s55, 0")
    e(f"s_cbranch_scc1 {nm}")
    for j in range(8):
        e(f"v_pk_mul_f32 {P(z[j])}, {P(z[j])}, {P(MASK)}")
    e.label(nm)
    z = f.dft8(z, -1); z = f.twiddle(z, TW1, False)
    f.write(z, A, [k * REGION for k in range(8)])
    e("s_waitcnt lgkmcnt(0)")
    e("s_barrier")
    z = f.read(A + 1, [j * 256 for j in range(8)])
    z = f.dft8(z, -1); z = f.twiddle(z, TW2, False)
    f.write(z, A + 1, [k * 288 for k in range(8)])
    z = f.read(A + 2, [j * 32 for j in range(8)])
    z = f.dft8(z, -1); z = f.twiddle(z, TW3, False)
    f.write(z, A + 2, [k * 32 for k in range(8)])
    z = f.read_quads(A + 3, [e_ * 32 + h * 16 for e_ in range(2) for h in range(2)])
    z = f.dft4(z[:4], -1) + f.dft4(z[4:], -1)
    e("s_waitcnt vmcnt(0)")
    wq_hook(e, 0)
    wt = f.pool.get()
    for i in range(8):
        e(f"v_lshlrev_b32 v{wt}, 16, v{WREG+i}")
        e(f"v_and_b32 v{wt+1}, 0xffff0000, v{WREG+i}")
        z[i] = f.cmul(z[i], wt)
    f.pool.put(wt)
    wq_hook(e, 1)
    z = f.dft4(z[:4], +1, True) + f.dft4(z[4:], +1, True)
    f.write_quads(z, A + 3, [e_ * 32 + h * 16 for e_ in range(2) for h in range(2)])
    z = f.read(A + 2, [k * 32 for k in range(8)])
    wq_hook(e, 2)
    z = f.twiddle(z, TW3, True); z = f.dft8(z, +1)
    f.write(z, A + 2, [j * 32 for j in range(8)])
    z = f.read(A + 1, [k * 288 for k in range(8)])
    wq_hook(e, 3)
    z = f.twiddle(z, TW2, True); z = f.dft8(z, +1)
    wq_hook(e, 4)
    f.write(z, A + 1, [j * 256 for j in range(8)])
    e("s_waitcnt lgkmcnt(0)")
    e("s_barrier")
    z = f.read(A, [k * REGION for k in range(8)])
    wq_hook(e, 5)
    z = f.twiddle(z, TW1, True); z = f.dft8(z, +1)
    e(f"s_mov_b32 s{s_wqok}, s{S_LAYER}")
    e("v_lshlrev_b32 v4, 3, v5")
    e("s_lshl_b32 s54, s51, 2")
    e(f"s_add_u32 s54, s54, {L_OUT}")
    e("v_add_u32 v4, s54, v4")
    for j in range(8):
        e(f"v_pk_fma_f32 {P(z[j])}, {P(z[j])}, {P(MASK)}, {P(XOLD+2*j)}")
        e(f"v_cvt_pk_bf16_f32 v{z[j]}, v{z[j]}, v{z[j]+1}")
        e(f"ds_write_b32 v4, v{z[j]} offset:{j*2048}")
    e("s_waitcnt lgkmcnt(0)")
    e("s_barrier")
    e("v_lshlrev_b32 v4, 4, v0")
    e(f"ds_read_b128 v[16:19], v4 offset:{L_OUT}")
    e(f"ds_read_b128 v[20:23], v4 offset:{L_OUT + 8192}")
    e("v_lshrrev_b32 v6, 4, v0")
    e("v_mul_u32_u24 v6, 36864, v6")
    e("v_lshrrev_b32 v7, 3, v0")
    e("v_and_b32 v7, 1, v7")
    e("v_xor_b32 v7, s52, v7")
    e("v_lshl_add_u32 v6, v7, 7, v6")
    e("v_and_b32 v7, 7, v0")
    e("v_lshl_add_u32 v6, v7, 4, v6")
    e("s_lshl_b32 s53, s2, 8")
    e(f"s_add_u32 s53, s53, s{s_xout}")
    e(f"s_add_u32 s50, s53, {32 * 36864}")
    e("s_waitcnt lgkmcnt(0)")
    e(f"buffer_store_dwordx4 v[16:19], v6, {srd(SRD_WS)}, s53 offen sc1")
    e(f"buffer_store_dwordx4 v[20:23], v6, {srd(SRD_WS)}, s50 offen sc1")
```

```python
from gen_common import *

WD, WD2 = 208, 220


def p0(e, after_gemm):
    nz = e.L("nozero")
    e("s_cmp_lg_u32 s2, 0")
    e(f"s_cbranch_scc1 {nz}")
    e("v_mov_b32 v12, 0")
    e("v_lshlrev_b32 v9, 8, v0")
    e(f"buffer_store_dword v12, v9, {srd(SRD_WS)}, 0 offen sc1")
    e.label(nz)
    e.make_srd(SRD_A, S_AX, XBYTES)
    e(f"v_lshrrev_b32 v6, 3, v{V_LANE}")
    e(f"s_lshl_b32 s50, s{S_QB}, 5")
    e("v_add_u32 v4, s50, v6")
    e("v_mul_u32_u24 v4, 1152, v4")
    e(f"v_and_b32 v7, 7, v{V_LANE}")
    e("v_xor_b32 v7, v7, v6")
    e("v_lshl_add_u32 v4, v7, 4, v4")
    for m in range(5):
        skip = None
        if m == 4:
            skip = e.L("p0dma")
            e(f"s_cmp_ge_u32 s{S_WAVE}, 4")
            e(f"s_cbranch_scc1 {skip}")
        e(f"s_add_u32 s50, s{S_WAVE}, {8*m}")
        e(f"s_mul_hi_u32 s51, s50, {((1 << 32) + 8) // 9}")
        e("s_mul_i32 s52, s51, 9")
        e("s_sub_u32 s52, s50, s52")
        e("s_lshl_b32 s52, s52, 7")
        e(f"s_mul_i32 s51, s51, {8 * 1152}")
        e("s_add_u32 s51, s51, s52")
        e("s_lshl_b32 m0, s50, 10")
        e(f"buffer_load_dwordx4 v4, {srd(SRD_A)}, s51 offen lds")
        if skip:
            e.label(skip)
    PRE = 18
    e.make_srd(SRD_T, S_FT, 36 * 18432)
    e(f"v_lshlrev_b32 v60, 4, v{V_LANE}")
    e(f"s_mul_i32 s56, s{S_HG}, 9")
    e(f"s_add_u32 s60, s56, s{S_WAVE}")
    e("s_mul_i32 s60, s60, 18432")
    e("s_add_u32 s61, s56, 8")
    e("s_mul_i32 s61, s61, 18432")

    def frag(ks, ex):
        e(f"s_add_u32 s50, s60, {ks * 1024}")
        e(f"buffer_load_dwordx4 {vr(G_A + 4*ks, 4)}, v60, {srd(SRD_T)}, s50 offen")
        if ex:
            e(f"s_add_u32 s50, s61, {ks * 1024}")
            e(f"buffer_load_dwordx4 {vr(G_AX + 4*ks, 4)}, v60, {srd(SRD_T)}, s50 offen")
    nx, w2 = e.L("p0nx"), e.L("p0w")
    e(f"s_cmp_ge_u32 s{S_WAVE}, 2")
    e(f"s_cbranch_scc1 {nx}")
    for ks in range(PRE):
        frag(ks, True)
    e(f"s_branch {w2}")
    e.label(nx)
    for ks in range(PRE):
        frag(ks, False)
    e.label(w2)
    e.make_srd(SRD_A, S_WR, S * 289 * 2)
    e.make_srd(SRD_B, S_WI, S * 289 * 2)
    e("s_lshr_b32 s50, s2, 2")
    e("s_and_b32 s51, s2, 3")
    e("s_lshr_b32 s52, s50, 3")
    e("s_and_b32 s53, s50, 7")
    e("s_lshl_b32 s53, s53, 3")
    e("s_add_u32 s52, s52, s53")
    e(f"s_lshl_b32 s53, s{S_WAVE}, 6")
    e("s_add_u32 s52, s52, s53")
    e("s_mul_i32 s52, s52, 578")
    e("s_mul_i32 s54, s51, 72")
    e("s_lshl_b32 s55, s50, 7")
    e("s_lshl_b32 s58, s54, 13")
    e("s_add_u32 s55, s55, s58")
    e(f"s_add_u32 s{S_X+5}, s55, {WT}")
    e(f"v_add_u32 v9, s54, v{V_LANE}")
    e("v_cmp_eq_u32 vcc, 0, v9")
    e("v_mov_b32 v10, 288")
    e("v_cndmask_b32 v10, v9, v10, vcc")
    e("v_lshlrev_b32 v10, 1, v10")
    e(f"v_lshrrev_b32 v11, 3, v{V_LANE}")
    e("v_and_b32 v11, 3, v11")
    e(f"v_mul_u32_u24 v11, {512 * 578 // 2}, v11")
    e(f"v_and_b32 v12, 7, v{V_LANE}")
    e("v_add_u32 v11, v11, v12")
    e("s_add_u32 s59, s54, 64")
    e("v_add_u32 v11, s59, v11")
    e("v_lshlrev_b32 v11, 1, v11")

    def wt_loads():
        for f3 in range(4):
            e(f"s_add_u32 s59, s52, {f3 * 512 * 578}")
            e(f"buffer_load_ushort v{WD+f3}, v10, {srd(SRD_A)}, s59 offen")
            e(f"buffer_load_ushort v{WD2+f3}, v10, {srd(SRD_B)}, s59 offen")
        e("s_mov_b32 exec_hi, 0")
        e(f"buffer_load_ushort v{WD+4}, v11, {srd(SRD_A)}, s52 offen")
        e(f"buffer_load_ushort v{WD2+4}, v11, {srd(SRD_B)}, s52 offen")
        e("s_mov_b64 exec, -1")
    e(f"s_and_b32 s50, s{S_WAVE}, 1")
    e(f"v_and_b32 v4, 7, v{V_R16}")
    e(f"v_xor_b32 v5, v4, v{V_GQ}")
    e("v_lshlrev_b32 v5, 4, v5")
    e("v_lshl_add_u32 v5, v4, 7, v5")
    e(f"v_lshrrev_b32 v6, 3, v{V_R16}")
    e("v_mul_u32_u24 v6, 9216, v6")
    e("v_add_u32 v5, v5, v6")
    e("s_mul_i32 s51, s50, 18432")
    e("v_add_u32 v56, s51, v5")
    e("v_xor_b32 v57, 64, v56")
    e("s_sub_u32 s51, 18432, s51")
    e("v_add_u32 v58, s51, v5")
    e("v_xor_b32 v59, 64, v58")
    wa, wb, wz = e.L("p0wa"), e.L("p0wb"), e.L("p0wz")
    e("s_cmp_eq_u32 s2, 0")
    e(f"s_cbranch_scc1 {wz}")
    e(f"s_cmp_ge_u32 s{S_WAVE}, 2")
    e(f"s_cbranch_scc1 {wa}")
    e(f"s_waitcnt vmcnt({2*PRE})")
    e(f"s_branch {wb}")
    e.label(wa)
    e(f"s_waitcnt vmcnt({PRE})")
    e(f"s_branch {wb}")
    e.label(wz)
    e("s_waitcnt vmcnt(0)")
    e.label(wb)
    e("s_barrier")
    e.stamp("p0 loaded")
    ng = e.L("nogo")
    e(f"s_or_b32 s50, s2, s{S_WAVE}")
    e("s_cmp_lg_u32 s50, 0")
    e(f"s_cbranch_scc1 {ng}")
    e(f"s_mov_b32 s92, s{S_DBG}")
    e(f"s_mov_b32 s93, s{S_DBG+1}")
    e("s_mov_b32 s94, 256")
    e("s_mov_b32 s95, 0x20000")
    e("v_mov_b32 v9, 0")
    e("v_mov_b32 v12, 1")
    e("s_mov_b64 exec, 1")
    e("buffer_store_dword v12, v9, s[92:95], 0 offen sc1")
    e("s_mov_b64 exec, -1")
    e("s_waitcnt vmcnt(0)")
    e.label(ng)

    wt_loads()
    mk_hook = lambda ex: None
    vm = lambda ks, ex: (2 if ex else 1) * (17 - ks) + 10
    noex, gd = e.L("p0_noex"), e.L("p0_gd")
    e(f"s_cmp_ge_u32 s{S_WAVE}, 2")
    e(f"s_cbranch_scc1 {noex}")
    e.g144("row", (56, 57), (58, 59), True, mk_hook(True), True, vm)
    e(f"s_branch {gd}")
    e.label(noex)
    e.g144("row", (56, 57), (58, 59), False, mk_hook(False), True, vm)
    e.label(gd)
    e.make_srd(SRD_B, S_DBG, 256)
    e("v_mov_b32 v9, 0")
    e(f"buffer_load_dword v252, v9, {srd(SRD_B)}, 0 offen sc1")
    after_gemm()
    e(f"s_mov_b32 s{S_X}, {X0}")
    e(f"s_mov_b32 s{S_X+1}, {PART0}")
    e.xhat_epilogue(S_X, S_X + 1, pre_store=lambda: wt_stage(e), post_barrier=lambda: wt_store(e))


L_WT = 40960


def wt_stage(e):
    e("s_waitcnt vmcnt(3)")
    for r in range(5):
        e(f"v_lshl_or_b32 v{WD+r}, v{WD2+r}, 16, v{WD+r}")
    e(f"s_lshl_b32 s53, s{S_WAVE}, 4")
    e(f"s_add_u32 s53, s53, {L_WT}")
    e(f"v_lshlrev_b32 v216, 7, v{V_LANE}")
    e("v_add_u32 v216, s53, v216")
    e(f"ds_write_b128 v216, {vr(WD,4)}")
    e(f"v_and_b32 v217, 7, v{V_LANE}")
    e("v_lshlrev_b32 v217, 7, v217")
    e(f"v_bfe_u32 v218, v{V_LANE}, 3, 2")
    e("v_lshl_add_u32 v217, v218, 2, v217")
    e(f"s_add_u32 s53, s53, {64 * 128}")
    e("v_add_u32 v217, s53, v217")
    e("s_mov_b32 exec_hi, 0")
    e(f"ds_write_b32 v217, v{WD+4}")
    e("s_mov_b64 exec, -1")


def wt_store(e):
    e("v_lshlrev_b32 v216, 4, v0")
    e(f"ds_read_b128 {vr(WD,4)}, v216 offset:{L_WT}")
    e(f"ds_read_b128 {vr(WD2,4)}, v216 offset:{L_WT + 8192}")
    e("v_lshrrev_b32 v217, 3, v0")
    e("v_lshlrev_b32 v217, 13, v217")
    e("v_and_b32 v218, 7, v0")
    e("v_lshl_add_u32 v217, v218, 4, v217")
    e("s_waitcnt lgkmcnt(0)")
    e(f"buffer_store_dwordx4 {vr(WD,4)}, v217, {srd(SRD_WS)}, s{S_X+5} offen sc1")
    sk = e.L("wt2")
    e(f"s_cmp_lg_u32 s{S_WAVE}, 0")
    e(f"s_cbranch_scc1 {sk}")
    e(f"s_add_u32 s53, s{S_X+5}, {64 * 8192}")
    e(f"buffer_store_dwordx4 {vr(WD2,4)}, v217, {srd(SRD_WS)}, s53 offen sc1")
    e.label(sk)
```

```python
import sys
from gen_common import *
import gen_p0, gen_fft, gen_prep, gen_attn, tables

NAME = "interleave_layers__spectral_gfnet__grouped_kv_mqa__prompt_kernel"

HEADER = """; Kernarg layout (88 bytes, ptrs only, base s[0:1]):
; @launch grid=(256,1,1) block=(512,1,1) lds=163840
.amdgcn_target "amdgcn-amd-amdhsa--gfx950"
.text
.globl {n}
.p2align 8
.type {n},@function
{n}:
"""

FOOTER = """.section .rodata,"a"
.p2align 6
.amdhsa_kernel {n}
  .amdhsa_next_free_vgpr {v}
  .amdhsa_next_free_sgpr {s}
  .amdhsa_accum_offset {v}
  .amdhsa_group_segment_fixed_size 0
  .amdhsa_kernarg_size 88
  .amdhsa_user_sgpr_count 2
  .amdhsa_user_sgpr_kernarg_segment_ptr 1
  .amdhsa_system_sgpr_workgroup_id_x 1
  .amdhsa_float_denorm_mode_32 3
.end_amdhsa_kernel
"""


DBG_SLOTS = [("p0 loaded", 1, 0), ("p0 done", 1, 0), ("bar0", 1, 0), ("s done", 1, 0), ("bar1", 1, 0), ("bar2", 1, 0),
             ("kv loaded", 1, 0), ("attn done", 1, 0), ("bar4", 1, 0), ("bar1", 1, 1), ("bar2", 1, 1), ("attn done", 1, 1),
             ("bar3", 1, 1), ("end", 1, 1)]


def build(stop=99, profile=False, dbgprof=False, **opts):
    e = Gen()
    for k_, v_ in opts.items(): setattr(e, k_, v_)
    e.profile = profile
    if dbgprof:
        e.dbgprof = DBG_SLOTS
    A = gen_attn

    def halt(k):
        if stop == k:
            e("s_branch L_fin")

    def fft_wg(fn):
        sk = e.L("fftwg")
        e("s_cmp_ge_u32 s2, 144")
        e(f"s_cbranch_scc1 {sk}")
        fn(e)
        e.label(sk)

    e.prologue(lambda: gen_p0.p0_early(e))
    e(f"s_mov_b32 s{S_X+6}, 0")
    e(f"s_mov_b32 s{A.S_WQOK}, 0")
    e.stamp('start')
    gen_p0.p0(e, lambda: fft_wg(gen_fft.tw_loads))
    e.stamp('p0 done')
    e.arrive(0, go_check=True)
    e.label("L_layer")
    nof, sdone, p5 = e.L("nofft"), e.L("sdone"), e.L("prep5")
    e("s_cmp_ge_u32 s2, 144")
    e(f"s_cbranch_scc1 {nof}")
    gen_fft.tw_powers(e)
    e.wait(0, per_layer=True)
    e.stamp('bar0')
    e(f"s_cmp_eq_u32 s{S_LAYER}, 0")
    e.sel(S_X, X0, X2)
    e.sel(S_X+1, X1, X3)
    e.sel(S_X+2, PART0, PART2)
    gen_fft.sfilter(e, S_X, S_X + 1, S_X + 2, A.S_WQOK)
    e(f"s_branch {sdone}")
    e.label(nof)
    e("s_waitcnt vmcnt(0)")
    e(f"s_cmp_lg_u32 s{S_LAYER}, 0")
    e(f"s_cbranch_scc1 {p5}")
    gen_prep.prep_phase1(e)
    e(f"s_branch {sdone}")
    e.label(p5)
    A.wq_main(e)
    e(f"s_mov_b32 s{A.S_WQOK}, 1")
    e.label(sdone)
    e.stamp('s done')
    e.arrive(1, per_layer=True)
    e.wait(1, per_layer=True)
    e.stamp('bar1')
    halt(1)
    e(f"s_cmp_eq_u32 s{S_LAYER}, 0")
    e.sel(A.S_XIN, X1, X3)
    e.sel(A.S_KV, KV0, KV1)
    e.sel(A.S_OB, O0, O1)
    A.p2(e)
    e.stamp('p2 done')
    e(f"s_mov_b32 s{A.S_FB}, 0")
    e.label("L_redo")
    A.attention_setup(e)
    e.wait(2, per_layer=True, target=2 * (256 // NSHARD), first_sleep=0)
    e.stamp('bar2')
    halt(2)
    A.attention(e)
    e.stamp('attn done')
    e.arrive(group=True)
    last = e.L("last")
    e(f"s_cmp_lg_u32 s{S_LAYER}, 0")
    e(f"s_cbranch_scc1 {last}")
    A.tail_weights(e, True, 60)
    e.wait(group=True, first_sleep=4)
    e.stamp('bar3')
    halt(3)
    A.p4(e)
    fft_wg(gen_fft.tw_loads)
    e(f"s_mov_b32 s{S_X}, {X2}")
    e(f"s_mov_b32 s{S_X+1}, {PART2}")
    e.xhat_epilogue(S_X, S_X + 1)
    e.stamp('p4 done')
    e.arrive(3)
    halt(4)
    e(f"s_mov_b32 s{S_LAYER}, 1")
    e("s_branch L_layer")
    e.label(last)
    A.p8_pre(e)
    e.wait(group=True, first_sleep=4)
    e.stamp('bar3')
    A.p8(e)
    A.out_epilogue(e)
    e.label("L_fin")
    e.dump_stamps()
    e.label("L_end")
    e("s_endpgm")
    e.label("L_code_end")
    n = e.fix_hazards()
    errs = e.check_waits([(w, g) for w in (0, 1, 2, 4, 6, 7) for g in (0, 5, 150, 200)])
    for x in errs[:40]:
        print("WAITCHECK:", x, file=sys.stderr)
    mv, ms = e.max_regs()
    print(f"instructions={sum(1 for i in e.ins if i.mn)} nops_inserted={n} vgpr={mv} sgpr={ms} waiterrs={len(errs)}", file=sys.stderr)
    assert mv <= 256 and ms <= 102
    if profile:
        open("stamps.txt", "w").write("\n".join(e.stamp_names))
    return HEADER.format(n=NAME) + e.text() + FOOTER.format(n=NAME, v=256, s=102) + tables.tables()


if __name__ == "__main__":
    stop = int(sys.argv[2]) if len(sys.argv) > 2 else 99
    prof = len(sys.argv) > 3 and sys.argv[3] == "prof"
    dbg = len(sys.argv) > 3 and sys.argv[3] == "dbg"
    open(sys.argv[1], "w").write(build(stop, prof, dbg))
```

```python
import re

REG_RE = re.compile(r"^(-|\|)?([vsa])(\d+)\|?$")
RANGE_RE = re.compile(r"^(-|\|)?([vsa])\[(\d+):(\d+)\]\|?$")
TRANS = ("v_exp_f32", "v_log_f32", "v_rcp_f32", "v_rsq_f32", "v_sqrt_f32", "v_sin_f32", "v_cos_f32",
         "v_exp_f16", "v_rcp_iflag_f32")


def regs_of(op):
    op = op.strip()
    m = REG_RE.match(op)
    if m:
        return {(m.group(2), int(m.group(3)))}
    m = RANGE_RE.match(op)
    if m:
        return {(m.group(2), i) for i in range(int(m.group(3)), int(m.group(4)) + 1)}
    if op == "vcc":
        return {("s", "vcc_lo"), ("s", "vcc_hi")}
    if op in ("vcc_lo", "vcc_hi"):
        return {("s", op)}
    if op == "exec":
        return {("s", "exec_lo"), ("s", "exec_hi")}
    if op in ("exec_lo", "exec_hi"):
        return {("s", op)}
    if op == "m0":
        return {("s", "m0")}
    return set()


class Ins:
    __slots__ = ("text", "mn", "ops", "mods", "defs", "uses", "kind", "label", "target", "passes", "srcc", "sdata")

    def __init__(self, text):
        self.text = text
        self.label = None
        self.target = None
        self.passes = 0
        self.srcc = set()
        self.sdata = set()
        self.defs = set()
        self.uses = set()
        t = text.split(";")[0].strip()
        if t.endswith(":") and " " not in t:
            self.label = t[:-1]
            self.mn = None
            self.kind = "label"
            self.ops = []
            self.mods = ""
            return
        if not t or t.startswith("."):
            self.mn = None
            self.kind = "dir"
            self.ops = []
            self.mods = ""
            return
        parts = t.split(None, 1)
        self.mn = mn = parts[0]
        rest = parts[1] if len(parts) > 1 else ""
        toks = []
        depth = 0
        cur = ""
        for ch in rest:
            if ch == "[":
                depth += 1
            if ch == "]":
                depth -= 1
            if ch == "," and depth == 0:
                toks.append(cur.strip())
                cur = ""
            else:
                cur += ch
        if cur.strip():
            toks.append(cur.strip())
        mods = ""
        if toks:
            last = toks[-1].split(None, 1)
            if len(last) > 1:
                toks[-1] = last[0]
                mods = last[1]
        self.ops = toks
        self.mods = mods
        self._classify()

    def _classify(self):
        mn, ops = self.mn, self.ops
        R = lambda i: regs_of(ops[i]) if i < len(ops) else set()
        allr = lambda a: set().union(*[regs_of(o) for o in ops[a:]]) if len(ops) > a else set()
        if mn.startswith("v_mfma"):
            self.kind = "mfma"
            self.defs = R(0)
            self.uses = R(1) | R(2) | R(3)
            self.srcc = R(3)
            if "32x32x16" in mn or "32x32x8" in mn:
                self.passes = 8
            elif "16x16x32" in mn or "16x16x16" in mn:
                self.passes = 4
            else:
                raise ValueError("unknown mfma " + mn)
        elif mn.startswith("v_"):
            self.kind = "valu"
            if mn.startswith("v_cmp"):
                self.defs = R(0)
                self.uses = allr(1)
            elif mn.startswith("v_readfirstlane") or mn.startswith("v_readlane"):
                self.defs = R(0)
                self.uses = allr(1)
            elif mn.startswith("v_permlane") and "swap" in mn:
                self.defs = R(0) | R(1)
                self.uses = R(0) | R(1)
            elif mn.startswith(("v_add_co", "v_sub_co", "v_addc_co", "v_subb_co")):
                self.defs = R(0) | R(1)
                self.uses = allr(2)
            elif mn.startswith("v_cndmask"):
                self.defs = R(0)
                self.uses = allr(1)
                if len(ops) == 3:
                    self.uses |= regs_of("vcc")
            elif mn.startswith(("v_fmac", "v_dot2c", "v_pk_fmac", "v_writelane")):
                self.defs = R(0)
                self.uses = allr(0)
            else:
                self.defs = R(0)
                self.uses = allr(1)
            if "dst_unused:UNUSED_PRESERVE" in self.mods:
                self.uses |= R(0)
        elif mn.startswith("buffer_"):
            self.kind = "vmem"
            lds = re.search(r"\blds\b", self.mods) is not None
            if lds:
                self.uses = allr(0) | {("s", "m0")}
            elif mn.startswith("buffer_load"):
                self.defs = R(0)
                self.uses = allr(1)
                if "d16" in mn:
                    self.uses |= R(0)
            elif mn.startswith("buffer_store"):
                self.uses = allr(0)
                self.sdata = R(0)
            elif mn.startswith("buffer_atomic"):
                self.uses = allr(0)
                if re.search(r"\bsc0\b", self.mods):
                    self.defs = R(0)
            else:
                self.uses = allr(0)
        elif mn.startswith("global_"):
            self.kind = "vmem"
            if mn.startswith("global_load"):
                self.defs = R(0)
                self.uses = allr(1)
            else:
                self.uses = allr(0)
                self.sdata = R(1)
        elif mn.startswith("ds_"):
            self.kind = "ds"
            if mn.startswith(("ds_read", "ds_bpermute", "ds_permute", "ds_swizzle")):
                self.defs = R(0)
                self.uses = allr(1)
            else:
                self.uses = allr(0)
        elif mn.startswith(("s_load", "s_memtime", "s_memrealtime")):
            self.kind = "smem"
            self.defs = R(0)
            self.uses = allr(1)
        elif mn in ("s_branch",) or mn.startswith("s_cbranch"):
            self.kind = "branch"
            self.target = self.ops[0]
            if "vcc" in mn:
                self.uses = regs_of("vcc")
            if "exec" in mn:
                self.uses = regs_of("exec")
        elif mn in ("s_waitcnt", "s_nop", "s_barrier", "s_endpgm", "s_sleep", "s_setprio"):
            self.kind = "ctl"
        elif mn.startswith("s_"):
            self.kind = "salu"
            if mn.startswith(("s_cmp", "s_bitcmp")):
                self.uses = allr(0)
            elif "saveexec" in mn:
                self.defs = R(0) | regs_of("exec")
                self.uses = allr(1) | regs_of("exec")
            elif mn.startswith(("s_addk", "s_mulk")):
                self.defs = R(0)
                self.uses = R(0)
            else:
                self.defs = R(0)
                self.uses = allr(1)
        else:
            raise ValueError("unknown instruction: " + self.text)

    def states(self):
        if self.mn is None:
            return 0
        if self.mn == "s_nop":
            return int(self.ops[0], 0) + 1
        return 1


def is_v(rs):
    return {r for r in rs if r[0] in "va"}


def is_s(rs):
    return {r for r in rs if r[0] == "s"}


def need(p, c):
    n = 0
    pv, ps = is_v(p.defs), is_s(p.defs)
    if p.kind == "valu" and p.mn.startswith("v_dot"):
        if c.mn == p.mn:
            ab = set().union(*[regs_of(o) for o in c.ops[1:3]])
            if pv & ab:
                n = max(n, 3)
        elif pv & (c.uses | c.defs):
            n = max(n, 3)
    if p.kind == "valu":
        if c.kind == "mfma" and pv & is_v(c.uses):
            n = max(n, 2)
        if c.kind == "valu":
            if p.mn in TRANS and c.mn not in TRANS and pv & c.uses:
                n = max(n, 1)
            if p.mn in TRANS and c.mn in TRANS and pv & c.uses:
                n = max(n, 1)
            if c.mn.startswith(("v_readfirstlane", "v_readlane")) and pv & c.uses:
                n = max(n, 1)
            if (c.mn.startswith("v_permlane") or "dpp" in c.mn or "quad_perm" in c.mods or "row_" in c.mods) and pv & c.uses:
                n = max(n, 2)
            if ps & is_s(c.uses):
                n = max(n, 4 if c.mn.startswith(("v_readlane", "v_writelane")) else 2)
            if "sdwa" in p.mn and "dst_sel:DWORD" not in p.mods and pv & (c.uses | c.defs):
                n = max(n, 1)
        if c.kind == "vmem" and ps & is_s(c.uses):
            n = max(n, 5)
        if c.kind == "salu" and ps & is_s(c.uses):
            n = max(n, 4)
        if c.kind == "branch" and ps & is_s(c.uses):
            n = max(n, 5)
    if p.kind == "mfma":
        big = p.passes == 8
        if c.kind in ("valu", "vmem", "ds") and pv & (c.uses | c.defs):
            n = max(n, 12 if big else 8)
        if c.kind == "mfma":
            ab = (regs_of(c.ops[1]) | regs_of(c.ops[2]))
            if pv & ab:
                n = max(n, 12 if big else 8)
            if pv & c.srcc:
                if not (pv == c.srcc and p.passes == c.passes):
                    n = max(n, 10 if big else 6)
            elif pv & c.defs:
                n = max(n, 10 if big else 6)
        if c.kind == "valu" and p.srcc & is_v(c.defs):
            n = max(n, 7 if big else 3)
    if p.kind == "vmem" and len(p.sdata) >= 3 and p.sdata & is_v(c.defs):
        n = max(n, 2 if c.kind in ("valu", "mfma") else 1)
    if p.kind == "salu" and ("s", "m0") in p.defs and c.kind == "vmem" and ("s", "m0") in c.uses:
        n = max(n, 1)
    return n


class Prog:
    def __init__(self):
        self.ins = []

    def __call__(self, text):
        for line in text.split("\n"):
            line = line.strip()
            if line:
                self.ins.append(Ins(line))

    def label(self, name):
        self.ins.append(Ins(name + ":"))

    def _preds(self):
        labels = {i.label: n for n, i in enumerate(self.ins) if i.label}
        preds = [[] for _ in self.ins]
        for n, i in enumerate(self.ins):
            if i.kind == "branch":
                if i.target not in labels:
                    raise ValueError("undefined label " + i.target)
                preds[labels[i.target]].append(n)
            if n + 1 < len(self.ins) and i.mn not in ("s_branch", "s_endpgm"):
                preds[n + 1].append(n)
        return preds

    def fix_hazards(self, maxd=13):
        total = 0
        while True:
            preds = self._preds()
            ins = self.ins
            inserts = {}
            for n, c in enumerate(ins):
                if c.mn is None or c.kind in ("ctl",):
                    continue
                worst = 0
                stack = [(p, 0) for p in preds[n]]
                seen = {}
                while stack:
                    p, d = stack.pop()
                    if seen.get(p, 99) <= d:
                        continue
                    seen[p] = d
                    pi = ins[p]
                    if pi.mn is not None:
                        k = need(pi, c)
                        if k > d:
                            worst = max(worst, k - d)
                    nd = d + pi.states()
                    if nd < maxd:
                        for q in preds[p]:
                            stack.append((q, nd))
                if worst:
                    inserts[n] = worst
            if not inserts:
                break
            first = True
            out = []
            last = -99
            for n, c in enumerate(ins):
                if n in inserts and n - last > 16:
                    k = inserts[n]
                    out.append(Ins(f"s_nop {k - 1}"))
                    total += 1
                    last = n
                out.append(c)
            self.ins = out
        return total

    def check_waits(self, cases=None):
        errors = {}
        for wave, wg in (cases or [(None, None)]):
            for k, v in self._check_waits_case(wave, wg).items():
                errors.setdefault(k, v + f"   [wave {wave}, wg {wg}]")
        return list(errors.values())

    def _check_waits_case(self, wave, wg, s_wave=26, s_layer=45, s_flag=79):
        ins = self.ins
        labels = {i.label: n for n, i in enumerate(ins) if i.label}
        NOSCC = ("s_mov_b32", "s_mov_b64", "s_mul_i32", "s_mul_hi_u32", "s_cselect_b32", "s_cselect_b64", "s_getpc_b64")
        CMP = {"eq": lambda a, b: a == b, "lg": lambda a, b: a != b, "ge": lambda a, b: a >= b, "gt": lambda a, b: a > b,
               "le": lambda a, b: a <= b, "lt": lambda a, b: a < b}
        state = {}
        start = (0, None, None)
        state[start] = ({}, {}, frozenset(), None)
        work = [start]
        errors = {}
        while work:
            key = work.pop()
            n, layer, flag = key
            vm, lg, sm, scc = state[key]
            vm, lg, sm = dict(vm), dict(lg), set(sm)
            i = ins[n]
            succ = []
            if i.mn is not None:
                touched = i.uses | i.defs
                for tag, d in (("vmcnt", vm), ("lgkmcnt", lg)):
                    for op in d:
                        hit = ins[op].defs & touched
                        if hit and op != n:
                            errors[(n, op)] = f"{tag}: line {n} '{i.text}' touches {sorted(hit)[:3]} of in-flight '{ins[op].text}'"
                for r in sm:
                    if r in touched:
                        errors[(n, r)] = f"smem: line {n} '{i.text}' touches in-flight {r}"
                if i.mn == "s_waitcnt":
                    t = " ".join(i.ops) + " " + i.mods
                    m = re.search(r"vmcnt\((\d+)\)", t)
                    if m:
                        k = int(m.group(1))
                        vm = {op: c for op, c in vm.items() if c < k}
                    m = re.search(r"lgkmcnt\((\d+)\)", t)
                    if m:
                        k = int(m.group(1))
                        if k == 0:
                            lg = {}
                            sm = set()
                        else:
                            lg = {op: c for op, c in lg.items() if c < k}
                elif i.kind == "vmem":
                    vm = {op: min(c + 1, 64) for op, c in vm.items()}
                    if i.defs:
                        vm[n] = 0
                elif i.kind == "ds":
                    lg = {op: min(c + 1, 16) for op, c in lg.items()}
                    if i.defs:
                        lg[n] = 0
                elif i.kind == "smem":
                    sm |= i.defs
                elif i.kind == "salu":
                    m = re.match(r"s_cmp_(eq|lg|ge|gt|le|lt)_u32$", i.mn)
                    if m:
                        known = {f"s{s_wave}": wave, "s2": wg, f"s{s_layer}": layer, f"s{s_flag}": flag}
                        a = known.get(i.ops[0])
                        try:
                            b = int(i.ops[1], 0)
                        except ValueError:
                            b = None
                        scc = CMP[m.group(1)](a, b) if (a is not None and b is not None) else None
                    elif i.mn not in NOSCC:
                        scc = None
                    if i.mn == "s_mov_b32" and i.ops[0] == f"s{s_layer}":
                        layer = int(i.ops[1], 0)
                    if i.mn == "s_mov_b32" and i.ops[0] == f"s{s_flag}":
                        flag = layer if i.ops[1] == f"s{s_layer}" else int(i.ops[1], 0)
            if i.kind == "branch":
                taken = None
                if i.mn == "s_branch":
                    taken = True
                elif i.mn == "s_cbranch_scc1" and scc is not None:
                    taken = scc
                elif i.mn == "s_cbranch_scc0" and scc is not None:
                    taken = not scc
                if taken is not False:
                    succ.append(labels[i.target])
                if taken is not True and n + 1 < len(ins):
                    succ.append(n + 1)
            elif i.mn != "s_endpgm" and n + 1 < len(ins):
                succ.append(n + 1)
            for s_ in succ:
                k2 = (s_, layer, flag)
                if k2 not in state:
                    state[k2] = (vm, lg, frozenset(sm), scc)
                    work.append(k2)
                else:
                    ovm, olg, osm, oscc = state[k2]
                    nvm = dict(ovm)
                    for op, c in vm.items():
                        nvm[op] = min(c, nvm.get(op, 99))
                    nlg = dict(olg)
                    for op, c in lg.items():
                        nlg[op] = min(c, nlg.get(op, 99))
                    nsm = osm | frozenset(sm)
                    nscc = oscc if oscc == scc else None
                    if nvm != ovm or nlg != olg or nsm != osm or nscc != oscc:
                        state[k2] = (nvm, nlg, nsm, nscc)
                        work.append(k2)
        return errors

    def max_regs(self):
        mv = ms = 0
        for i in self.ins:
            for r in i.defs | i.uses:
                if r[0] == "v":
                    mv = max(mv, r[1] + 1)
                elif r[0] == "s" and isinstance(r[1], int):
                    ms = max(ms, r[1] + 1)
        return mv, ms

    def text(self):
        out = []
        for i in self.ins:
            out.append(i.text if (i.label or i.kind == "dir") else "  " + i.text)
        return "\n".join(out) + "\n"
```

```python
from gen_common import *

RES = 244
KA = 208
SA, SB, OA, OB = 16, 32, 48, 136
PA_, PB_ = 152, 160
K1, K2 = 168, 172
V0, V1 = 176, 180
QA1, QA2, QB1, QB2 = 184, 188, 192, 196
AK1, AK2, AV = 198, 199, 200
L_REDX = 0
L_OX = 0
S_XIN, S_KV, S_OB, S_FB = S_X, S_X + 1, S_X + 2, S_X + 4
QSCALE = "0x3eae1a93"


def xtile_bases(e, va, vb, base=L_XT2):
    e(f"s_and_b32 s50, s{S_WAVE}, 1")
    e(f"v_and_b32 v4, 1, v{V_GQ}")
    e("v_xor_b32 v4, s50, v4")
    e(f"v_lshlrev_b32 v5, 9, v{V_GQ}")
    e("v_lshl_add_u32 v5, v4, 7, v5")
    e(f"v_lshl_add_u32 v5, v{V_R16}, 3, v5")
    e(f"v_add_u32 v{va}, {base}, v5")
    e(f"v_xor_b32 v{vb}, 128, v{va}")


def tile_dma(e, s_src, lds_base, vlane16):
    e(f"s_mul_i32 s54, s{S_QB}, 36864")
    e(f"s_add_u32 s54, s54, s{s_src}")
    for m in range(5):
        skip = None
        if m == 4:
            skip = e.L("tdma")
            e(f"s_cmp_ge_u32 s{S_WAVE}, 4")
            e(f"s_cbranch_scc1 {skip}")
        e(f"s_add_u32 s50, s{S_WAVE}, {8*m}")
        e("s_lshl_b32 s50, s50, 10")
        if lds_base:
            e(f"s_add_u32 m0, s50, {lds_base}")
        else:
            e("s_mov_b32 m0, s50")
        e("s_add_u32 s50, s50, s54")
        e(f"buffer_load_dwordx4 v{vlane16}, {srd(SRD_WS)}, s50 offen sc1 lds")
        if skip:
            e.label(skip)


def wq_main(e, v=60):
    e(f"v_lshlrev_b32 v{v}, 4, v{V_LANE}")
    e(f"s_mul_i32 s57, s{S_HG}, 9")
    e(f"s_add_u32 s57, s57, s{S_WAVE}")
    e(f"s_mul_i32 s57, s57, 18432")
    e(f"s_add_u32 s57, s57, {WQF}")
    e.load_a_frags(SRD_WS, 57, G_A, flags="sc1", vlane16=v)


def wq_extra(e):
    nx = e.L("wqnx")
    e(f"s_cmp_ge_u32 s{S_WAVE}, 2")
    e(f"s_cbranch_scc1 {nx}")
    e(f"v_lshlrev_b32 v60, 4, v{V_LANE}")
    e(f"s_mul_i32 s57, s{S_HG}, 9")
    e("s_add_u32 s57, s57, 8")
    e(f"s_mul_i32 s57, s57, 18432")
    e(f"s_add_u32 s57, s57, {WQF}")
    e.load_a_frags(SRD_WS, 57, G_AX, flags="sc1", vlane16=60)
    e.label(nx)


S_WQOK = S_X + 7


def wq_ready_spin(e):
    lp, ok = e.L("wqspin"), e.L("wqok")
    e(f"v_mov_b32 v4, {CNT_WQ}")
    e("s_mov_b32 s48, 0")
    e.label(lp)
    e(f"buffer_load_dword v5, v4, {srd(SRD_WS)}, 0 offen sc1")
    e("s_waitcnt vmcnt(0)")
    e("v_readfirstlane_b32 s49, v5")
    e("s_add_u32 s48, s48, 1")
    e(f"s_cmp_gt_u32 s48, {SPIN_LIMIT}")
    e(f"s_cbranch_scc1 {ok}")
    e("s_cmp_ge_u32 s49, 50")
    e(f"s_cbranch_scc1 {ok}")
    e("s_sleep 2")
    e(f"s_branch {lp}")
    e.label(ok)


def p2(e):
    e(f"v_lshlrev_b32 v60, 4, v{V_LANE}")
    tile_dma(e, S_XIN, L_XT2, 60)
    nk = e.L("p2nk")
    e(f"s_cmp_lt_u32 s{S_WAVE}, 6")
    e(f"s_cbranch_scc1 {nk}")
    e(f"s_add_u32 s57, s{S_HG}, 36")
    e("s_mul_i32 s57, s57, 18432")
    e(f"s_add_u32 s57, s57, {WQF}")
    e.load_a_frags(SRD_WS, 57, G_AX, flags="sc1", vlane16=60)
    e.label(nk)
    e(f"v_mov_b32 v4, {L_FLAG}")
    e("v_mov_b32 v5, 0")
    e("ds_write_b32 v4, v5")
    xtile_bases(e, 56, 57)
    kvw, wd = e.L("p2kv"), e.L("p2wd")
    e(f"s_cmp_ge_u32 s{S_WAVE}, 6")
    e(f"s_cbranch_scc1 {kvw}")
    e("s_waitcnt vmcnt(0) lgkmcnt(0)")
    e("s_barrier")
    e.stamp("p2 loaded")
    e(f"s_branch {wd}")
    e.label(kvw)
    e("s_setprio 3")
    e("s_waitcnt vmcnt(18) lgkmcnt(0)")
    e("s_barrier")
    kv_project(e)
    e("s_setprio 0")
    e.stamp("kv signal")
    e.label(wd)
    hv = e.L("havewq")
    e(f"s_cmp_lg_u32 s{S_WQOK}, 0")
    e(f"s_cbranch_scc1 {hv}")
    wq_main(e)
    e.label(hv)
    wq_extra(e)
    e.g144_both("x", 56, 57, vm_fn=lambda ks, ex: 17 - ks)
    e(f"s_mov_b32 s{S_WQOK}, 0")
    e.stamp("q gemm")
    e("s_waitcnt lgkmcnt(0)")
    e("s_barrier")
    e(f"s_and_b32 s50, s{S_WAVE}, 1")
    e("s_lshl_b32 s50, s50, 6")
    e(f"s_add_u32 s50, s50, {L_INV}")
    e(f"v_lshlrev_b32 v4, 2, v{V_R16}")
    e("v_add_u32 v4, s50, v4")
    e("v_xor_b32 v5, 64, v4")
    e("ds_read_b32 v58, v4")
    e("ds_read_b32 v59, v5")
    e("s_waitcnt lgkmcnt(0)")
    e(f"v_mul_f32 v58, {QSCALE}, v58")
    e(f"v_mul_f32 v59, {QSCALE}, v59")
    q_stage(e)
    rdone = e.L("resdone")
    e(f"s_cmp_lg_u32 s{S_LAYER}, 0")
    e(f"s_cbranch_scc1 {rdone}")
    e(f"s_mul_i32 s50, s{S_HG}, 36")
    e(f"s_lshl_b32 s51, s{S_WAVE}, 2")
    e("s_add_u32 s51, s51, s50")
    e("s_lshl_b32 s51, s51, 8")
    e(f"s_add_u32 s51, s51, {L_XT2}")
    e("s_add_u32 s52, s50, 32")
    e("s_lshl_b32 s52, s52, 8")
    e(f"s_add_u32 s52, s52, {L_XT2}")
    e(f"s_and_b32 s53, s{S_WAVE}, 1")
    e(f"v_lshrrev_b32 v4, 1, v{V_GQ}")
    e("v_xor_b32 v5, s53, v4")
    e(f"v_lshlrev_b32 v6, 8, v{V_GQ}")
    e(f"v_lshl_add_u32 v6, v{V_R16}, 3, v6")
    e("v_lshl_add_u32 v7, v5, 7, v6")
    e("v_xor_b32 v8, 128, v7")
    e("v_add_u32 v9, s51, v7")
    e("v_add_u32 v10, s51, v8")
    e("v_add_u32 v11, s52, v7")
    e(f"ds_read_b64 {vr(RES,2)}, v9")
    e(f"ds_read_b64 {vr(RES+2,2)}, v10")
    e(f"ds_read_b64 {vr(RES+4,2)}, v11")
    e.label(rdone)
    e("s_waitcnt lgkmcnt(0)")
    e("s_barrier")
    e(f"s_and_b32 s50, s{S_WAVE}, 3")
    e("s_mul_i32 s50, s50, 72")
    e(f"s_add_u32 s50, s50, {L_QL}")
    e(f"v_and_b32 v4, 31, v{V_LANE}")
    e(f"v_mul_u32_u24 v4, {QL_PITCH}, v4")
    e("v_add_u32 v4, s50, v4")
    e(f"v_lshrrev_b32 v5, 5, v{V_LANE}")
    e("v_lshl_add_u32 v5, v5, 4, v4")
    e(f"ds_read2_b32 {vr(QA1,2)}, v5 offset0:0 offset1:1")
    e(f"ds_read2_b32 {vr(QA1+2,2)}, v5 offset0:2 offset1:3")
    e(f"ds_read2_b32 {vr(QB1,2)}, v5 offset0:9 offset1:10")
    e(f"ds_read2_b32 {vr(QB1+2,2)}, v5 offset0:11 offset1:12")
    e(f"ds_read_b32 v{QA2}, v4 offset:32")
    e(f"ds_read_b32 v{QB2}, v4 offset:68")
    e(f"v_cmp_gt_u32 vcc, 32, v{V_LANE}")
    e("v_mov_b32 v6, 0")
    e("s_waitcnt lgkmcnt(0)")
    e(f"v_cndmask_b32 v{QA2}, v6, v{QA2}, vcc")
    e(f"v_cndmask_b32 v{QB2}, v6, v{QB2}, vcc")


def kv_project(e):
    def rd(ks):
        b = 16 + 4 * (ks % 3)
        e(f"ds_read_b64 {vr(b,2)}, v56 offset:{ks*2048}")
        e(f"ds_read_b64 {vr(b+2,2)}, v56 offset:{ks*2048+256}")
    e("v_mov_b32 v8, 0")
    e("v_mov_b32 v9, 0")
    rd(0)
    rd(1)
    for ks in range(18):
        if ks + 2 < 18:
            rd(ks + 2)
        e(f"s_waitcnt vmcnt({17 - ks}) lgkmcnt({min(2, 17 - ks) * 2})")
        b = 16 + 4 * (ks % 3)
        c = "0" if ks == 0 else "v[10:13]"
        e(f"v_mfma_f32_16x16x32_bf16 v[10:13], {vr(G_AX+4*ks,4)}, {vr(b,4)}, {c}")
        first = b
        if ks == 0:
            e(f"v_and_b32 v15, 0xffff, v{b}")
            e(f"v_cmp_eq_u32 vcc, 0, v{V_GQ}")
            e(f"v_cndmask_b32 v14, v{b}, v15, vcc")
            first = 14
        e(f"v_dot2c_f32_bf16 v8, v{first}, v{first}")
        e(f"v_dot2c_f32_bf16 v9, v{b+1}, v{b+1}")
        e(f"v_dot2c_f32_bf16 v8, v{b+2}, v{b+2}")
        e(f"v_dot2c_f32_bf16 v9, v{b+3}, v{b+3}")
    e("v_add_f32 v9, v8, v9")
    e.sum_over_gq(9, 14)
    e.inv_sigma(9, 14)
    e(f"s_and_b32 s64, s{S_WAVE}, 1")
    e("s_lshl_b32 s65, s64, 6")
    e(f"s_add_u32 s65, s65, {L_INV}")
    e(f"v_lshlrev_b32 v4, 2, v{V_R16}")
    e("v_add_u32 v4, s65, v4")
    e("ds_write_b32 v4, v9")
    d = 52
    for r in range(4):
        e(f"v_mul_f32 v{10+r}, v{10+r}, v9")
    e(f"v_cvt_pk_bf16_f32 v{d}, v10, v11")
    e(f"v_cvt_pk_bf16_f32 v{d+1}, v12, v13")
    nv = e.L("kv_nv")
    e(f"s_bitcmp0_b32 s{S_HG}, 0")
    e(f"s_cbranch_scc1 {nv}")
    e("s_lshl_b32 s50, s64, 9")
    e(f"s_add_u32 s50, s50, {L_REDX}")
    e(f"v_lshlrev_b32 v4, 5, v{V_R16}")
    e(f"v_lshl_add_u32 v4, v{V_GQ}, 3, v4")
    e("v_add_u32 v4, s50, v4")
    e(f"ds_write_b64 v4, {vr(d,2)}")
    e(f"v_lshrrev_b32 v5, 2, v{V_R16}")
    e(f"v_lshl_add_u32 v5, v{V_GQ}, 2, v5")
    e("v_lshlrev_b32 v5, 5, v5")
    e(f"v_and_b32 v6, 3, v{V_R16}")
    e("v_lshl_add_u32 v5, v6, 3, v5")
    e("v_add_u32 v5, s50, v5")
    e("s_waitcnt lgkmcnt(0)")
    e(f"ds_read_b64_tr_b16 {vr(d,2)}, v5")
    e("s_waitcnt lgkmcnt(0)")
    e.label(nv)
    e(f"s_and_b32 s51, s{S_QB}, 31")
    e("s_lshr_b32 s52, s51, 2")
    e(f"s_mul_i32 s52, s52, {CHUNK}")
    e("s_and_b32 s51, s51, 3")
    e(f"s_lshr_b32 s53, s{S_QB}, 5")
    e("s_lshl_b32 s53, s53, 2")
    e("s_add_u32 s51, s51, s53")
    e(f"s_add_u32 s52, s52, s{S_KV}")
    h0, h1, h2, h3, hd = [e.L(f"kvst{i}") for i in range(5)]
    e(f"s_cmp_eq_u32 s{S_HG}, 1")
    e(f"s_cbranch_scc1 {h1}")
    e(f"s_cmp_eq_u32 s{S_HG}, 2")
    e(f"s_cbranch_scc1 {h2}")
    e(f"s_cmp_eq_u32 s{S_HG}, 3")
    e(f"s_cbranch_scc1 {h3}")
    e("s_lshl_b32 s53, s51, 10")
    e("s_add_u32 s53, s53, s52")
    e("s_lshl_b32 s50, s64, 8")
    e("s_add_u32 s53, s53, s50")
    e(f"v_lshrrev_b32 v4, 1, v{V_GQ}")
    e("v_lshlrev_b32 v4, 9, v4")
    e(f"v_lshl_add_u32 v4, v{V_R16}, 4, v4")
    e(f"v_and_b32 v5, 1, v{V_GQ}")
    e("v_lshl_add_u32 v4, v5, 3, v4")
    e(f"buffer_store_dwordx2 {vr(d,2)}, v4, {srd(SRD_WS)}, s53 offen sc1")
    e(f"s_branch {hd}")
    e.label(h2)
    e("s_lshl_b32 s53, s51, 7")
    e("s_add_u32 s53, s53, s52")
    e(f"s_add_u32 s53, s53, {K2_OFF}")
    e("s_lshl_b32 s50, s64, 6")
    e("s_add_u32 s53, s53, s50")
    e(f"v_lshlrev_b32 v4, 2, v{V_R16}")
    e("s_mov_b64 exec, 0xffff")
    e(f"buffer_store_dword v{d}, v4, {srd(SRD_WS)}, s53 offen sc1")
    e("s_mov_b64 exec, -1")
    e(f"s_branch {hd}")
    e.label(h1)
    e(f"s_mul_i32 s53, s51, {VT}")
    e("s_add_u32 s53, s53, s52")
    e(f"s_add_u32 s53, s53, {V_OFF}")
    e("s_mul_i32 s50, s64, 608")
    e("s_add_u32 s53, s53, s50")
    e(f"v_and_b32 v5, 1, v{V_GQ}")
    e("v_mul_u32_u24 v4, 304, v5")
    e(f"v_lshl_add_u32 v4, v{V_R16}, 4, v4")
    e(f"v_lshrrev_b32 v5, 1, v{V_GQ}")
    e("v_lshl_add_u32 v4, v5, 3, v4")
    e(f"buffer_store_dwordx2 {vr(d,2)}, v4, {srd(SRD_WS)}, s53 offen sc1")
    e(f"s_branch {hd}")
    e.label(h3)
    e(f"s_mul_i32 s53, s51, {VT}")
    e("s_add_u32 s53, s53, s52")
    e(f"s_add_u32 s53, s53, {V_OFF + 256}")
    e("s_mul_i32 s50, s64, 608")
    e("s_add_u32 s53, s53, s50")
    e(f"v_and_b32 v5, 1, v{V_GQ}")
    e("v_mul_u32_u24 v4, 304, v5")
    e(f"v_lshl_add_u32 v4, v{V_R16}, 4, v4")
    e(f"v_lshrrev_b32 v5, 1, v{V_GQ}")
    e("v_lshl_add_u32 v4, v5, 3, v4")
    e("v_mov_b32 v6, 0x3f803f80")
    e(f"v_cmp_eq_u32 vcc, 2, v{V_R16}")
    e(f"v_cndmask_b32 v{d}, v{d}, v6, vcc")
    e(f"v_cndmask_b32 v{d+1}, v{d+1}, v6, vcc")
    e(f"v_cmp_gt_u32 vcc, 3, v{V_R16}")
    e("s_and_saveexec_b64 s[62:63], vcc")
    e(f"buffer_store_dwordx2 {vr(d,2)}, v4, {srd(SRD_WS)}, s53 offen sc1")
    e("s_mov_b64 exec, s[62:63]")
    e.label(hd)
    e("s_waitcnt vmcnt(0)")
    e.signal(2, per_layer=True)


def q_stage(e):
    accA, accB, accX = G_ACC, G_ACC + 4, G_ACC + 8
    e(f"s_and_b32 s50, s{S_WAVE}, 1")
    e("s_lshl_b32 s51, s50, 4")
    e(f"v_add_u32 v4, s51, v{V_R16}")
    e("v_xor_b32 v5, 16, v4")
    e(f"v_mul_u32_u24 v4, {QL_PITCH}, v4")
    e(f"v_mul_u32_u24 v5, {QL_PITCH}, v5")
    e(f"v_lshlrev_b32 v6, 3, v{V_GQ}")
    e(f"v_add_u32 v6, {L_QL}, v6")
    e("v_add_u32 v4, v4, v6")
    e("v_add_u32 v5, v5, v6")
    e(f"s_lshl_b32 s52, s{S_WAVE}, 5")
    e("v_add_u32 v7, s52, v4")
    e("v_add_u32 v8, s52, v5")
    for r in range(4):
        e(f"v_mul_f32 v{accA+r}, v{accA+r}, v58")
        e(f"v_mul_f32 v{accB+r}, v{accB+r}, v59")
    e(f"v_cvt_pk_bf16_f32 v10, v{accA}, v{accA+1}")
    e(f"v_cvt_pk_bf16_f32 v11, v{accA+2}, v{accA+3}")
    e(f"v_cvt_pk_bf16_f32 v12, v{accB}, v{accB+1}")
    e(f"v_cvt_pk_bf16_f32 v13, v{accB+2}, v{accB+3}")
    e("ds_write_b64 v7, v[10:11]")
    e("ds_write_b64 v8, v[12:13]")
    nx = e.L("qs_nx")
    e(f"s_cmp_ge_u32 s{S_WAVE}, 2")
    e(f"s_cbranch_scc1 {nx}")
    for r in range(4):
        e(f"v_mul_f32 v{accX+r}, v{accX+r}, v58")
    e(f"v_cvt_pk_bf16_f32 v14, v{accX}, v{accX+1}")
    e(f"v_cvt_pk_bf16_f32 v15, v{accX+2}, v{accX+3}")
    e("ds_write_b64 v4, v[14:15] offset:256")
    e.label(nx)


def max16(e, s, dst):
    e(f"v_max3_f32 v{dst}, v{s}, v{s+1}, v{s+2}")
    for r in range(3, 15, 2):
        e(f"v_max3_f32 v{dst}, v{dst}, v{s+r}, v{s+r+1}")
    e(f"v_max_f32 v{dst}, v{dst}, v{s+15}")


def set_m(e, m, q2):
    e(f"v_sub_f32 v{m}, 0, v{m}")
    e(f"v_cvt_pk_bf16_f32 v4, v{m}, v{m}")
    e("v_lshlrev_b32 v4, 16, v4")
    e(f"v_sub_f32 v5, v{m}, v4")
    e("v_cvt_pk_bf16_f32 v4, v4, v5")
    e(f"v_cmp_gt_u32 vcc, 32, v{V_LANE}")
    e("v_mov_b32 v5, 0")
    e(f"v_cndmask_b32 v{q2+1}, v5, v4, vcc")


def qk(e, s, q1, q2):
    e(f"v_mfma_f32_32x32x16_bf16 {vr(s,16)}, {vr(K1,4)}, {vr(q1,4)}, 0")
    e(f"v_mfma_f32_32x32x8_bf16 {vr(s,16)}, {vr(K2,2)}, {vr(q2,2)}, {vr(s,16)}")


def cross_half_max(e, v):
    e(f"v_mov_b32 v4, v{v}")
    e(f"v_permlane32_swap_b32 v4, v{v}")
    e(f"v_max_f32 v{v}, v{v}, v4")


def half(e, s_exp, p_out, s_new, q1, q2, o_acc, p_in, pre, mid_k, pre_pv, mid_v, extra=None):
    ex = lambda r: e(f"v_exp_f32 v{s_exp+r}, v{s_exp+r}")
    cv = lambda k: e(f"v_cvt_pk_bf16_f32 v{p_out+k}, v{s_exp+2*k}, v{s_exp+2*k+1}")

    def grp(g):
        for r in range(4 * g, 4 * g + 4):
            ex(r)
        cv(2 * g); cv(2 * g + 1)
        if extra:
            extra(g)
    if pre:
        e(pre)
    e(f"v_mfma_f32_32x32x16_bf16 {vr(s_new,16)}, {vr(K1,4)}, {vr(q1,4)}, 0")
    grp(0)
    e(f"v_mfma_f32_32x32x8_bf16 {vr(s_new,16)}, {vr(K2,2)}, {vr(q2,2)}, {vr(s_new,16)}")
    for x in mid_k:
        e(x)
    grp(1)
    if pre_pv:
        e(pre_pv)
    e(f"v_mfma_f32_32x32x16_bf16 {vr(o_acc,16)}, {vr(V0,4)}, {vr(p_in,4)}, {vr(o_acc,16)}")
    grp(2)
    e(f"v_mfma_f32_32x32x16_bf16 {vr(o_acc,16)}, {vr(V1,4)}, {vr(p_in+4,4)}, {vr(o_acc,16)}")
    for x in mid_v:
        e(x)
    grp(3)


VL16, VOA, VOB = 201, 202, 203
VXO, VXP = 252, 253
WO2R = 208
S_DM0, S_DKV, S_TWB, S_OST, S_OST2 = 84, 85, 86, 87, 88


def key_tile(e, t, xa=None, xb=None):
    nk = (t + 1) * 1024 if t < 3 else CHUNK
    nk2 = (t + 1) * 128 if t < 3 else CHUNK
    vl = [f"ds_read_b128 {vr(V0,4)}, v{AV} offset:{t*VT}", f"ds_read_b128 {vr(V1,4)}, v{AV} offset:{t*VT+608}"]
    if getattr(e, "maskv", False):
        vl = ["s_mov_b64 exec, s[82:83]"] + vl + ["s_mov_b64 exec, -1"]
    kl = [f"ds_read_b128 {vr(K1,4)}, v{AK1} offset:{nk}", f"ds_read_b32 v{K2}, v{AK2} offset:{nk2}"]
    if getattr(e, "maskk", False):
        kl = [kl[0], "s_mov_b32 exec_hi, 0", kl[1], "s_mov_b32 exec_hi, -1"]
    half(e, SA, PA_, SB, QB1, QB2, OB, PB_, None, kl, None, vl, xa)
    half(e, SB, PB_, SA, QA1, QA2, OA, PA_, "s_waitcnt lgkmcnt(2)", [], "s_waitcnt lgkmcnt(0)", [], xb)


def next_chunk(e):
    e(f"v_add_u32 v{AK1}, {CHUNK}, v{AK1}")
    e(f"v_add_u32 v{AK2}, {CHUNK}, v{AK2}")
    e(f"v_add_u32 v{AV}, {CHUNK}, v{AV}")


def attention_setup(e):
    e(f"v_lshlrev_b32 v{VL16}, 4, v{V_LANE}")
    e("s_mov_b32 s82, 0x7ffff")
    e("s_mov_b32 s83, 0x7ffff")
    e(f"s_lshl_b32 s{S_DM0}, s{S_WAVE}, 10")
    e(f"s_add_u32 s{S_DKV}, s{S_DM0}, s{S_KV}")
    e(f"s_lshr_b32 s51, s{S_WAVE}, 2")
    e("s_lshl_b32 s52, s51, 12")
    e(f"v_add_u32 v{AK1}, s52, v{VL16}")
    e("s_lshl_b32 s52, s51, 9")
    e(f"s_add_u32 s52, s52, {K2_OFF}")
    e(f"v_and_b32 v5, 31, v{V_LANE}")
    e(f"v_lshlrev_b32 v{AK2}, 2, v5")
    e(f"v_add_u32 v{AK2}, s52, v{AK2}")
    e(f"s_mul_i32 s52, s51, {4*VT}")
    e(f"s_add_u32 s52, s52, {V_OFF}")
    e("v_subrev_u32 v6, 16, v5")
    e("v_cmp_gt_u32 vcc, 19, v5")
    e("v_cndmask_b32 v6, v6, v5, vcc")
    e(f"v_lshrrev_b32 v7, 5, v{V_LANE}")
    e("v_mul_u32_u24 v7, 304, v7")
    e("v_lshl_add_u32 v7, v6, 4, v7")
    e(f"v_add_u32 v{AV}, s52, v7")
    e(f"v_mov_b32 v{K2+1}, 0x3f803f80")
    if getattr(e, "maskk", False):
        e("s_mov_b32 exec_lo, 0")
        e(f"v_mov_b32 v{K2}, 0")
        e(f"v_mov_b32 v{K2+1}, 0")
        e("s_mov_b32 exec_lo, -1")
    e(f"v_mov_b32 v{QA2+1}, 0")
    e(f"v_mov_b32 v{QB2+1}, 0")
    for r in range(16):
        e(f"v_mov_b32 v{OA+r}, 0")
        e(f"v_mov_b32 v{OB+r}, 0")
    for r in range(8):
        e(f"v_mov_b32 v{PB_+r}, 0")
        e(f"v_mov_b32 v{V0+r}, 0")
    def region(dst, s_w):
        lo, dn = e.L("xr_lo"), e.L("xr_dn")
        e(f"s_cmp_lt_u32 s{s_w}, 4")
        e(f"s_cbranch_scc1 {lo}")
        e(f"s_and_b32 s52, s{s_w}, 1")
        e(f"s_bfe_u32 s53, s{s_w}, 0x10001")
        e("s_mul_i32 s54, s53, 768")
        e("s_add_u32 s54, s54, 4096")
        e("s_mul_i32 s52, s52, s54")
        e("s_mul_i32 s53, s53, 9216")
        e("s_add_u32 s52, s52, s53")
        e(f"s_branch {dn}")
        e.label(lo)
        e(f"s_mul_i32 s52, s{s_w}, 2560")
        e(f"s_add_u32 s52, s52, {L_MISC}")
        e.label(dn)
        e(f"v_add_u32 v{dst}, s52, v{VL16}")
    region(VXO, S_WAVE)
    e(f"s_xor_b32 s50, s{S_WAVE}, 4")
    region(VXP, 50)
    e(f"s_and_b32 s52, s{S_WAVE}, 3")
    e(f"s_mul_i32 s53, s{S_QB}, 36864")
    e(f"s_add_u32 s53, s53, s{S_OB}")
    e(f"v_bfe_u32 v4, v{V_LANE}, 4, 1")
    e("v_mul_u32_u24 v4, 18432, v4")
    e(f"v_lshl_add_u32 v{VOA}, v{V_R16}, 4, v4")
    e(f"v_lshrrev_b32 v5, 5, v{V_LANE}")
    e(f"v_lshl_add_u32 v{VOB}, v5, 8, v{VOA}")
    e(f"s_lshl_b32 s54, s{S_HG}, 2")
    e("s_add_u32 s54, s54, s52")
    e("s_lshl_b32 s54, s54, 10")
    e("s_lshl_b32 s55, s51, 9")
    e("s_add_u32 s54, s54, s55")
    e(f"s_add_u32 s{S_OST}, s54, s53")
    e(f"s_lshl_b32 s54, s{S_HG}, 3")
    e("s_lshl_b32 s55, s52, 1")
    e("s_add_u32 s54, s54, s55")
    e("s_add_u32 s54, s54, s51")
    e("s_lshr_b32 s55, s54, 4")
    e("s_add_u32 s55, s55, 16")
    e("s_lshl_b32 s55, s55, 10")
    e("s_bfe_u32 s56, s54, 0x20002")
    e("s_lshl_b32 s56, s56, 8")
    e("s_add_u32 s55, s55, s56")
    e("s_and_b32 s56, s54, 3")
    e("s_lshl_b32 s56, s56, 2")
    e("s_add_u32 s55, s55, s56")
    e(f"s_add_u32 s{S_OST2}, s55, s53")
    l1, ld = e.L("as_l1"), e.L("as_ld")
    e(f"s_mul_i32 s{S_TWB}, s{S_HG}, 9")
    e(f"s_add_u32 s{S_TWB}, s{S_TWB}, s{S_WAVE}")
    e(f"s_mul_i32 s{S_TWB}, s{S_TWB}, 18432")
    e(f"s_cmp_lg_u32 s{S_LAYER}, 0")
    e(f"s_cbranch_scc1 {l1}")
    e.make_srd(SRD_B, S_WS, WS_END)
    e(f"s_add_u32 s89, s{S_TWB}, {WOF}")
    e(f"s_branch {ld}")
    e.label(l1)
    e.make_srd(SRD_B, S_FI, 36 * 18432)
    e(f"s_mov_b32 s89, s{S_TWB}")
    e.label(ld)


def kv_round(e, m):
    skip = None
    if m == 18:
        skip = e.L("kvd")
        e(f"s_cmp_ge_u32 s{S_WAVE}, 4")
        e(f"s_cbranch_scc1 {skip}")
    e(f"s_add_u32 m0, s{S_DM0}, {m * 8192}")
    e(f"s_add_u32 s50, s{S_DKV}, {m * 8192}")
    e(f"buffer_load_dwordx4 v{VL16}, {srd(SRD_WS)}, s50 offen sc1 lds")
    if skip:
        e.label(skip)


def attention(e):
    mainl = e.L("attn_main")
    for m in range(3):
        kv_round(e, m)
    e(f"v_and_b32 v5, 31, v{V_LANE}")
    e("s_waitcnt vmcnt(0)")
    e("s_barrier")
    e.stamp("kv loaded")
    fbmax, haveM = e.L("fbmax"), e.L("haveM")
    e(f"s_cmp_lg_u32 s{S_FB}, 0")
    e(f"s_cbranch_scc1 {fbmax}")
    e(f"v_lshlrev_b32 v8, 4, v{V_LANE}")
    e("v_lshlrev_b32 v9, 2, v5")
    e(f"ds_read_b128 {vr(K1,4)}, v8")
    e(f"ds_read_b32 v{K2}, v9 offset:{K2_OFF}")
    e("s_waitcnt lgkmcnt(0)")
    qk(e, SA, QA1, QA2)
    qk(e, SB, QB1, QB2)
    max16(e, SA, 10)
    max16(e, SB, 11)
    cross_half_max(e, 10)
    cross_half_max(e, 11)
    e(f"s_branch {haveM}")
    e.label(fbmax)
    for m in range(3, 19):
        kv_round(e, m)
    e("s_waitcnt vmcnt(0)")
    e("s_barrier")
    fl = e.L("fbloop")
    e("v_mov_b32 v10, 0xff800000")
    e("v_mov_b32 v11, 0xff800000")
    e(f"v_mov_b32 v8, v{AK1}")
    e(f"v_mov_b32 v9, v{AK2}")
    e("s_mov_b32 s52, 0")
    e.label(fl)
    for t in range(4):
        e(f"ds_read_b128 {vr(K1,4)}, v8 offset:{t*1024}")
        e(f"ds_read_b32 v{K2}, v9 offset:{t*128}")
        e("s_waitcnt lgkmcnt(0)")
        qk(e, SA, QA1, QA2)
        qk(e, SB, QB1, QB2)
        max16(e, SA, 12)
        max16(e, SB, 13)
        e("v_max_f32 v10, v10, v12")
        e("v_max_f32 v11, v11, v13")
    e(f"v_add_u32 v8, {CHUNK}, v8")
    e(f"v_add_u32 v9, {CHUNK}, v9")
    e("s_add_u32 s52, s52, 1")
    e("s_cmp_lt_u32 s52, 8")
    e(f"s_cbranch_scc1 {fl}")
    cross_half_max(e, 10)
    cross_half_max(e, 11)
    e(f"s_lshl_b32 s52, s{S_WAVE}, 9")
    e(f"s_add_u32 s52, s52, {L_QL}")
    e(f"v_lshlrev_b32 v8, 3, v{V_LANE}")
    e("v_add_u32 v9, s52, v8")
    e("ds_write_b64 v9, v[10:11]")
    e("s_waitcnt lgkmcnt(0)")
    e("s_barrier")
    e(f"s_xor_b32 s52, s{S_WAVE}, 4")
    e("s_lshl_b32 s52, s52, 9")
    e(f"s_add_u32 s52, s52, {L_QL}")
    e("v_add_u32 v9, s52, v8")
    e("ds_read_b64 v[12:13], v9")
    e("s_waitcnt lgkmcnt(0)")
    e("v_max_f32 v10, v10, v12")
    e("v_max_f32 v11, v11, v13")
    e.label(haveM)
    set_m(e, 10, QA2)
    set_m(e, 11, QB2)
    e(f"ds_read_b128 {vr(K1,4)}, v{AK1}")
    e(f"ds_read_b32 v{K2}, v{AK2}")
    e("s_waitcnt lgkmcnt(0)")
    qk(e, SA, QA1, QA2)
    e.cyc_begin()
    e("s_nop 12")
    key_tile(e, 0, lambda g: kv_round(e, 3 + g), lambda g: kv_round(e, 7 + g))
    key_tile(e, 1, lambda g: kv_round(e, 11 + g), lambda g: kv_round(e, 15 + g))

    def wo2(ks):
        if ks >= 11:
            return
        sk = e.L("wo2h")
        e(f"s_cmp_eq_u32 s{S_LAYER}, 0")
        e(f"s_cbranch_scc1 {sk}")
        e(f"s_add_u32 s50, s{S_TWB}, {WO2 + ks * 1024}")
        e(f"buffer_load_dwordx4 {vr(WO2R + 4*ks, 4)}, v{VL16}, {srd(SRD_WS)}, s50 offen sc1")
        e.label(sk)
    key_tile(e, 2, lambda g: (wo2(g), wo2(8 + g)), lambda g: wo2(4 + g))
    w1, wd = e.L("kvw1"), e.L("kvwd")
    e(f"s_cmp_lg_u32 s{S_LAYER}, 0")
    e(f"s_cbranch_scc1 {w1}")
    e("s_waitcnt vmcnt(0)")
    e(f"s_branch {wd}")
    e.label(w1)
    e("s_waitcnt vmcnt(11)")
    e.label(wd)
    e("s_barrier")

    def twl(ks):
        if ks < 18:
            e(f"s_add_u32 s50, s89, {ks * 1024}")
            e(f"buffer_load_dwordx4 {vr(G_A + 4*ks, 4)}, v{VL16}, {srd(SRD_B)}, s50 offen sc1")
    key_tile(e, 3, lambda g: (twl(g), twl(8 + g), twl(16 + g) if g < 2 else None), lambda g: twl(4 + g) or twl(12 + g))
    next_chunk(e)
    e("s_mov_b32 s52, 1")
    e(".p2align 6")
    e.label(mainl)
    for t in range(4):
        key_tile(e, t)
    next_chunk(e)
    e("s_add_u32 s52, s52, 1")
    e("s_cmp_lt_u32 s52, 8")
    e(f"s_cbranch_scc1 {mainl}")
    e(f"v_mfma_f32_32x32x16_bf16 {vr(OB,16)}, {vr(V0,4)}, {vr(PB_,4)}, {vr(OB,16)}")
    e(f"v_mfma_f32_32x32x16_bf16 {vr(OB,16)}, {vr(V1,4)}, {vr(PB_+4,4)}, {vr(OB,16)}")
    e.cyc_end(0)
    e.stamp("attn loop")
    nofl = e.L("nofl")
    e("s_mov_b32 s53, 0x5d000000")
    e(f"v_cmp_nlt_f32 vcc, v{OA+10}, s53")
    e(f"v_cmp_nlt_f32 s[54:55], v{OB+10}, s53")
    e("s_or_b64 vcc, vcc, s[54:55]")
    e("s_cmp_eq_u32 vcc_lo, 0")
    e(f"s_cbranch_scc1 {nofl}")
    e(f"v_mov_b32 v4, {L_FLAG}")
    e("v_mov_b32 v5, 1")
    e("ds_write_b32 v4, v5")
    e.label(nofl)
    g1, gd = e.L("give1"), e.L("gived")
    e(f"s_cmp_ge_u32 s{S_WAVE}, 4")
    e(f"s_cbranch_scc1 {g1}")
    for q in range(2):
        e(f"ds_write_b128 v{VXO}, {vr(OB+4*q,4)} offset:{q*1024}")
    e("s_mov_b32 exec_hi, 0")
    e(f"ds_write_b128 v{VXO}, {vr(OB+8,4)} offset:2048")
    e("s_mov_b64 exec, -1")
    e(f"s_branch {gd}")
    e.label(g1)
    for q in range(2):
        e(f"ds_write_b128 v{VXO}, {vr(OA+4*q,4)} offset:{q*1024}")
    e("s_mov_b32 exec_hi, 0")
    e(f"ds_write_b128 v{VXO}, {vr(OA+8,4)} offset:2048")
    e("s_mov_b64 exec, -1")
    for r in range(12):
        e(f"v_mov_b32 v{OA+r}, v{OB+r}")
    e.label(gd)
    e(f"v_mov_b32 v7, {L_FLAG}")
    e("s_waitcnt lgkmcnt(0)")
    e("s_barrier")
    e("ds_read_b32 v8, v7")
    for q in range(2):
        e(f"ds_read_b128 {vr(16+4*q,4)}, v{VXP} offset:{q*1024}")
    e(f"ds_read_b128 {vr(24,4)}, v{VXP} offset:2048")
    e("s_waitcnt lgkmcnt(0)")
    e("v_readfirstlane_b32 s50, v8")
    fbgo = e.L("fbgo")
    e(f"s_cmp_lg_u32 s{S_FB}, 0")
    e(f"s_cbranch_scc1 {fbgo}")
    e("s_cmp_eq_u32 s50, 0")
    e(f"s_cbranch_scc1 {fbgo}")
    e(f"s_mov_b32 s{S_FB}, 1")
    e("s_branch L_redo")
    e.label(fbgo)
    for r in range(11):
        e(f"v_add_f32 v{OA+r}, v{OA+r}, v{16+r}")
    e(f"v_mov_b32 v8, v{OA+10}")
    e(f"v_permlane32_swap_b32 v8, v{OA+10}")
    e("v_rcp_f32 v8, v8")
    for r in range(10):
        e(f"v_mul_f32 v{OA+r}, v{OA+r}, v8")
    for k in range(5):
        e(f"v_cvt_pk_bf16_f32 v{16+k}, v{OA+2*k}, v{OA+2*k+1}")
    e(f"buffer_store_dwordx4 v[16:19], v{VOB}, {srd(SRD_WS)}, s{S_OST} offen sc1")
    e("s_mov_b32 exec_hi, 0")
    e(f"buffer_store_dword v20, v{VOA}, {srd(SRD_WS)}, s{S_OST2} offen sc1")
    e("s_mov_b64 exec, -1")


def tail_weights(e, extra, vtmp):
    l1, done = e.L("tw_l1"), e.L("tw_done")
    dst = G_AX if extra else G_A
    if extra:
        e(f"s_cmp_ge_u32 s{S_WAVE}, 2")
        e(f"s_cbranch_scc1 {done}")
    e(f"v_lshlrev_b32 v{vtmp}, 4, v{V_LANE}")
    e(f"s_mul_i32 s59, s{S_HG}, 9")
    if extra:
        e("s_add_u32 s57, s59, 8")
    else:
        e(f"s_add_u32 s57, s59, s{S_WAVE}")
    e("s_mul_i32 s57, s57, 18432")
    e(f"s_cmp_lg_u32 s{S_LAYER}, 0")
    e(f"s_cbranch_scc1 {l1}")
    e(f"s_add_u32 s57, s57, {WOF}")
    e.load_a_frags(SRD_WS, 57, dst, flags="sc1", vlane16=vtmp)
    e(f"s_branch {done}")
    e.label(l1)
    e.make_srd(SRD_T, S_FI, 36 * 18432)
    e.load_a_frags(SRD_T, 57, dst, vlane16=vtmp)
    e.label(done)


def frag_bases(e):
    e(f"s_and_b32 s50, s{S_WAVE}, 1")
    e("s_mul_i32 s50, s50, 18432")
    e(f"v_lshlrev_b32 v56, 4, v{V_LANE}")
    e("v_add_u32 v57, 18432, v56")
    e("v_subrev_u32 v57, s50, v57")
    e("v_add_u32 v56, s50, v56")


def p4(e):
    e(f"v_lshlrev_b32 v60, 4, v{V_LANE}")
    tile_dma(e, S_OB, 0, 60)
    for t in range(3):
        a = G_ACC + 4 * t
        e(f"v_lshlrev_b32 v{a}, 16, v{RES+2*t}")
        e(f"v_and_b32 v{a+1}, 0xffff0000, v{RES+2*t}")
        e(f"v_lshlrev_b32 v{a+2}, 16, v{RES+2*t+1}")
        e(f"v_and_b32 v{a+3}, 0xffff0000, v{RES+2*t+1}")
    frag_bases(e)
    e("s_waitcnt vmcnt(0)")
    e("s_barrier")
    e.stamp("p4 loaded")
    e.g144_both("frag", 56, 57, zero_init=False)
    e.stamp("p4 gemm")


L_X3 = 40960


def p8_pre(e):
    e(f"v_lshlrev_b32 v60, 4, v{V_LANE}")
    tile_dma(e, S_XIN, L_X3, 60)
    lo, done = e.L("p8p_lo"), e.L("p8p_done")
    e(f"s_cmp_lt_u32 s{S_WAVE}, 2")
    e(f"s_cbranch_scc1 {lo}")
    for ks in range(11, 18):
        e(f"s_add_u32 s50, s{S_TWB}, {WO2 + ks * 1024}")
        e(f"buffer_load_dwordx4 {vr(136 + 4*(ks-11), 4)}, v60, {srd(SRD_WS)}, s50 offen sc1")
    e(f"s_branch {done}")
    e.label(lo)
    e(f"s_mul_i32 s57, s{S_HG}, 9")
    e("s_add_u32 s57, s57, 8")
    e("s_mul_i32 s57, s57, 18432")
    e.make_srd(SRD_T, S_FI, 36 * 18432)
    e.load_a_frags(SRD_T, 57, G_AX, vlane16=60)
    e.label(done)


def p8(e):
    e(f"v_lshlrev_b32 v60, 4, v{V_LANE}")
    tile_dma(e, S_OB, 0, 60)
    xtile_bases(e, 58, 59, L_X3)
    e(f"s_mul_i32 s58, s{S_HG}, 9")
    e("s_add_u32 s58, s58, 8")
    e("s_mul_i32 s58, s58, 18432")
    e(f"s_add_u32 s58, s58, {WO2}")
    e(f"s_add_u32 s59, s{S_TWB}, {WO2}")
    noex, fin = e.L("p8_noex"), e.L("p8_fin")

    def round_acc(n):
        for t in range(n):
            a = G_ACC + 4 * t
            e(f"v_cvt_pk_bf16_f32 v52, v{a}, v{a+1}")
            e(f"v_cvt_pk_bf16_f32 v53, v{a+2}, v{a+3}")
            e(f"v_lshlrev_b32 v{a}, 16, v52")
            e(f"v_and_b32 v{a+1}, 0xffff0000, v52")
            e(f"v_lshlrev_b32 v{a+2}, 16, v53")
            e(f"v_and_b32 v{a+3}, 0xffff0000, v53")

    def wo_stream(ks):
        e(f"s_add_u32 s50, s58, {ks*1024}")
        e(f"buffer_load_dwordx4 {vr(G_AX+4*ks,4)}, v60, {srd(SRD_WS)}, s50 offen sc1")
        if ks < 7:
            e(f"s_add_u32 s50, s59, {(11+ks)*1024}")
            e(f"buffer_load_dwordx4 {vr(G_A+4*ks,4)}, v60, {srd(SRD_WS)}, s50 offen sc1")
    e(f"s_cmp_ge_u32 s{S_WAVE}, 2")
    e(f"s_cbranch_scc1 {noex}")
    e("s_waitcnt vmcnt(4)")
    e("s_barrier")
    e.stamp("x3 loaded")
    e.g144("x", 58, 59, True, wo_stream)
    round_acc(3)
    frag_bases(e)
    e("s_waitcnt vmcnt(25)")
    e("s_barrier")
    e.g144("frag", 56, 57, True, zero_init=False, vm_fn=lambda ks, ex: 24 - 2*ks if ks <= 6 else 17 - ks,
           a_main=lambda ks: WO2R + 4*ks if ks < 11 else G_A + 4*(ks-11))
    e(f"s_branch {fin}")
    e.label(noex)
    e("s_waitcnt vmcnt(11)")
    e("s_barrier")
    e.stamp("x3 loaded")
    e.g144("x", 58, 59, False)
    round_acc(2)
    frag_bases(e)
    e("s_waitcnt vmcnt(0)")
    e("s_barrier")
    e.g144("frag", 56, 57, False, zero_init=False, a_main=lambda ks: WO2R + 4*ks if ks < 11 else 136 + 4*(ks-11))
    e.label(fin)
    e.stamp("p4 gemm")


def out_epilogue(e):
    accA, accB, accX = G_ACC, G_ACC + 4, G_ACC + 8
    if getattr(e, "perturb", None):
        sk = e.L("pert")
        e(f"s_or_b32 s50, s2, s{S_WAVE}")
        e("s_cmp_lg_u32 s50, 0")
        e(f"s_cbranch_scc1 {sk}")
        e("s_mov_b64 exec, 1")
        e(f"v_add_f32 v{accA}, {e.perturb}, v{accA}")
        e("s_mov_b64 exec, -1")
        e.label(sk)
    e.make_srd(SRD_A, S_OUT, XBYTES)
    e(f"s_and_b32 s50, s{S_WAVE}, 1")
    e("s_lshl_b32 s51, s50, 4")
    e(f"s_lshl_b32 s52, s{S_QB}, 5")
    e("s_add_u32 s51, s51, s52")
    e(f"v_add_u32 v4, s51, v{V_R16}")
    e("v_xor_b32 v5, 16, v4")
    e("v_mul_u32_u24 v4, 1152, v4")
    e("v_mul_u32_u24 v5, 1152, v5")
    e(f"v_lshl_add_u32 v4, v{V_GQ}, 3, v4")
    e(f"v_lshl_add_u32 v5, v{V_GQ}, 3, v5")
    e(f"s_mul_i32 s53, s{S_HG}, 288")
    e(f"s_lshl_b32 s54, s{S_WAVE}, 5")
    e("s_add_u32 s54, s54, s53")
    e("s_add_u32 s55, s53, 256")
    e(f"v_cvt_pk_bf16_f32 v10, v{accA}, v{accA+1}")
    e(f"v_cvt_pk_bf16_f32 v11, v{accA+2}, v{accA+3}")
    e(f"buffer_store_dwordx2 v[10:11], v4, {srd(SRD_A)}, s54 offen")
    e(f"v_cvt_pk_bf16_f32 v12, v{accB}, v{accB+1}")
    e(f"v_cvt_pk_bf16_f32 v13, v{accB+2}, v{accB+3}")
    e(f"buffer_store_dwordx2 v[12:13], v5, {srd(SRD_A)}, s54 offen")
    nx = e.L("oe_nx")
    e(f"s_cmp_ge_u32 s{S_WAVE}, 2")
    e(f"s_cbranch_scc1 {nx}")
    e(f"v_cvt_pk_bf16_f32 v14, v{accX}, v{accX+1}")
    e(f"v_cvt_pk_bf16_f32 v15, v{accX+2}, v{accX+3}")
    e(f"buffer_store_dwordx2 v[14:15], v4, {srd(SRD_A)}, s55 offen")
    e.label(nx)
```

```python
from asmlib import Prog
from layout import *

S_AX, S_WR, S_WI = 4, 6, 8
S_WQ, S_WK, S_WV, S_WO = 12, 14, 16, 18
S_OUT, S_DBG, S_WS = 20, 22, 24
S_WAVE, S_QB = 26, 27
SRD_WS, SRD_A, SRD_B, SRD_T = 28, 32, 36, 40
S_HG, S_LAYER, S_GT, S_GRP = 44, 45, 46, 47
S_T = 48
S_FT, S_FI, S_TW = 66, 68, 70
S_X = 72

V_TID, V_LANE, V_R16, V_GQ = 0, 1, 2, 3

G_A = 64
G_AX = 136
G_B = 16
G_ACC = 40

SPIN_LIMIT = 60000


def srd(r):
    return f"s[{r}:{r+3}]"


def sp(r):
    return f"s[{r}:{r+1}]"


def vr(r, n=1):
    return f"v{r}" if n == 1 else f"v[{r}:{r+n-1}]"


class Gen(Prog):
    def __init__(self):
        super().__init__()
        self.uid = 0

    profile = False
    codepf = True
    maskv = True
    nstamp = 0

    def stamp(self, name=""):
        if self.dbgprof:
            return self.dbg_stamp(name)
        if not self.profile:
            return
        names = self.__dict__.setdefault("stamp_names", [])
        if name in names and name in ("p4 gemm", "bar3", "po staged", "x3 loaded"):
            k = names.index(name)
        else:
            k = self.nstamp
            self.nstamp += 1
            names.append(name)
        assert k < 30
        self("s_memrealtime s[96:97]")
        if name == "start":
            self("v_mov_b32 v255, -1")
            self("s_waitcnt lgkmcnt(0)")
            self("s_mov_b32 s96, s90")
        self(f"s_lshl_b32 s98, s{S_LAYER}, 5")
        self(f"s_add_u32 m0, s98, {k}")
        self("s_waitcnt lgkmcnt(0)")
        self("v_writelane_b32 v255, s96, m0")

    dbgprof = None

    def dbg_stamp(self, name):
        cnt = self.__dict__.setdefault("dbg_seen", {})
        cnt[name] = cnt.get(name, 0) + 1
        slots = [(i, l) for i, (n, occ, l) in enumerate(self.dbgprof) if n == name and occ == cnt[name]]
        if name == "start":
            slots = [(-1, 0)]
        for i, layer in slots:
            e = self
            sk = e.L("dst")
            e(f"s_or_b32 s92, s{S_WAVE}, s2")
            e("s_cmp_lg_u32 s92, 0")
            e(f"s_cbranch_scc1 {sk}")
            e(f"s_cmp_lg_u32 s{S_LAYER}, {layer}")
            e(f"s_cbranch_scc1 {sk}")
            e("s_memrealtime s[96:97]")
            e(f"s_mov_b32 s92, s{S_DBG}")
            e(f"s_mov_b32 s93, s{S_DBG+1}")
            e("s_mov_b32 s94, 256")
            e("s_mov_b32 s95, 0x20000")
            e("s_waitcnt lgkmcnt(0)")
            if i < 0:
                e("s_not_b32 s96, s96")
            e("v_mov_b32 v255, s96")
            e("v_mov_b32 v254, 0")
            e("s_mov_b64 exec, 1")
            e(f"buffer_store_dword v255, v254, s[92:95], 0 offen offset:{4*(i+2)}")
            e("s_mov_b64 exec, -1")
            e.label(sk)

    def cyc_begin(self):
        if self.profile:
            self("s_memtime s[92:93]")
            self("s_memrealtime s[94:95]")
            self("s_waitcnt lgkmcnt(0)")

    def cyc_end(self, slot):
        if not self.profile:
            return
        e = self
        e("s_memtime s[96:97]")
        e("s_memrealtime s[98:99]")
        e("s_waitcnt lgkmcnt(0)")
        e("s_sub_u32 s96, s96, s92")
        e("s_sub_u32 s98, s98, s94")
        e(f"s_lshl_b32 s97, s{S_LAYER}, 5")
        e("s_add_u32 m0, s97, 30")
        e("v_writelane_b32 v255, s96, m0")
        e("s_add_u32 m0, s97, 31")
        e("v_writelane_b32 v255, s98, m0")

    def dump_stamps(self):
        self.stamp("end")
        if self.profile:
            e = self
            e("s_lshl_b32 s96, s2, 3")
            e(f"s_add_u32 s96, s96, s{S_WAVE}")
            e("s_lshl_b32 s96, s96, 8")
            e(f"s_add_u32 s96, s96, {PROF}")
            e(f"v_lshlrev_b32 v4, 2, v{V_LANE}")
            e(f"buffer_store_dword v255, v4, {srd(SRD_WS)}, s96 offen")

    def L(self, base):
        self.uid += 1
        return f"L_{base}_{self.uid}"

    def sel(self, dst, a, b):
        self(f"s_mov_b32 s{dst}, {b}")
        self(f"s_cselect_b32 s{dst}, {a}, s{dst}")

    def make_srd(self, r, base, size):
        self(f"s_mov_b32 s{r}, s{base}")
        self(f"s_mov_b32 s{r+1}, s{base+1}")
        self(f"s_mov_b32 s{r+2}, {size}")
        self(f"s_mov_b32 s{r+3}, 0x20000")

    def prologue(self, early=None):
        e = self
        e.label("L_code_begin")
        e("s_cmp_ge_u32 s2, 256")
        e("s_cbranch_scc1 L_end")
        if self.profile:
            e("s_memrealtime s[90:91]")
        e("s_getpc_b64 s[36:37]")
        e("s_and_b32 s36, s36, 0xffffff00")
        e("s_mov_b32 s38, L_code_end-L_code_begin")
        e("s_mov_b32 s39, 0x20000")
        e("s_lshr_b32 s3, s2, 3")
        e("s_lshl_b32 s3, s3, 11")
        e("v_lshlrev_b32 v4, 2, v0")
        e("v_add_u32 v4, s3, v4")
        if self.codepf: e("buffer_load_dword v253, v4, s[36:39], 0 offen")
        e("s_load_dwordx4 s[4:7], s[0:1], 0")
        e("s_load_dwordx2 s[8:9], s[0:1], 16")
        e("s_load_dwordx8 s[12:19], s[0:1], 32")
        e("s_load_dwordx4 s[20:23], s[0:1], 64")
        e("s_load_dwordx2 s[24:25], s[0:1], 80")
        e(f"v_and_b32 v{V_LANE}, 63, v0")
        e("v_lshrrev_b32 v4, 6, v0")
        e(f"v_and_b32 v{V_R16}, 15, v0")
        e(f"v_lshrrev_b32 v{V_GQ}, 4, v{V_LANE}")
        e(f"v_readfirstlane_b32 s{S_WAVE}, v4")
        e("s_and_b32 s48, s2, 7")
        e("s_lshr_b32 s49, s2, 3")
        e("s_lshl_b32 s48, s48, 3")
        e("s_lshr_b32 s50, s49, 2")
        e(f"s_add_u32 s{S_QB}, s48, s50")
        e(f"s_and_b32 s{S_HG}, s49, 3")
        e(f"s_mov_b32 s{S_LAYER}, 0")
        for reg, sym in ((S_FT, "TAB_FT"), (S_FI, "TAB_FI"), (S_TW, "TAB_TW")):
            e(f"s_getpc_b64 {sp(reg)}")
            e(f"s_add_u32 s{reg}, s{reg}, {sym}@rel32@lo+4")
            e(f"s_addc_u32 s{reg+1}, s{reg+1}, {sym}@rel32@hi+12")
        if early:
            early()
        e("s_waitcnt lgkmcnt(0)")
        self.make_srd(SRD_WS, S_WS, WS_END)
        if self.pretouch:
            self.touch_pages()

    pretouch = 0

    def touch_pages(self):
        e = self
        sk = e.L("notouch")
        e(f"s_cmp_lg_u32 s{S_WAVE}, 0")
        e(f"s_cbranch_scc1 {sk}")
        e("s_cmp_ge_u32 s2, 16")
        e(f"s_cbranch_scc1 {sk}")
        st = self.pretouch
        for k in range(1, (WS_END + st - 1) // st):
            e(f"s_mov_b32 s48, {min(k * st, WS_END - 64)}")
            e(f"s_load_dword s49, {sp(S_WS)}, s48")
        for k in range(0, XBYTES, st):
            e(f"s_mov_b32 s48, {k}")
            e(f"s_load_dword s49, {sp(S_OUT)}, s48")
        e.label(sk)

    def bar_offset(self, k, per_layer, group, dst):
        e = self
        if group:
            e(f"s_lshl_b32 s{dst}, s{S_LAYER}, 14")
            e(f"s_lshl_b32 s49, s{S_QB}, 8")
            e(f"s_add_u32 s{dst}, s{dst}, s49")
            e(f"s_add_u32 s{dst}, s{dst}, {CNT + CNT_GROUP}")
        elif per_layer:
            e(f"s_mul_i32 s{dst}, s{S_LAYER}, {3*BAR_BYTES}")
            e(f"s_add_u32 s{dst}, s{dst}, {CNT + k*BAR_BYTES}")
        else:
            e(f"s_mov_b32 s{dst}, {CNT + k*BAR_BYTES}")

    def signal(self, k=0, per_layer=False, group=False):
        e = self
        self.bar_offset(k, per_layer, group, 48)
        if not group:
            e(f"s_and_b32 s49, s2, {NSHARD-1}")
            e("s_lshl_b32 s49, s49, 8")
            e("s_add_u32 s48, s48, s49")
        e("v_mov_b32 v4, s48")
        e("v_mov_b32 v5, 1")
        e("s_mov_b64 exec, 1")
        e(f"buffer_atomic_add v5, v4, {srd(SRD_WS)}, 0 offen sc1")
        e("s_mov_b64 exec, -1")

    def arrive(self, k=0, per_layer=False, group=False, go_check=False):
        e = self
        e("s_waitcnt vmcnt(0) lgkmcnt(0)")
        e("s_barrier")
        e.stamp("drained" if not group else "drained g")
        skip = e.L("arr")
        e(f"s_cmp_lg_u32 s{S_WAVE}, 0")
        e(f"s_cbranch_scc1 {skip}")
        if go_check:
            lp, ok = e.L("go"), e.L("gook")
            e("v_readfirstlane_b32 s48, v252")
            e("s_cmp_lg_u32 s48, 0")
            e(f"s_cbranch_scc1 {ok}")
            self.make_srd(SRD_A, S_DBG, 256)
            e("v_mov_b32 v4, 0")
            e("s_mov_b32 s48, 0")
            e.label(lp)
            e(f"buffer_load_dword v5, v4, {srd(SRD_A)}, 0 offen sc1")
            e("s_waitcnt vmcnt(0)")
            e("v_cmp_eq_u32 vcc, 0, v5")
            e("s_add_u32 s48, s48, 1")
            e(f"s_cmp_gt_u32 s48, {SPIN_LIMIT}")
            e(f"s_cbranch_scc1 {ok}")
            e(f"s_cbranch_vccz {ok}")
            e("s_sleep 1")
            e(f"s_branch {lp}")
            e.label(ok)
        self.signal(k, per_layer, group)
        e.label(skip)

    def signal_word(self, off):
        e = self
        e(f"v_mov_b32 v4, {off}")
        e("v_mov_b32 v5, 1")
        e("s_mov_b64 exec, 1")
        e(f"buffer_atomic_add v5, v4, {srd(SRD_WS)}, 0 offen sc1")
        e("s_mov_b64 exec, -1")

    def wait(self, k=0, per_layer=False, group=False, target=None, word=None, first_sleep=10, poller=7):
        e = self
        done, lp = e.L("wdone"), e.L("poll")
        e(f"s_cmp_lg_u32 s{S_WAVE}, {poller}")
        e(f"s_cbranch_scc1 {done}")
        if word is not None:
            e(f"v_mov_b32 v4, {word}")
        else:
            self.bar_offset(k, per_layer, group, 48)
            if group:
                e("v_mov_b32 v4, s48")
            else:
                e(f"v_and_b32 v4, {NSHARD-1}, v{V_LANE}")
                e("v_lshlrev_b32 v4, 8, v4")
                e("v_add_u32 v4, s48, v4")
        if target is None:
            target = 4 if group else 256 // NSHARD
        e("s_mov_b32 s48, 0")
        e("s_setprio 3")
        if first_sleep:
            e(f"s_sleep {first_sleep}")
        e.label(lp)
        e(f"buffer_load_dword v5, v4, {srd(SRD_WS)}, 0 offen sc1")
        e("s_waitcnt vmcnt(0)")
        e(f"v_cmp_gt_u32 vcc, {target}, v5")
        e("s_add_u32 s48, s48, 1")
        e(f"s_cmp_gt_u32 s48, {SPIN_LIMIT}")
        e(f"s_cbranch_scc1 {done}")
        e(f"s_cbranch_vccz {done}")
        e("s_sleep 2")
        e(f"s_branch {lp}")
        e.label(done)
        e("s_setprio 0")
        e("s_barrier")

    def load_a_frags(self, srdreg, s_tile_base, dst, ksteps=range(18), flags="", vlane16=None):
        e = self
        cur = None
        for ks in ksteps:
            hi = ks // 4
            if hi != cur:
                e(f"s_add_u32 s49, s{s_tile_base}, {hi * 4096}")
                cur = hi
            off = (ks % 4) * 1024
            o = f" offset:{off}" if off else ""
            e(f"buffer_load_dwordx4 {vr(dst + 4*ks, 4)}, v{vlane16}, {srd(srdreg)}, s49 offen{o} {flags}".rstrip())

    def g144(self, bmode, vbA, vbB, extra, after_step=None, zero_init=True, vm_fn=None, a_main=None):
        e = self
        accA, accB, accX = G_ACC, G_ACC + 4, G_ACC + 8

        def rd(ks):
            b = G_B + 8 * (ks % 3)
            if bmode == "row":
                e(f"ds_read_b128 {vr(b,4)}, v{vbA[ks & 1]} offset:{(ks >> 1)*1024}")
                e(f"ds_read_b128 {vr(b+4,4)}, v{vbB[ks & 1]} offset:{(ks >> 1)*1024}")
                return 2
            if bmode == "frag":
                e(f"ds_read_b128 {vr(b,4)}, v{vbA} offset:{ks*1024}")
                e(f"ds_read_b128 {vr(b+4,4)}, v{vbB} offset:{ks*1024}")
                return 2
            e(f"ds_read_b64 {vr(b,2)}, v{vbA} offset:{ks*2048}")
            e(f"ds_read_b64 {vr(b+2,2)}, v{vbA} offset:{ks*2048+256}")
            e(f"ds_read_b64 {vr(b+4,2)}, v{vbB} offset:{ks*2048}")
            e(f"ds_read_b64 {vr(b+6,2)}, v{vbB} offset:{ks*2048+256}")
            return 4
        per = 4 if bmode == "x" else 2
        rd(0)
        rd(1)
        for ks in range(18):
            if ks + 2 < 18:
                rd(ks + 2)
            left = min(2, 17 - ks) * per
            if vm_fn is not None:
                e(f"s_waitcnt vmcnt({vm_fn(ks, extra)}) lgkmcnt({left})")
            else:
                e(f"s_waitcnt lgkmcnt({left})")
            b = G_B + 8 * (ks % 3)
            a = a_main(ks) if a_main else G_A + 4 * ks
            cA = "0" if (ks == 0 and zero_init) else vr(accA, 4)
            cB = "0" if (ks == 0 and zero_init) else vr(accB, 4)
            cX = "0" if (ks == 0 and zero_init) else vr(accX, 4)
            e(f"v_mfma_f32_16x16x32_bf16 {vr(accA,4)}, {vr(a,4)}, {vr(b,4)}, {cA}")
            e(f"v_mfma_f32_16x16x32_bf16 {vr(accB,4)}, {vr(a,4)}, {vr(b+4,4)}, {cB}")
            if extra:
                e(f"v_mfma_f32_16x16x32_bf16 {vr(accX,4)}, {vr(G_AX+4*ks,4)}, {vr(b,4)}, {cX}")
            if after_step:
                after_step(ks)

    def g144_both(self, bmode, vbA, vbB, after_step=None, zero_init=True, vm_fn=None):
        e = self
        noex, done = e.L("g_noex"), e.L("g_done")
        e(f"s_cmp_ge_u32 s{S_WAVE}, 2")
        e(f"s_cbranch_scc1 {noex}")
        self.g144(bmode, vbA, vbB, True, after_step, zero_init, vm_fn)
        e(f"s_branch {done}")
        e.label(noex)
        self.g144(bmode, vbA, vbB, False, after_step, zero_init, vm_fn)
        e.label(done)

    def sum_over_gq(self, v, t):
        e = self
        e(f"v_mov_b32 v{t}, v{v}")
        e(f"v_permlane16_swap_b32 v{t}, v{v}")
        e(f"v_add_f32 v{v}, v{v}, v{t}")
        e(f"v_mov_b32 v{t}, v{v}")
        e(f"v_permlane32_swap_b32 v{t}, v{v}")
        e(f"v_add_f32 v{v}, v{v}, v{t}")

    def bf16_round(self, v, t):
        e = self
        e(f"v_cvt_pk_bf16_f32 v{t}, v{v}, v{v}")
        e(f"v_lshlrev_b32 v{v}, 16, v{t}")

    def inv_sigma(self, v, t, scale=None):
        e = self
        e(f"v_mul_f32 v{v}, 0x3ae38e39, v{v}")
        self.bf16_round(v, t)
        e(f"v_add_f32 v{v}, 0x3727c5ac, v{v}")
        self.bf16_round(v, t)
        e(f"v_sqrt_f32 v{v}, v{v}")
        self.bf16_round(v, t)
        e(f"v_rcp_f32 v{v}, v{v}")
        if scale is not None:
            e(f"v_mul_f32 v{v}, {scale}, v{v}")

    def xhat_epilogue(self, s_xdst, s_part, pre_store=None, post_barrier=None):
        e = self
        accA, accB, accX = G_ACC, G_ACC + 4, G_ACC + 8
        e(f"s_mul_i32 s50, s{S_QB}, 144")
        e(f"s_mul_i32 s51, s{S_HG}, 36")
        e("s_add_u32 s50, s50, s51")
        e(f"s_lshl_b32 s51, s{S_WAVE}, 2")
        e("s_add_u32 s51, s51, s50")
        e("s_lshl_b32 s51, s51, 8")
        e(f"s_add_u32 s51, s51, s{s_xdst}")
        e("s_add_u32 s52, s50, 32")
        e("s_lshl_b32 s52, s52, 8")
        e(f"s_add_u32 s52, s52, s{s_xdst}")
        e(f"s_and_b32 s53, s{S_WAVE}, 1")
        e(f"v_lshrrev_b32 v4, 1, v{V_GQ}")
        e(f"v_xor_b32 v5, s53, v4")
        e(f"v_lshlrev_b32 v6, 8, v{V_GQ}")
        e(f"v_lshl_add_u32 v6, v{V_R16}, 3, v6")
        e("v_lshl_add_u32 v7, v5, 7, v6")
        e("v_xor_b32 v8, 128, v7")
        e(f"v_mul_f32 v9, v{accA}, v{accA}")
        e(f"v_mul_f32 v10, v{accB}, v{accB}")
        e(f"v_mul_f32 v11, v{accA+1}, v{accA+1}")
        e(f"v_mul_f32 v12, v{accB+1}, v{accB+1}")
        nodc = e.L("nodc")
        e(f"s_or_b32 s53, s{S_HG}, s{S_WAVE}")
        e("s_cmp_lg_u32 s53, 0")
        e(f"s_cbranch_scc1 {nodc}")
        e(f"v_cmp_eq_u32 vcc, 0, v{V_GQ}")
        e("v_mov_b32 v13, 0")
        e("v_cndmask_b32 v11, v11, v13, vcc")
        e("v_cndmask_b32 v12, v12, v13, vcc")
        e.label(nodc)
        e("v_add_f32 v9, v9, v11")
        e("v_add_f32 v10, v10, v12")
        for r in (2, 3):
            e(f"v_fmac_f32 v9, v{accA+r}, v{accA+r}")
            e(f"v_fmac_f32 v10, v{accB+r}, v{accB+r}")
        e(f"v_cvt_pk_bf16_f32 v14, v{accA}, v{accA+1}")
        e(f"v_cvt_pk_bf16_f32 v15, v{accA+2}, v{accA+3}")
        e(f"buffer_store_dwordx2 v[14:15], v7, {srd(SRD_WS)}, s51 offen sc1")
        e(f"v_cvt_pk_bf16_f32 v52, v{accB}, v{accB+1}")
        e(f"v_cvt_pk_bf16_f32 v53, v{accB+2}, v{accB+3}")
        e(f"buffer_store_dwordx2 v[52:53], v8, {srd(SRD_WS)}, s51 offen sc1")
        if pre_store:
            pre_store()
        self.sum_over_gq(9, 13)
        self.sum_over_gq(10, 13)
        e(f"s_and_b32 s53, s{S_WAVE}, 1")
        e(f"s_lshl_b32 s54, s{S_WAVE}, 7")
        e("s_lshl_b32 s55, s53, 6")
        e("s_add_u32 s54, s54, s55")
        e(f"v_lshlrev_b32 v11, 2, v{V_R16}")
        e(f"v_add_u32 v11, s54, v11")
        e("v_xor_b32 v12, 64, v11")
        e(f"v_add_u32 v11, {L_STAT}, v11")
        e(f"v_add_u32 v12, {L_STAT}, v12")
        e("ds_write_b32 v11, v9")
        e("ds_write_b32 v12, v10")
        noex = e.L("ep_noex")
        e(f"s_cmp_ge_u32 s{S_WAVE}, 2")
        e(f"s_cbranch_scc1 {noex}")
        e(f"v_mul_f32 v9, v{accX}, v{accX}")
        for r in (1, 2, 3):
            e(f"v_fmac_f32 v9, v{accX+r}, v{accX+r}")
        e(f"v_cvt_pk_bf16_f32 v54, v{accX}, v{accX+1}")
        e(f"v_cvt_pk_bf16_f32 v55, v{accX+2}, v{accX+3}")
        e(f"buffer_store_dwordx2 v[54:55], v7, {srd(SRD_WS)}, s52 offen sc1")
        self.sum_over_gq(9, 13)
        e(f"v_lshlrev_b32 v11, 2, v{V_R16}")
        e(f"v_add_u32 v11, s55, v11")
        e(f"v_add_u32 v11, {L_STAT + 8*128}, v11")
        e("ds_write_b32 v11, v9")
        e.label(noex)
        e("s_waitcnt lgkmcnt(0)")
        e("s_barrier")
        if post_barrier:
            post_barrier()
        fin = e.L("ep_fin")
        e(f"s_cmp_lg_u32 s{S_WAVE}, 0")
        e(f"s_cbranch_scc1 {fin}")
        e(f"v_and_b32 v4, 31, v{V_LANE}")
        e("v_lshlrev_b32 v4, 2, v4")
        e(f"v_add_u32 v14, {L_STAT}, v4")
        for t in range(9):
            e(f"ds_read_b32 v{5+t}, v14 offset:{t*128}")
        e("s_waitcnt lgkmcnt(0)")
        for t in range(1, 9):
            e(f"v_add_f32 v5, v5, v{5+t}")
        e(f"s_lshl_b32 s50, s{S_HG}, 13")
        e(f"s_lshl_b32 s51, s{S_QB}, 7")
        e("s_add_u32 s50, s50, s51")
        e(f"s_add_u32 s50, s50, s{s_part}")
        e("s_mov_b32 exec_hi, 0")
        e(f"buffer_store_dword v5, v4, {srd(SRD_WS)}, s50 offen sc1")
        e("s_mov_b64 exec, -1")
        e.label(fin)
```

```python
from gen_common import *

WD, WD2 = 208, 220


def p0_early(e):
    e.make_srd(SRD_T, S_FT, 36 * 18432)
    e(f"v_lshlrev_b32 v60, 4, v{V_LANE}")
    e(f"s_mul_i32 s56, s{S_HG}, 9")
    e(f"s_add_u32 s60, s56, s{S_WAVE}")
    e("s_mul_i32 s60, s60, 18432")
    e.load_a_frags(SRD_T, 60, G_A, vlane16=60)
    nx = e.L("p0nx")
    e(f"s_cmp_ge_u32 s{S_WAVE}, 2")
    e(f"s_cbranch_scc1 {nx}")
    e("s_add_u32 s61, s56, 8")
    e("s_mul_i32 s61, s61, 18432")
    e.load_a_frags(SRD_T, 61, G_AX, vlane16=60)
    e.label(nx)


def p0(e, after_gemm):
    nz = e.L("nozero")
    e("s_cmp_lg_u32 s2, 0")
    e(f"s_cbranch_scc1 {nz}")
    e("v_mov_b32 v12, 0")
    e("v_lshlrev_b32 v9, 8, v0")
    e(f"buffer_store_dword v12, v9, {srd(SRD_WS)}, 0 offen sc1")
    e.label(nz)
    e.make_srd(SRD_A, S_AX, XBYTES)
    e(f"v_lshrrev_b32 v6, 3, v{V_LANE}")
    e(f"s_lshl_b32 s50, s{S_QB}, 5")
    e("v_add_u32 v4, s50, v6")
    e("v_mul_u32_u24 v4, 1152, v4")
    e(f"v_and_b32 v7, 7, v{V_LANE}")
    e("v_xor_b32 v7, v7, v6")
    e("v_lshl_add_u32 v4, v7, 4, v4")
    for m in range(5):
        skip = None
        if m == 4:
            skip = e.L("p0dma")
            e(f"s_cmp_ge_u32 s{S_WAVE}, 4")
            e(f"s_cbranch_scc1 {skip}")
        e(f"s_add_u32 s50, s{S_WAVE}, {8*m}")
        e(f"s_mul_hi_u32 s51, s50, {((1 << 32) + 8) // 9}")
        e("s_mul_i32 s52, s51, 9")
        e("s_sub_u32 s52, s50, s52")
        e("s_lshl_b32 s52, s52, 7")
        e(f"s_mul_i32 s51, s51, {8 * 1152}")
        e("s_add_u32 s51, s51, s52")
        e("s_lshl_b32 m0, s50, 10")
        e(f"buffer_load_dwordx4 v4, {srd(SRD_A)}, s51 offen lds")
        if skip:
            e.label(skip)
    e.make_srd(SRD_A, S_WR, S * 289 * 2)
    e.make_srd(SRD_B, S_WI, S * 289 * 2)
    e("s_lshr_b32 s50, s2, 2")
    e("s_and_b32 s51, s2, 3")
    e("s_lshr_b32 s52, s50, 3")
    e("s_and_b32 s53, s50, 7")
    e("s_lshl_b32 s53, s53, 3")
    e("s_add_u32 s52, s52, s53")
    e(f"s_lshl_b32 s53, s{S_WAVE}, 6")
    e("s_add_u32 s52, s52, s53")
    e("s_mul_i32 s52, s52, 578")
    e("s_mul_i32 s54, s51, 72")
    e("s_lshl_b32 s55, s50, 7")
    e("s_lshl_b32 s58, s54, 13")
    e("s_add_u32 s55, s55, s58")
    e(f"s_add_u32 s{S_X+5}, s55, {WT}")
    e(f"v_add_u32 v9, s54, v{V_LANE}")
    e("v_cmp_eq_u32 vcc, 0, v9")
    e("v_mov_b32 v10, 288")
    e("v_cndmask_b32 v10, v9, v10, vcc")
    e("v_lshlrev_b32 v10, 1, v10")
    e(f"v_lshrrev_b32 v11, 3, v{V_LANE}")
    e("v_and_b32 v11, 3, v11")
    e(f"v_mul_u32_u24 v11, {512 * 578 // 2}, v11")
    e(f"v_and_b32 v12, 7, v{V_LANE}")
    e("v_add_u32 v11, v11, v12")
    e("s_add_u32 s59, s54, 64")
    e("v_add_u32 v11, s59, v11")
    e("v_lshlrev_b32 v11, 1, v11")

    def wt_loads():
        for f3 in range(4):
            e(f"s_add_u32 s59, s52, {f3 * 512 * 578}")
            e(f"buffer_load_ushort v{WD+f3}, v10, {srd(SRD_A)}, s59 offen")
            e(f"buffer_load_ushort v{WD2+f3}, v10, {srd(SRD_B)}, s59 offen")
        e("s_mov_b32 exec_hi, 0")
        e(f"buffer_load_ushort v{WD+4}, v11, {srd(SRD_A)}, s52 offen")
        e(f"buffer_load_ushort v{WD2+4}, v11, {srd(SRD_B)}, s52 offen")
        e("s_mov_b64 exec, -1")
    e(f"s_and_b32 s50, s{S_WAVE}, 1")
    e(f"v_and_b32 v4, 7, v{V_R16}")
    e(f"v_xor_b32 v5, v4, v{V_GQ}")
    e("v_lshlrev_b32 v5, 4, v5")
    e("v_lshl_add_u32 v5, v4, 7, v5")
    e(f"v_lshrrev_b32 v6, 3, v{V_R16}")
    e("v_mul_u32_u24 v6, 9216, v6")
    e("v_add_u32 v5, v5, v6")
    e("s_mul_i32 s51, s50, 18432")
    e("v_add_u32 v56, s51, v5")
    e("v_xor_b32 v57, 64, v56")
    e("s_sub_u32 s51, 18432, s51")
    e("v_add_u32 v58, s51, v5")
    e("v_xor_b32 v59, 64, v58")
    e("s_waitcnt vmcnt(0)")
    e("s_barrier")
    e.stamp("p0 loaded")
    ng = e.L("nogo")
    e(f"s_or_b32 s50, s2, s{S_WAVE}")
    e("s_cmp_lg_u32 s50, 0")
    e(f"s_cbranch_scc1 {ng}")
    e(f"s_mov_b32 s92, s{S_DBG}")
    e(f"s_mov_b32 s93, s{S_DBG+1}")
    e("s_mov_b32 s94, 256")
    e("s_mov_b32 s95, 0x20000")
    e("v_mov_b32 v9, 0")
    e("v_mov_b32 v12, 1")
    e("s_mov_b64 exec, 1")
    e("buffer_store_dword v12, v9, s[92:95], 0 offen sc1")
    e("s_mov_b64 exec, -1")
    e("s_waitcnt vmcnt(0)")
    e.label(ng)

    wt_loads()
    e.g144_both("row", (56, 57), (58, 59))
    e.make_srd(SRD_B, S_DBG, 256)
    e("v_mov_b32 v9, 0")
    e(f"buffer_load_dword v252, v9, {srd(SRD_B)}, 0 offen sc1")
    after_gemm()
    e(f"s_mov_b32 s{S_X}, {X0}")
    e(f"s_mov_b32 s{S_X+1}, {PART0}")
    e.xhat_epilogue(S_X, S_X + 1, pre_store=lambda: wt_stage(e), post_barrier=lambda: wt_store(e))


L_WT = 40960


def wt_stage(e):
    e("s_waitcnt vmcnt(3)")
    for r in range(5):
        e(f"v_lshl_or_b32 v{WD+r}, v{WD2+r}, 16, v{WD+r}")
    e(f"s_lshl_b32 s53, s{S_WAVE}, 4")
    e(f"s_add_u32 s53, s53, {L_WT}")
    e(f"v_lshlrev_b32 v216, 7, v{V_LANE}")
    e("v_add_u32 v216, s53, v216")
    e(f"ds_write_b128 v216, {vr(WD,4)}")
    e(f"v_and_b32 v217, 7, v{V_LANE}")
    e("v_lshlrev_b32 v217, 7, v217")
    e(f"v_bfe_u32 v218, v{V_LANE}, 3, 2")
    e("v_lshl_add_u32 v217, v218, 2, v217")
    e(f"s_add_u32 s53, s53, {64 * 128}")
    e("v_add_u32 v217, s53, v217")
    e("s_mov_b32 exec_hi, 0")
    e(f"ds_write_b32 v217, v{WD+4}")
    e("s_mov_b64 exec, -1")


def wt_store(e):
    e("v_lshlrev_b32 v216, 4, v0")
    e(f"ds_read_b128 {vr(WD,4)}, v216 offset:{L_WT}")
    e(f"ds_read_b128 {vr(WD2,4)}, v216 offset:{L_WT + 8192}")
    e("v_lshrrev_b32 v217, 3, v0")
    e("v_lshlrev_b32 v217, 13, v217")
    e("v_and_b32 v218, 7, v0")
    e("v_lshl_add_u32 v217, v218, 4, v217")
    e("s_waitcnt lgkmcnt(0)")
    e(f"buffer_store_dwordx4 {vr(WD,4)}, v217, {srd(SRD_WS)}, s{S_X+5} offen sc1")
    sk = e.L("wt2")
    e(f"s_cmp_lg_u32 s{S_WAVE}, 0")
    e(f"s_cbranch_scc1 {sk}")
    e(f"s_add_u32 s53, s{S_X+5}, {64 * 8192}")
    e(f"buffer_store_dwordx4 {vr(WD2,4)}, v217, {srd(SRD_WS)}, s53 offen sc1")
    e.label(sk)
```

```python
from gen_common import *

RES = 244
KA = 208
SA, SB, OA, OB = 16, 32, 48, 136
PA_, PB_ = 152, 160
K1, K2 = 168, 172
V0, V1 = 176, 180
QA1, QA2, QB1, QB2 = 184, 188, 192, 196
AK1, AK2, AV = 198, 199, 200
L_REDX = 0
L_OX = 0
S_XIN, S_KV, S_OB, S_FB = S_X, S_X + 1, S_X + 2, S_X + 4
QSCALE = "0x3eae1a93"


def xtile_bases(e, va, vb, base=L_XT2):
    e(f"s_and_b32 s50, s{S_WAVE}, 1")
    e(f"v_and_b32 v4, 1, v{V_GQ}")
    e("v_xor_b32 v4, s50, v4")
    e(f"v_lshlrev_b32 v5, 9, v{V_GQ}")
    e("v_lshl_add_u32 v5, v4, 7, v5")
    e(f"v_lshl_add_u32 v5, v{V_R16}, 3, v5")
    e(f"v_add_u32 v{va}, {base}, v5")
    e(f"v_xor_b32 v{vb}, 128, v{va}")


def tile_dma(e, s_src, lds_base, vlane16):
    e(f"s_mul_i32 s54, s{S_QB}, 36864")
    e(f"s_add_u32 s54, s54, s{s_src}")
    for m in range(5):
        skip = None
        if m == 4:
            skip = e.L("tdma")
            e(f"s_cmp_ge_u32 s{S_WAVE}, 4")
            e(f"s_cbranch_scc1 {skip}")
        e(f"s_add_u32 s50, s{S_WAVE}, {8*m}")
        e("s_lshl_b32 s50, s50, 10")
        if lds_base:
            e(f"s_add_u32 m0, s50, {lds_base}")
        else:
            e("s_mov_b32 m0, s50")
        e("s_add_u32 s50, s50, s54")
        e(f"buffer_load_dwordx4 v{vlane16}, {srd(SRD_WS)}, s50 offen sc1 lds")
        if skip:
            e.label(skip)


def wq_main(e, v=60):
    e(f"v_lshlrev_b32 v{v}, 4, v{V_LANE}")
    e(f"s_mul_i32 s57, s{S_HG}, 9")
    e(f"s_add_u32 s57, s57, s{S_WAVE}")
    e(f"s_mul_i32 s57, s57, 18432")
    e(f"s_add_u32 s57, s57, {WQF}")
    e.load_a_frags(SRD_WS, 57, G_A, flags="sc1", vlane16=v)


def wq_extra(e):
    nx = e.L("wqnx")
    e(f"s_cmp_ge_u32 s{S_WAVE}, 2")
    e(f"s_cbranch_scc1 {nx}")
    e(f"v_lshlrev_b32 v60, 4, v{V_LANE}")
    e(f"s_mul_i32 s57, s{S_HG}, 9")
    e("s_add_u32 s57, s57, 8")
    e(f"s_mul_i32 s57, s57, 18432")
    e(f"s_add_u32 s57, s57, {WQF}")
    e.load_a_frags(SRD_WS, 57, G_AX, flags="sc1", vlane16=60)
    e.label(nx)


S_WQOK = S_X + 7


def wq_ready_spin(e):
    lp, ok = e.L("wqspin"), e.L("wqok")
    e(f"v_mov_b32 v4, {CNT_WQ}")
    e("s_mov_b32 s48, 0")
    e.label(lp)
    e(f"buffer_load_dword v5, v4, {srd(SRD_WS)}, 0 offen sc1")
    e("s_waitcnt vmcnt(0)")
    e("v_readfirstlane_b32 s49, v5")
    e("s_add_u32 s48, s48, 1")
    e(f"s_cmp_gt_u32 s48, {SPIN_LIMIT}")
    e(f"s_cbranch_scc1 {ok}")
    e("s_cmp_ge_u32 s49, 50")
    e(f"s_cbranch_scc1 {ok}")
    e("s_sleep 2")
    e(f"s_branch {lp}")
    e.label(ok)


def p2(e):
    e(f"v_lshlrev_b32 v60, 4, v{V_LANE}")
    tile_dma(e, S_XIN, L_XT2, 60)
    nk = e.L("p2nk")
    e(f"s_cmp_lt_u32 s{S_WAVE}, 6")
    e(f"s_cbranch_scc1 {nk}")
    e(f"s_add_u32 s57, s{S_HG}, 36")
    e("s_mul_i32 s57, s57, 18432")
    e(f"s_add_u32 s57, s57, {WQF}")
    e.load_a_frags(SRD_WS, 57, G_AX, flags="sc1", vlane16=60)
    e.label(nk)
    e(f"v_mov_b32 v4, {L_FLAG}")
    e("v_mov_b32 v5, 0")
    e("ds_write_b32 v4, v5")
    xtile_bases(e, 56, 57)
    kvw, wd = e.L("p2kv"), e.L("p2wd")
    e(f"s_cmp_ge_u32 s{S_WAVE}, 6")
    e(f"s_cbranch_scc1 {kvw}")
    e("s_waitcnt vmcnt(0) lgkmcnt(0)")
    e("s_barrier")
    e.stamp("p2 loaded")
    e(f"s_branch {wd}")
    e.label(kvw)
    e("s_setprio 3")
    kv_addresses(e)
    e("s_waitcnt vmcnt(18) lgkmcnt(0)")
    e("s_barrier")
    e.stamp("kv x")
    kv_project(e)
    e("s_setprio 0")
    e.stamp("kv signal")
    e.label(wd)
    hv = e.L("havewq")
    e(f"s_cmp_lg_u32 s{S_WQOK}, 0")
    e(f"s_cbranch_scc1 {hv}")
    wq_main(e)
    e.label(hv)
    wq_extra(e)
    nb = e.L("p2nb")
    e(f"s_cmp_ge_u32 s{S_WAVE}, 6")
    e(f"s_cbranch_scc1 {nb}")
    e(f"s_cmp_eq_u32 s{S_LAYER}, 0")
    e(f"s_cbranch_scc1 {nb}")
    e("s_barrier")
    e.label(nb)
    e.g144_both("x", 56, 57, vm_fn=lambda ks, ex: 17 - ks)
    e(f"s_mov_b32 s{S_WQOK}, 0")
    e.stamp("q gemm")
    e("s_waitcnt lgkmcnt(0)")
    e("s_barrier")
    e(f"s_and_b32 s50, s{S_WAVE}, 1")
    e("s_lshl_b32 s50, s50, 6")
    e(f"s_add_u32 s50, s50, {L_INV}")
    e(f"v_lshlrev_b32 v4, 2, v{V_R16}")
    e("v_add_u32 v4, s50, v4")
    e("v_xor_b32 v5, 64, v4")
    e("ds_read_b32 v58, v4")
    e("ds_read_b32 v59, v5")
    e("s_waitcnt lgkmcnt(0)")
    e(f"v_mul_f32 v58, {QSCALE}, v58")
    e(f"v_mul_f32 v59, {QSCALE}, v59")
    q_stage(e)
    rdone = e.L("resdone")
    e(f"s_cmp_lg_u32 s{S_LAYER}, 0")
    e(f"s_cbranch_scc1 {rdone}")
    e(f"s_mul_i32 s50, s{S_HG}, 36")
    e(f"s_lshl_b32 s51, s{S_WAVE}, 2")
    e("s_add_u32 s51, s51, s50")
    e("s_lshl_b32 s51, s51, 8")
    e(f"s_add_u32 s51, s51, {L_XT2}")
    e("s_add_u32 s52, s50, 32")
    e("s_lshl_b32 s52, s52, 8")
    e(f"s_add_u32 s52, s52, {L_XT2}")
    e(f"s_and_b32 s53, s{S_WAVE}, 1")
    e(f"v_lshrrev_b32 v4, 1, v{V_GQ}")
    e("v_xor_b32 v5, s53, v4")
    e(f"v_lshlrev_b32 v6, 8, v{V_GQ}")
    e(f"v_lshl_add_u32 v6, v{V_R16}, 3, v6")
    e("v_lshl_add_u32 v7, v5, 7, v6")
    e("v_xor_b32 v8, 128, v7")
    e("v_add_u32 v9, s51, v7")
    e("v_add_u32 v10, s51, v8")
    e("v_add_u32 v11, s52, v7")
    e(f"ds_read_b64 {vr(RES,2)}, v9")
    e(f"ds_read_b64 {vr(RES+2,2)}, v10")
    e(f"ds_read_b64 {vr(RES+4,2)}, v11")
    e.label(rdone)
    e("s_waitcnt lgkmcnt(0)")
    e("s_barrier")
    e(f"s_and_b32 s50, s{S_WAVE}, 3")
    e("s_mul_i32 s50, s50, 72")
    e(f"s_add_u32 s50, s50, {L_QL}")
    e(f"v_and_b32 v4, 31, v{V_LANE}")
    e(f"v_mul_u32_u24 v4, {QL_PITCH}, v4")
    e("v_add_u32 v4, s50, v4")
    e(f"v_lshrrev_b32 v5, 5, v{V_LANE}")
    e("v_lshl_add_u32 v5, v5, 4, v4")
    e(f"ds_read2_b32 {vr(QA1,2)}, v5 offset0:0 offset1:1")
    e(f"ds_read2_b32 {vr(QA1+2,2)}, v5 offset0:2 offset1:3")
    e(f"ds_read2_b32 {vr(QB1,2)}, v5 offset0:9 offset1:10")
    e(f"ds_read2_b32 {vr(QB1+2,2)}, v5 offset0:11 offset1:12")
    e(f"ds_read_b32 v{QA2}, v4 offset:32")
    e(f"ds_read_b32 v{QB2}, v4 offset:68")
    e(f"v_cmp_gt_u32 vcc, 32, v{V_LANE}")
    e("v_mov_b32 v6, 0")
    e("s_waitcnt lgkmcnt(0)")
    e(f"v_cndmask_b32 v{QA2}, v6, v{QA2}, vcc")
    e(f"v_cndmask_b32 v{QB2}, v6, v{QB2}, vcc")


def kv_addresses(e):
    e(f"s_and_b32 s64, s{S_WAVE}, 1")
    e("s_lshl_b32 s50, s64, 6")
    e(f"s_add_u32 s50, s50, {L_INV}")
    e(f"v_lshlrev_b32 v62, 2, v{V_R16}")
    e("v_add_u32 v62, s50, v62")
    e("s_lshl_b32 s50, s64, 9")
    e(f"s_add_u32 s50, s50, {L_REDX}")
    e(f"v_lshlrev_b32 v63, 5, v{V_R16}")
    e(f"v_lshl_add_u32 v63, v{V_GQ}, 3, v63")
    e("v_add_u32 v63, s50, v63")
    e(f"v_lshrrev_b32 v54, 2, v{V_R16}")
    e(f"v_lshl_add_u32 v54, v{V_GQ}, 2, v54")
    e("v_lshlrev_b32 v54, 5, v54")
    e(f"v_and_b32 v6, 3, v{V_R16}")
    e("v_lshl_add_u32 v54, v6, 3, v54")
    e("v_add_u32 v54, s50, v54")
    e(f"s_and_b32 s51, s{S_QB}, 31")
    e("s_lshr_b32 s52, s51, 2")
    e(f"s_mul_i32 s52, s52, {CHUNK}")
    e("s_and_b32 s51, s51, 3")
    e(f"s_lshr_b32 s53, s{S_QB}, 5")
    e("s_lshl_b32 s53, s53, 2")
    e("s_add_u32 s51, s51, s53")
    e(f"s_add_u32 s52, s52, s{S_KV}")
    e("s_mov_b64 s[80:81], -1")
    e("s_mov_b64 s[82:83], 0")
    h1, h2, hd = e.L("kva1"), e.L("kva2"), e.L("kvad")
    e(f"s_bitcmp1_b32 s{S_HG}, 0")
    e(f"s_cbranch_scc1 {h1}")
    e(f"s_cmp_eq_u32 s{S_HG}, 2")
    e(f"s_cbranch_scc1 {h2}")
    e("s_lshl_b32 s62, s51, 10")
    e("s_add_u32 s62, s62, s52")
    e("s_lshl_b32 s50, s64, 8")
    e("s_add_u32 s62, s62, s50")
    e(f"v_lshrrev_b32 v4, 1, v{V_GQ}")
    e("v_lshlrev_b32 v4, 9, v4")
    e(f"v_lshl_add_u32 v4, v{V_R16}, 4, v4")
    e(f"v_and_b32 v5, 1, v{V_GQ}")
    e("v_lshl_add_u32 v61, v5, 3, v4")
    e(f"s_branch {hd}")
    e.label(h2)
    e("s_lshl_b32 s62, s51, 7")
    e("s_add_u32 s62, s62, s52")
    e(f"s_add_u32 s62, s62, {K2_OFF}")
    e("s_lshl_b32 s50, s64, 6")
    e("s_add_u32 s62, s62, s50")
    e(f"v_lshlrev_b32 v61, 2, v{V_R16}")
    e("s_mov_b64 s[80:81], 0xffff")
    e(f"s_branch {hd}")
    e.label(h1)
    e(f"s_mul_i32 s62, s51, {VT}")
    e("s_add_u32 s62, s62, s52")
    e(f"s_add_u32 s62, s62, {V_OFF}")
    e("s_mul_i32 s50, s64, 608")
    e("s_add_u32 s62, s62, s50")
    e(f"v_and_b32 v5, 1, v{V_GQ}")
    e("v_mul_u32_u24 v4, 304, v5")
    e(f"v_lshl_add_u32 v4, v{V_R16}, 4, v4")
    e(f"v_lshrrev_b32 v5, 1, v{V_GQ}")
    e("v_lshl_add_u32 v61, v5, 3, v4")
    e(f"s_cmp_lg_u32 s{S_HG}, 3")
    e(f"s_cbranch_scc1 {hd}")
    e("s_add_u32 s62, s62, 256")
    e(f"v_cmp_gt_u32 s[80:81], 3, v{V_R16}")
    e(f"v_cmp_eq_u32 s[82:83], 2, v{V_R16}")
    e.label(hd)
    e.bar_offset(2, True, False, 48)
    e(f"s_and_b32 s49, s2, {NSHARD-1}")
    e("s_lshl_b32 s49, s49, 8")
    e("s_add_u32 s48, s48, s49")
    e("v_mov_b32 v55, s48")


def kv_project(e):
    def rd(ks):
        b = 16 + 4 * (ks % 3)
        e(f"ds_read_b64 {vr(b,2)}, v56 offset:{ks*2048}")
        e(f"ds_read_b64 {vr(b+2,2)}, v56 offset:{ks*2048+256}")
    for r in range(6, 10):
        e(f"v_mov_b32 v{r}, 0")
    rd(0)
    rd(1)
    for ks in range(18):
        if ks + 2 < 18:
            rd(ks + 2)
        e(f"s_waitcnt vmcnt({17 - ks}) lgkmcnt({min(2, 17 - ks) * 2})")
        b = 16 + 4 * (ks % 3)
        c = "0" if ks == 0 else "v[10:13]"
        e(f"v_mfma_f32_16x16x32_bf16 v[10:13], {vr(G_AX+4*ks,4)}, {vr(b,4)}, {c}")
        first = b
        if ks == 0:
            e(f"v_and_b32 v15, 0xffff, v{b}")
            e(f"v_cmp_eq_u32 vcc, 0, v{V_GQ}")
            e(f"v_cndmask_b32 v14, v{b}, v15, vcc")
            first = 14
        e(f"v_dot2c_f32_bf16 v6, v{first}, v{first}")
        e(f"v_dot2c_f32_bf16 v7, v{b+1}, v{b+1}")
        e(f"v_dot2c_f32_bf16 v8, v{b+2}, v{b+2}")
        e(f"v_dot2c_f32_bf16 v9, v{b+3}, v{b+3}")
    e.stamp("kv mm")
    nb = e.L("kvnb")
    e(f"s_cmp_eq_u32 s{S_LAYER}, 0")
    e(f"s_cbranch_scc1 {nb}")
    e("s_barrier")
    e.label(nb)
    e("v_add_f32 v6, v6, v7")
    e("v_add_f32 v9, v8, v9")
    e("v_add_f32 v9, v6, v9")
    e.sum_over_gq(9, 14)
    e.inv_sigma(9, 14)
    e("ds_write_b32 v62, v9")
    d = 52
    for r in range(4):
        e(f"v_mul_f32 v{10+r}, v{10+r}, v9")
    e(f"v_cvt_pk_bf16_f32 v{d}, v10, v11")
    e(f"v_cvt_pk_bf16_f32 v{d+1}, v12, v13")
    nv = e.L("kv_nv")
    e(f"s_bitcmp0_b32 s{S_HG}, 0")
    e(f"s_cbranch_scc1 {nv}")
    e(f"ds_write_b64 v63, {vr(d,2)}")
    e("s_waitcnt lgkmcnt(0)")
    e(f"ds_read_b64_tr_b16 {vr(d,2)}, v54")
    e("v_mov_b32 v6, 0x3f803f80")
    e("s_waitcnt lgkmcnt(0)")
    e(f"v_cndmask_b32 v{d}, v{d}, v6, s[82:83]")
    e(f"v_cndmask_b32 v{d+1}, v{d+1}, v6, s[82:83]")
    e.label(nv)
    k2, hd = e.L("kvs2"), e.L("kvsd")
    e("s_mov_b64 exec, s[80:81]")
    e(f"s_cmp_eq_u32 s{S_HG}, 2")
    e(f"s_cbranch_scc1 {k2}")
    e(f"buffer_store_dwordx2 {vr(d,2)}, v61, {srd(SRD_WS)}, s62 offen sc1")
    e(f"s_branch {hd}")
    e.label(k2)
    e(f"buffer_store_dword v{d}, v61, {srd(SRD_WS)}, s62 offen sc1")
    e.label(hd)
    e("v_mov_b32 v5, 1")
    e.stamp("kv st")
    e("s_waitcnt vmcnt(0)")
    e("s_mov_b64 exec, 1")
    e(f"buffer_atomic_add v5, v55, {srd(SRD_WS)}, 0 offen sc1")
    e("s_mov_b64 exec, -1")


def q_stage(e):
    accA, accB, accX = G_ACC, G_ACC + 4, G_ACC + 8
    e(f"s_and_b32 s50, s{S_WAVE}, 1")
    e("s_lshl_b32 s51, s50, 4")
    e(f"v_add_u32 v4, s51, v{V_R16}")
    e("v_xor_b32 v5, 16, v4")
    e(f"v_mul_u32_u24 v4, {QL_PITCH}, v4")
    e(f"v_mul_u32_u24 v5, {QL_PITCH}, v5")
    e(f"v_lshlrev_b32 v6, 3, v{V_GQ}")
    e(f"v_add_u32 v6, {L_QL}, v6")
    e("v_add_u32 v4, v4, v6")
    e("v_add_u32 v5, v5, v6")
    e(f"s_lshl_b32 s52, s{S_WAVE}, 5")
    e("v_add_u32 v7, s52, v4")
    e("v_add_u32 v8, s52, v5")
    for r in range(4):
        e(f"v_mul_f32 v{accA+r}, v{accA+r}, v58")
        e(f"v_mul_f32 v{accB+r}, v{accB+r}, v59")
    e(f"v_cvt_pk_bf16_f32 v10, v{accA}, v{accA+1}")
    e(f"v_cvt_pk_bf16_f32 v11, v{accA+2}, v{accA+3}")
    e(f"v_cvt_pk_bf16_f32 v12, v{accB}, v{accB+1}")
    e(f"v_cvt_pk_bf16_f32 v13, v{accB+2}, v{accB+3}")
    e("ds_write_b64 v7, v[10:11]")
    e("ds_write_b64 v8, v[12:13]")
    nx = e.L("qs_nx")
    e(f"s_cmp_ge_u32 s{S_WAVE}, 2")
    e(f"s_cbranch_scc1 {nx}")
    for r in range(4):
        e(f"v_mul_f32 v{accX+r}, v{accX+r}, v58")
    e(f"v_cvt_pk_bf16_f32 v14, v{accX}, v{accX+1}")
    e(f"v_cvt_pk_bf16_f32 v15, v{accX+2}, v{accX+3}")
    e("ds_write_b64 v4, v[14:15] offset:256")
    e.label(nx)


def max16(e, s, dst):
    e(f"v_max3_f32 v{dst}, v{s}, v{s+1}, v{s+2}")
    for r in range(3, 15, 2):
        e(f"v_max3_f32 v{dst}, v{dst}, v{s+r}, v{s+r+1}")
    e(f"v_max_f32 v{dst}, v{dst}, v{s+15}")


def set_m(e, m, q2):
    e(f"v_sub_f32 v{m}, 0, v{m}")
    e(f"v_cvt_pk_bf16_f32 v4, v{m}, v{m}")
    e("v_lshlrev_b32 v4, 16, v4")
    e(f"v_sub_f32 v5, v{m}, v4")
    e("v_cvt_pk_bf16_f32 v4, v4, v5")
    e(f"v_cmp_gt_u32 vcc, 32, v{V_LANE}")
    e("v_mov_b32 v5, 0")
    e(f"v_cndmask_b32 v{q2+1}, v5, v4, vcc")


def qk(e, s, q1, q2):
    e(f"v_mfma_f32_32x32x16_bf16 {vr(s,16)}, {vr(K1,4)}, {vr(q1,4)}, 0")
    e(f"v_mfma_f32_32x32x8_bf16 {vr(s,16)}, {vr(K2,2)}, {vr(q2,2)}, {vr(s,16)}")


def cross_half_max(e, v):
    e(f"v_mov_b32 v4, v{v}")
    e(f"v_permlane32_swap_b32 v4, v{v}")
    e(f"v_max_f32 v{v}, v{v}, v4")


def half(e, s_exp, p_out, s_new, q1, q2, o_acc, p_in, pre, mid_k, pre_pv, mid_v, extra=None):
    ex = lambda r: e(f"v_exp_f32 v{s_exp+r}, v{s_exp+r}")
    cv = lambda k: e(f"v_cvt_pk_bf16_f32 v{p_out+k}, v{s_exp+2*k}, v{s_exp+2*k+1}")

    def grp(g):
        for r in range(4 * g, 4 * g + 4):
            ex(r)
        cv(2 * g); cv(2 * g + 1)
        if extra:
            extra(g)
    if pre:
        e(pre)
    e(f"v_mfma_f32_32x32x16_bf16 {vr(s_new,16)}, {vr(K1,4)}, {vr(q1,4)}, 0")
    grp(0)
    e(f"v_mfma_f32_32x32x8_bf16 {vr(s_new,16)}, {vr(K2,2)}, {vr(q2,2)}, {vr(s_new,16)}")
    for x in mid_k:
        e(x)
    grp(1)
    if pre_pv:
        e(pre_pv)
    e(f"v_mfma_f32_32x32x16_bf16 {vr(o_acc,16)}, {vr(V0,4)}, {vr(p_in,4)}, {vr(o_acc,16)}")
    grp(2)
    e(f"v_mfma_f32_32x32x16_bf16 {vr(o_acc,16)}, {vr(V1,4)}, {vr(p_in+4,4)}, {vr(o_acc,16)}")
    for x in mid_v:
        e(x)
    grp(3)


VL16, VOA, VOB = 201, 202, 203
VXO, VXP = 252, 253
WO2R = 208
S_DM0, S_DKV, S_TWB, S_OST, S_OST2 = 84, 85, 86, 87, 88


def key_tile(e, t, xa=None, xb=None):
    nk = (t + 1) * 1024 if t < 3 else CHUNK
    nk2 = (t + 1) * 128 if t < 3 else CHUNK
    vl = [f"ds_read_b128 {vr(V0,4)}, v{AV} offset:{t*VT}", f"ds_read_b128 {vr(V1,4)}, v{AV} offset:{t*VT+608}"]
    if getattr(e, "maskv", False):
        vl = ["s_mov_b64 exec, s[82:83]"] + vl + ["s_mov_b64 exec, -1"]
    kl = [f"ds_read_b128 {vr(K1,4)}, v{AK1} offset:{nk}", f"ds_read_b32 v{K2}, v{AK2} offset:{nk2}"]
    if getattr(e, "maskk", False):
        kl = [kl[0], "s_mov_b32 exec_hi, 0", kl[1], "s_mov_b32 exec_hi, -1"]
    half(e, SA, PA_, SB, QB1, QB2, OB, PB_, None, kl, None, vl, xa)
    half(e, SB, PB_, SA, QA1, QA2, OA, PA_, "s_waitcnt lgkmcnt(2)", [], "s_waitcnt lgkmcnt(0)", [], xb)


def next_chunk(e):
    e(f"v_add_u32 v{AK1}, {CHUNK}, v{AK1}")
    e(f"v_add_u32 v{AK2}, {CHUNK}, v{AK2}")
    e(f"v_add_u32 v{AV}, {CHUNK}, v{AV}")


def attention_setup(e):
    e(f"v_lshlrev_b32 v{VL16}, 4, v{V_LANE}")
    e("s_mov_b32 s82, 0x7ffff")
    e("s_mov_b32 s83, 0x7ffff")
    e(f"s_lshl_b32 s{S_DM0}, s{S_WAVE}, 10")
    e(f"s_add_u32 s{S_DKV}, s{S_DM0}, s{S_KV}")
    e(f"s_lshr_b32 s51, s{S_WAVE}, 2")
    e("s_lshl_b32 s52, s51, 12")
    e(f"v_add_u32 v{AK1}, s52, v{VL16}")
    e("s_lshl_b32 s52, s51, 9")
    e(f"s_add_u32 s52, s52, {K2_OFF}")
    e(f"v_and_b32 v5, 31, v{V_LANE}")
    e(f"v_lshlrev_b32 v{AK2}, 2, v5")
    e(f"v_add_u32 v{AK2}, s52, v{AK2}")
    e(f"s_mul_i32 s52, s51, {4*VT}")
    e(f"s_add_u32 s52, s52, {V_OFF}")
    e("v_subrev_u32 v6, 16, v5")
    e("v_cmp_gt_u32 vcc, 19, v5")
    e("v_cndmask_b32 v6, v6, v5, vcc")
    e(f"v_lshrrev_b32 v7, 5, v{V_LANE}")
    e("v_mul_u32_u24 v7, 304, v7")
    e("v_lshl_add_u32 v7, v6, 4, v7")
    e(f"v_add_u32 v{AV}, s52, v7")
    e(f"v_mov_b32 v{K2+1}, 0x3f803f80")
    if getattr(e, "maskk", False):
        e("s_mov_b32 exec_lo, 0")
        e(f"v_mov_b32 v{K2}, 0")
        e(f"v_mov_b32 v{K2+1}, 0")
        e("s_mov_b32 exec_lo, -1")
    e(f"v_mov_b32 v{QA2+1}, 0")
    e(f"v_mov_b32 v{QB2+1}, 0")
    for r in range(16):
        e(f"v_mov_b32 v{OA+r}, 0")
        e(f"v_mov_b32 v{OB+r}, 0")
    for r in range(8):
        e(f"v_mov_b32 v{PB_+r}, 0")
        e(f"v_mov_b32 v{V0+r}, 0")
    def region(dst, s_w):
        lo, dn = e.L("xr_lo"), e.L("xr_dn")
        e(f"s_cmp_lt_u32 s{s_w}, 4")
        e(f"s_cbranch_scc1 {lo}")
        e(f"s_and_b32 s52, s{s_w}, 1")
        e(f"s_bfe_u32 s53, s{s_w}, 0x10001")
        e("s_mul_i32 s54, s53, 768")
        e("s_add_u32 s54, s54, 4096")
        e("s_mul_i32 s52, s52, s54")
        e("s_mul_i32 s53, s53, 9216")
        e("s_add_u32 s52, s52, s53")
        e(f"s_branch {dn}")
        e.label(lo)
        e(f"s_mul_i32 s52, s{s_w}, 2560")
        e(f"s_add_u32 s52, s52, {L_MISC}")
        e.label(dn)
        e(f"v_add_u32 v{dst}, s52, v{VL16}")
    region(VXO, S_WAVE)
    e(f"s_xor_b32 s50, s{S_WAVE}, 4")
    region(VXP, 50)
    e(f"s_and_b32 s52, s{S_WAVE}, 3")
    e(f"s_mul_i32 s53, s{S_QB}, 36864")
    e(f"s_add_u32 s53, s53, s{S_OB}")
    e(f"v_bfe_u32 v4, v{V_LANE}, 4, 1")
    e("v_mul_u32_u24 v4, 18432, v4")
    e(f"v_lshl_add_u32 v{VOA}, v{V_R16}, 4, v4")
    e(f"v_lshrrev_b32 v5, 5, v{V_LANE}")
    e(f"v_lshl_add_u32 v{VOB}, v5, 8, v{VOA}")
    e(f"s_lshl_b32 s54, s{S_HG}, 2")
    e("s_add_u32 s54, s54, s52")
    e("s_lshl_b32 s54, s54, 10")
    e("s_lshl_b32 s55, s51, 9")
    e("s_add_u32 s54, s54, s55")
    e(f"s_add_u32 s{S_OST}, s54, s53")
    e(f"s_lshl_b32 s54, s{S_HG}, 3")
    e("s_lshl_b32 s55, s52, 1")
    e("s_add_u32 s54, s54, s55")
    e("s_add_u32 s54, s54, s51")
    e("s_lshr_b32 s55, s54, 4")
    e("s_add_u32 s55, s55, 16")
    e("s_lshl_b32 s55, s55, 10")
    e("s_bfe_u32 s56, s54, 0x20002")
    e("s_lshl_b32 s56, s56, 8")
    e("s_add_u32 s55, s55, s56")
    e("s_and_b32 s56, s54, 3")
    e("s_lshl_b32 s56, s56, 2")
    e("s_add_u32 s55, s55, s56")
    e(f"s_add_u32 s{S_OST2}, s55, s53")
    l1, ld = e.L("as_l1"), e.L("as_ld")
    e(f"s_mul_i32 s{S_TWB}, s{S_HG}, 9")
    e(f"s_add_u32 s{S_TWB}, s{S_TWB}, s{S_WAVE}")
    e(f"s_mul_i32 s{S_TWB}, s{S_TWB}, 18432")
    e(f"s_cmp_lg_u32 s{S_LAYER}, 0")
    e(f"s_cbranch_scc1 {l1}")
    e.make_srd(SRD_B, S_WS, WS_END)
    e(f"s_add_u32 s89, s{S_TWB}, {WOF}")
    e(f"s_branch {ld}")
    e.label(l1)
    e.make_srd(SRD_B, S_FI, 36 * 18432)
    e(f"s_mov_b32 s89, s{S_TWB}")
    e.label(ld)


def kv_round(e, m):
    skip = None
    if m == 18:
        skip = e.L("kvd")
        e(f"s_cmp_ge_u32 s{S_WAVE}, 4")
        e(f"s_cbranch_scc1 {skip}")
    e(f"s_add_u32 m0, s{S_DM0}, {m * 8192}")
    e(f"s_add_u32 s50, s{S_DKV}, {m * 8192}")
    e(f"buffer_load_dwordx4 v{VL16}, {srd(SRD_WS)}, s50 offen sc1 lds")
    if skip:
        e.label(skip)


def attention(e):
    mainl = e.L("attn_main")
    for m in range(3):
        kv_round(e, m)
    e(f"v_and_b32 v5, 31, v{V_LANE}")
    e("s_waitcnt vmcnt(0)")
    e("s_barrier")
    e.stamp("kv loaded")
    fbmax, haveM = e.L("fbmax"), e.L("haveM")
    e(f"s_cmp_lg_u32 s{S_FB}, 0")
    e(f"s_cbranch_scc1 {fbmax}")
    e(f"v_lshlrev_b32 v8, 4, v{V_LANE}")
    e("v_lshlrev_b32 v9, 2, v5")
    e(f"ds_read_b128 {vr(K1,4)}, v8")
    e(f"ds_read_b32 v{K2}, v9 offset:{K2_OFF}")
    e("s_waitcnt lgkmcnt(0)")
    qk(e, SA, QA1, QA2)
    qk(e, SB, QB1, QB2)
    max16(e, SA, 10)
    max16(e, SB, 11)
    cross_half_max(e, 10)
    cross_half_max(e, 11)
    e(f"s_branch {haveM}")
    e.label(fbmax)
    for m in range(3, 19):
        kv_round(e, m)
    e("s_waitcnt vmcnt(0)")
    e("s_barrier")
    fl = e.L("fbloop")
    e("v_mov_b32 v10, 0xff800000")
    e("v_mov_b32 v11, 0xff800000")
    e(f"v_mov_b32 v8, v{AK1}")
    e(f"v_mov_b32 v9, v{AK2}")
    e("s_mov_b32 s52, 0")
    e.label(fl)
    for t in range(4):
        e(f"ds_read_b128 {vr(K1,4)}, v8 offset:{t*1024}")
        e(f"ds_read_b32 v{K2}, v9 offset:{t*128}")
        e("s_waitcnt lgkmcnt(0)")
        qk(e, SA, QA1, QA2)
        qk(e, SB, QB1, QB2)
        max16(e, SA, 12)
        max16(e, SB, 13)
        e("v_max_f32 v10, v10, v12")
        e("v_max_f32 v11, v11, v13")
    e(f"v_add_u32 v8, {CHUNK}, v8")
    e(f"v_add_u32 v9, {CHUNK}, v9")
    e("s_add_u32 s52, s52, 1")
    e("s_cmp_lt_u32 s52, 8")
    e(f"s_cbranch_scc1 {fl}")
    cross_half_max(e, 10)
    cross_half_max(e, 11)
    e(f"s_lshl_b32 s52, s{S_WAVE}, 9")
    e(f"s_add_u32 s52, s52, {L_QL}")
    e(f"v_lshlrev_b32 v8, 3, v{V_LANE}")
    e("v_add_u32 v9, s52, v8")
    e("ds_write_b64 v9, v[10:11]")
    e("s_waitcnt lgkmcnt(0)")
    e("s_barrier")
    e(f"s_xor_b32 s52, s{S_WAVE}, 4")
    e("s_lshl_b32 s52, s52, 9")
    e(f"s_add_u32 s52, s52, {L_QL}")
    e("v_add_u32 v9, s52, v8")
    e("ds_read_b64 v[12:13], v9")
    e("s_waitcnt lgkmcnt(0)")
    e("v_max_f32 v10, v10, v12")
    e("v_max_f32 v11, v11, v13")
    e.label(haveM)
    set_m(e, 10, QA2)
    set_m(e, 11, QB2)
    e(f"ds_read_b128 {vr(K1,4)}, v{AK1}")
    e(f"ds_read_b32 v{K2}, v{AK2}")
    e("s_waitcnt lgkmcnt(0)")
    qk(e, SA, QA1, QA2)
    e.cyc_begin()
    e("s_nop 12")
    key_tile(e, 0, lambda g: kv_round(e, 3 + g), lambda g: kv_round(e, 7 + g))
    key_tile(e, 1, lambda g: kv_round(e, 11 + g), lambda g: kv_round(e, 15 + g))

    def wo2(ks):
        if ks >= 11:
            return
        sk = e.L("wo2h")
        e(f"s_cmp_eq_u32 s{S_LAYER}, 0")
        e(f"s_cbranch_scc1 {sk}")
        e(f"s_add_u32 s50, s{S_TWB}, {WO2 + ks * 1024}")
        e(f"buffer_load_dwordx4 {vr(WO2R + 4*ks, 4)}, v{VL16}, {srd(SRD_WS)}, s50 offen sc1")
        e.label(sk)
    key_tile(e, 2, lambda g: (wo2(g), wo2(8 + g)), lambda g: wo2(4 + g))
    w1, wd = e.L("kvw1"), e.L("kvwd")
    e(f"s_cmp_lg_u32 s{S_LAYER}, 0")
    e(f"s_cbranch_scc1 {w1}")
    e("s_waitcnt vmcnt(0)")
    e(f"s_branch {wd}")
    e.label(w1)
    e("s_waitcnt vmcnt(11)")
    e.label(wd)
    e("s_barrier")

    def twl(ks):
        if ks < 18:
            e(f"s_add_u32 s50, s89, {ks * 1024}")
            e(f"buffer_load_dwordx4 {vr(G_A + 4*ks, 4)}, v{VL16}, {srd(SRD_B)}, s50 offen sc1")
    key_tile(e, 3, lambda g: (twl(g), twl(8 + g), twl(16 + g) if g < 2 else None), lambda g: twl(4 + g) or twl(12 + g))
    next_chunk(e)
    e("s_mov_b32 s52, 1")
    e(".p2align 6")
    e.label(mainl)
    for t in range(4):
        key_tile(e, t)
    next_chunk(e)
    e("s_add_u32 s52, s52, 1")
    e("s_cmp_lt_u32 s52, 8")
    e(f"s_cbranch_scc1 {mainl}")
    e(f"v_mfma_f32_32x32x16_bf16 {vr(OB,16)}, {vr(V0,4)}, {vr(PB_,4)}, {vr(OB,16)}")
    e(f"v_mfma_f32_32x32x16_bf16 {vr(OB,16)}, {vr(V1,4)}, {vr(PB_+4,4)}, {vr(OB,16)}")
    e.cyc_end(0)
    e.stamp("attn loop")
    nofl = e.L("nofl")
    e("s_mov_b32 s53, 0x5d000000")
    e(f"v_cmp_nlt_f32 vcc, v{OA+10}, s53")
    e(f"v_cmp_nlt_f32 s[54:55], v{OB+10}, s53")
    e("s_or_b64 vcc, vcc, s[54:55]")
    e("s_cmp_eq_u32 vcc_lo, 0")
    e(f"s_cbranch_scc1 {nofl}")
    e(f"v_mov_b32 v4, {L_FLAG}")
    e("v_mov_b32 v5, 1")
    e("ds_write_b32 v4, v5")
    e.label(nofl)
    g1, gd = e.L("give1"), e.L("gived")
    e(f"s_cmp_ge_u32 s{S_WAVE}, 4")
    e(f"s_cbranch_scc1 {g1}")
    for q in range(2):
        e(f"ds_write_b128 v{VXO}, {vr(OB+4*q,4)} offset:{q*1024}")
    e("s_mov_b32 exec_hi, 0")
    e(f"ds_write_b128 v{VXO}, {vr(OB+8,4)} offset:2048")
    e("s_mov_b64 exec, -1")
    e(f"s_branch {gd}")
    e.label(g1)
    for q in range(2):
        e(f"ds_write_b128 v{VXO}, {vr(OA+4*q,4)} offset:{q*1024}")
    e("s_mov_b32 exec_hi, 0")
    e(f"ds_write_b128 v{VXO}, {vr(OA+8,4)} offset:2048")
    e("s_mov_b64 exec, -1")
    for r in range(12):
        e(f"v_mov_b32 v{OA+r}, v{OB+r}")
    e.label(gd)
    e(f"v_mov_b32 v7, {L_FLAG}")
    e("s_waitcnt lgkmcnt(0)")
    e("s_barrier")
    e("ds_read_b32 v8, v7")
    for q in range(2):
        e(f"ds_read_b128 {vr(16+4*q,4)}, v{VXP} offset:{q*1024}")
    e(f"ds_read_b128 {vr(24,4)}, v{VXP} offset:2048")
    e("s_waitcnt lgkmcnt(0)")
    e("v_readfirstlane_b32 s50, v8")
    fbgo = e.L("fbgo")
    e(f"s_cmp_lg_u32 s{S_FB}, 0")
    e(f"s_cbranch_scc1 {fbgo}")
    e("s_cmp_eq_u32 s50, 0")
    e(f"s_cbranch_scc1 {fbgo}")
    e(f"s_mov_b32 s{S_FB}, 1")
    e("s_branch L_redo")
    e.label(fbgo)
    for r in range(11):
        e(f"v_add_f32 v{OA+r}, v{OA+r}, v{16+r}")
    e(f"v_mov_b32 v8, v{OA+10}")
    e(f"v_permlane32_swap_b32 v8, v{OA+10}")
    e("v_rcp_f32 v8, v8")
    for r in range(10):
        e(f"v_mul_f32 v{OA+r}, v{OA+r}, v8")
    for k in range(5):
        e(f"v_cvt_pk_bf16_f32 v{16+k}, v{OA+2*k}, v{OA+2*k+1}")
    e(f"buffer_store_dwordx4 v[16:19], v{VOB}, {srd(SRD_WS)}, s{S_OST} offen sc1")
    e("s_mov_b32 exec_hi, 0")
    e(f"buffer_store_dword v20, v{VOA}, {srd(SRD_WS)}, s{S_OST2} offen sc1")
    e("s_mov_b64 exec, -1")


def tail_weights(e, extra, vtmp):
    l1, done = e.L("tw_l1"), e.L("tw_done")
    dst = G_AX if extra else G_A
    if extra:
        e(f"s_cmp_ge_u32 s{S_WAVE}, 2")
        e(f"s_cbranch_scc1 {done}")
    e(f"v_lshlrev_b32 v{vtmp}, 4, v{V_LANE}")
    e(f"s_mul_i32 s59, s{S_HG}, 9")
    if extra:
        e("s_add_u32 s57, s59, 8")
    else:
        e(f"s_add_u32 s57, s59, s{S_WAVE}")
    e("s_mul_i32 s57, s57, 18432")
    e(f"s_cmp_lg_u32 s{S_LAYER}, 0")
    e(f"s_cbranch_scc1 {l1}")
    e(f"s_add_u32 s57, s57, {WOF}")
    e.load_a_frags(SRD_WS, 57, dst, flags="sc1", vlane16=vtmp)
    e(f"s_branch {done}")
    e.label(l1)
    e.make_srd(SRD_T, S_FI, 36 * 18432)
    e.load_a_frags(SRD_T, 57, dst, vlane16=vtmp)
    e.label(done)


def frag_bases(e):
    e(f"s_and_b32 s50, s{S_WAVE}, 1")
    e("s_mul_i32 s50, s50, 18432")
    e(f"v_lshlrev_b32 v56, 4, v{V_LANE}")
    e("v_add_u32 v57, 18432, v56")
    e("v_subrev_u32 v57, s50, v57")
    e("v_add_u32 v56, s50, v56")


def p4(e):
    e(f"v_lshlrev_b32 v60, 4, v{V_LANE}")
    tile_dma(e, S_OB, 0, 60)
    for t in range(3):
        a = G_ACC + 4 * t
        e(f"v_lshlrev_b32 v{a}, 16, v{RES+2*t}")
        e(f"v_and_b32 v{a+1}, 0xffff0000, v{RES+2*t}")
        e(f"v_lshlrev_b32 v{a+2}, 16, v{RES+2*t+1}")
        e(f"v_and_b32 v{a+3}, 0xffff0000, v{RES+2*t+1}")
    frag_bases(e)
    e("s_waitcnt vmcnt(0)")
    e("s_barrier")
    e.stamp("p4 loaded")
    e.g144_both("frag", 56, 57, zero_init=False)
    e.stamp("p4 gemm")


L_X3 = 40960


def p8_pre(e):
    e(f"v_lshlrev_b32 v60, 4, v{V_LANE}")
    tile_dma(e, S_XIN, L_X3, 60)
    lo, done = e.L("p8p_lo"), e.L("p8p_done")
    e(f"s_cmp_lt_u32 s{S_WAVE}, 2")
    e(f"s_cbranch_scc1 {lo}")
    for ks in range(11, 18):
        e(f"s_add_u32 s50, s{S_TWB}, {WO2 + ks * 1024}")
        e(f"buffer_load_dwordx4 {vr(136 + 4*(ks-11), 4)}, v60, {srd(SRD_WS)}, s50 offen sc1")
    e(f"s_branch {done}")
    e.label(lo)
    e(f"s_mul_i32 s57, s{S_HG}, 9")
    e("s_add_u32 s57, s57, 8")
    e("s_mul_i32 s57, s57, 18432")
    e.make_srd(SRD_T, S_FI, 36 * 18432)
    e.load_a_frags(SRD_T, 57, G_AX, vlane16=60)
    e.label(done)


def p8(e):
    e(f"v_lshlrev_b32 v60, 4, v{V_LANE}")
    tile_dma(e, S_OB, 0, 60)
    xtile_bases(e, 58, 59, L_X3)
    e(f"s_mul_i32 s58, s{S_HG}, 9")
    e("s_add_u32 s58, s58, 8")
    e("s_mul_i32 s58, s58, 18432")
    e(f"s_add_u32 s58, s58, {WO2}")
    e(f"s_add_u32 s59, s{S_TWB}, {WO2}")
    noex, fin = e.L("p8_noex"), e.L("p8_fin")

    def round_acc(n):
        for t in range(n):
            a = G_ACC + 4 * t
            e(f"v_cvt_pk_bf16_f32 v52, v{a}, v{a+1}")
            e(f"v_cvt_pk_bf16_f32 v53, v{a+2}, v{a+3}")
            e(f"v_lshlrev_b32 v{a}, 16, v52")
            e(f"v_and_b32 v{a+1}, 0xffff0000, v52")
            e(f"v_lshlrev_b32 v{a+2}, 16, v53")
            e(f"v_and_b32 v{a+3}, 0xffff0000, v53")

    def wo_stream(ks):
        e(f"s_add_u32 s50, s58, {ks*1024}")
        e(f"buffer_load_dwordx4 {vr(G_AX+4*ks,4)}, v60, {srd(SRD_WS)}, s50 offen sc1")
        if ks < 7:
            e(f"s_add_u32 s50, s59, {(11+ks)*1024}")
            e(f"buffer_load_dwordx4 {vr(G_A+4*ks,4)}, v60, {srd(SRD_WS)}, s50 offen sc1")
    e(f"s_cmp_ge_u32 s{S_WAVE}, 2")
    e(f"s_cbranch_scc1 {noex}")
    e("s_waitcnt vmcnt(4)")
    e("s_barrier")
    e.stamp("x3 loaded")
    e.g144("x", 58, 59, True, wo_stream)
    round_acc(3)
    frag_bases(e)
    e("s_waitcnt vmcnt(25)")
    e("s_barrier")
    e.g144("frag", 56, 57, True, zero_init=False, vm_fn=lambda ks, ex: 24 - 2*ks if ks <= 6 else 17 - ks,
           a_main=lambda ks: WO2R + 4*ks if ks < 11 else G_A + 4*(ks-11))
    e(f"s_branch {fin}")
    e.label(noex)
    e("s_waitcnt vmcnt(11)")
    e("s_barrier")
    e.stamp("x3 loaded")
    e.g144("x", 58, 59, False)
    round_acc(2)
    frag_bases(e)
    e("s_waitcnt vmcnt(0)")
    e("s_barrier")
    e.g144("frag", 56, 57, False, zero_init=False, a_main=lambda ks: WO2R + 4*ks if ks < 11 else 136 + 4*(ks-11))
    e.label(fin)
    e.stamp("p4 gemm")


def out_epilogue(e):
    accA, accB, accX = G_ACC, G_ACC + 4, G_ACC + 8
    if getattr(e, "perturb", None):
        sk = e.L("pert")
        e(f"s_or_b32 s50, s2, s{S_WAVE}")
        e("s_cmp_lg_u32 s50, 0")
        e(f"s_cbranch_scc1 {sk}")
        e("s_mov_b64 exec, 1")
        e(f"v_add_f32 v{accA}, {e.perturb}, v{accA}")
        e("s_mov_b64 exec, -1")
        e.label(sk)
    e.make_srd(SRD_A, S_OUT, XBYTES)
    e(f"s_and_b32 s50, s{S_WAVE}, 1")
    e("s_lshl_b32 s51, s50, 4")
    e(f"s_lshl_b32 s52, s{S_QB}, 5")
    e("s_add_u32 s51, s51, s52")
    e(f"v_add_u32 v4, s51, v{V_R16}")
    e("v_xor_b32 v5, 16, v4")
    e("v_mul_u32_u24 v4, 1152, v4")
    e("v_mul_u32_u24 v5, 1152, v5")
    e(f"v_lshl_add_u32 v4, v{V_GQ}, 3, v4")
    e(f"v_lshl_add_u32 v5, v{V_GQ}, 3, v5")
    e(f"s_mul_i32 s53, s{S_HG}, 288")
    e(f"s_lshl_b32 s54, s{S_WAVE}, 5")
    e("s_add_u32 s54, s54, s53")
    e("s_add_u32 s55, s53, 256")
    e(f"v_cvt_pk_bf16_f32 v10, v{accA}, v{accA+1}")
    e(f"v_cvt_pk_bf16_f32 v11, v{accA+2}, v{accA+3}")
    e(f"buffer_store_dwordx2 v[10:11], v4, {srd(SRD_A)}, s54 offen")
    e(f"v_cvt_pk_bf16_f32 v12, v{accB}, v{accB+1}")
    e(f"v_cvt_pk_bf16_f32 v13, v{accB+2}, v{accB+3}")
    e(f"buffer_store_dwordx2 v[12:13], v5, {srd(SRD_A)}, s54 offen")
    nx = e.L("oe_nx")
    e(f"s_cmp_ge_u32 s{S_WAVE}, 2")
    e(f"s_cbranch_scc1 {nx}")
    e(f"v_cvt_pk_bf16_f32 v14, v{accX}, v{accX+1}")
    e(f"v_cvt_pk_bf16_f32 v15, v{accX+2}, v{accX+3}")
    e(f"buffer_store_dwordx2 v[14:15], v4, {srd(SRD_A)}, s55 offen")
    e.label(nx)
```

```python
from asmlib import Prog
from layout import *

S_AX, S_WR, S_WI = 4, 6, 8
S_WQ, S_WK, S_WV, S_WO = 12, 14, 16, 18
S_OUT, S_DBG, S_WS = 20, 22, 24
S_WAVE, S_QB = 26, 27
SRD_WS, SRD_A, SRD_B, SRD_T = 28, 32, 36, 40
S_HG, S_LAYER, S_GT, S_GRP = 44, 45, 46, 47
S_T = 48
S_FT, S_FI, S_TW = 66, 68, 70
S_X = 72

V_TID, V_LANE, V_R16, V_GQ = 0, 1, 2, 3

G_A = 64
G_AX = 136
G_B = 16
G_ACC = 40

SPIN_LIMIT = 60000


def srd(r):
    return f"s[{r}:{r+3}]"


def sp(r):
    return f"s[{r}:{r+1}]"


def vr(r, n=1):
    return f"v{r}" if n == 1 else f"v[{r}:{r+n-1}]"


class Gen(Prog):
    def __init__(self):
        super().__init__()
        self.uid = 0

    profile = False
    fsleep = 20
    f2sleep = 4
    gsleep = 8
    psleep = 4
    idle0 = 0
    idle1 = 0
    codepf = True
    maskv = True
    nstamp = 0

    def stamp(self, name=""):
        if self.dbgprof:
            return self.dbg_stamp(name)
        if not self.profile:
            return
        names = self.__dict__.setdefault("stamp_names", [])
        if name in names and name in ("p4 gemm", "bar3", "po staged", "x3 loaded"):
            k = names.index(name)
        else:
            k = self.nstamp
            self.nstamp += 1
            names.append(name)
        assert k < 30
        self("s_memrealtime s[96:97]")
        if name == "start":
            self("v_mov_b32 v255, -1")
            self("s_waitcnt lgkmcnt(0)")
            self("s_mov_b32 s96, s90")
        self(f"s_lshl_b32 s98, s{S_LAYER}, 5")
        self(f"s_add_u32 m0, s98, {k}")
        self("s_waitcnt lgkmcnt(0)")
        self("v_writelane_b32 v255, s96, m0")

    dbgprof = None

    def dbg_stamp(self, name):
        cnt = self.__dict__.setdefault("dbg_seen", {})
        cnt[name] = cnt.get(name, 0) + 1
        slots = [(i, l) for i, (n, occ, l) in enumerate(self.dbgprof) if n == name and occ == cnt[name]]
        if name == "start":
            slots = [(-1, 0)]
        for i, layer in slots:
            e = self
            sk = e.L("dst")
            e(f"s_or_b32 s92, s{S_WAVE}, s2")
            e("s_cmp_lg_u32 s92, 0")
            e(f"s_cbranch_scc1 {sk}")
            e(f"s_cmp_lg_u32 s{S_LAYER}, {layer}")
            e(f"s_cbranch_scc1 {sk}")
            e("s_memrealtime s[96:97]")
            e(f"s_mov_b32 s92, s{S_DBG}")
            e(f"s_mov_b32 s93, s{S_DBG+1}")
            e("s_mov_b32 s94, 256")
            e("s_mov_b32 s95, 0x20000")
            e("s_waitcnt lgkmcnt(0)")
            if i < 0:
                e("s_not_b32 s96, s96")
            e("v_mov_b32 v255, s96")
            e("v_mov_b32 v254, 0")
            e("s_mov_b64 exec, 1")
            e(f"buffer_store_dword v255, v254, s[92:95], 0 offen offset:{4*(i+2)}")
            e("s_mov_b64 exec, -1")
            e.label(sk)

    def cyc_begin(self):
        if self.profile:
            self("s_memtime s[92:93]")
            self("s_memrealtime s[94:95]")
            self("s_waitcnt lgkmcnt(0)")

    def cyc_end(self, slot):
        if not self.profile:
            return
        e = self
        e("s_memtime s[96:97]")
        e("s_memrealtime s[98:99]")
        e("s_waitcnt lgkmcnt(0)")
        e("s_sub_u32 s96, s96, s92")
        e("s_sub_u32 s98, s98, s94")
        e(f"s_lshl_b32 s97, s{S_LAYER}, 5")
        e("s_add_u32 m0, s97, 30")
        e("v_writelane_b32 v255, s96, m0")
        e("s_add_u32 m0, s97, 31")
        e("v_writelane_b32 v255, s98, m0")

    def dump_stamps(self):
        self.stamp("end")
        if self.profile:
            e = self
            e("s_lshl_b32 s96, s2, 3")
            e(f"s_add_u32 s96, s96, s{S_WAVE}")
            e("s_lshl_b32 s96, s96, 8")
            e(f"s_add_u32 s96, s96, {PROF}")
            e(f"v_lshlrev_b32 v4, 2, v{V_LANE}")
            e(f"buffer_store_dword v255, v4, {srd(SRD_WS)}, s96 offen")

    def L(self, base):
        self.uid += 1
        return f"L_{base}_{self.uid}"

    def sel(self, dst, a, b):
        self(f"s_mov_b32 s{dst}, {b}")
        self(f"s_cselect_b32 s{dst}, {a}, s{dst}")

    def make_srd(self, r, base, size):
        self(f"s_mov_b32 s{r}, s{base}")
        self(f"s_mov_b32 s{r+1}, s{base+1}")
        self(f"s_mov_b32 s{r+2}, {size}")
        self(f"s_mov_b32 s{r+3}, 0x20000")

    def prologue(self, early=None):
        e = self
        e.label("L_code_begin")
        e("s_cmp_ge_u32 s2, 256")
        e("s_cbranch_scc1 L_end")
        if self.profile:
            e("s_memrealtime s[90:91]")
        e("s_getpc_b64 s[36:37]")
        e("s_and_b32 s36, s36, 0xffffff00")
        e("s_mov_b32 s38, L_code_end-L_code_begin")
        e("s_mov_b32 s39, 0x20000")
        e("s_lshr_b32 s3, s2, 3")
        e("s_lshl_b32 s3, s3, 11")
        e("v_lshlrev_b32 v4, 2, v0")
        e("v_add_u32 v4, s3, v4")
        if self.codepf: e("buffer_load_dword v253, v4, s[36:39], 0 offen")
        e("s_load_dwordx4 s[4:7], s[0:1], 0")
        e("s_load_dwordx2 s[8:9], s[0:1], 16")
        e("s_load_dwordx8 s[12:19], s[0:1], 32")
        e("s_load_dwordx4 s[20:23], s[0:1], 64")
        e("s_load_dwordx2 s[24:25], s[0:1], 80")
        e(f"v_and_b32 v{V_LANE}, 63, v0")
        e("v_lshrrev_b32 v4, 6, v0")
        e(f"v_and_b32 v{V_R16}, 15, v0")
        e(f"v_lshrrev_b32 v{V_GQ}, 4, v{V_LANE}")
        e(f"v_readfirstlane_b32 s{S_WAVE}, v4")
        e("s_and_b32 s48, s2, 7")
        e("s_lshr_b32 s49, s2, 3")
        e("s_lshl_b32 s48, s48, 3")
        e("s_lshr_b32 s50, s49, 2")
        e(f"s_add_u32 s{S_QB}, s48, s50")
        e(f"s_and_b32 s{S_HG}, s49, 3")
        e(f"s_mov_b32 s{S_LAYER}, 0")
        for reg, sym in ((S_FT, "TAB_FT"), (S_FI, "TAB_FI"), (S_TW, "TAB_TW")):
            e(f"s_getpc_b64 {sp(reg)}")
            e(f"s_add_u32 s{reg}, s{reg}, {sym}@rel32@lo+4")
            e(f"s_addc_u32 s{reg+1}, s{reg+1}, {sym}@rel32@hi+12")
        if early:
            early()
        e("s_waitcnt lgkmcnt(0)")
        self.make_srd(SRD_WS, S_WS, WS_END)
        if self.pretouch:
            self.touch_pages()

    pretouch = 0

    def touch_pages(self):
        e = self
        sk = e.L("notouch")
        e(f"s_cmp_lg_u32 s{S_WAVE}, 0")
        e(f"s_cbranch_scc1 {sk}")
        e("s_cmp_ge_u32 s2, 16")
        e(f"s_cbranch_scc1 {sk}")
        st = self.pretouch
        for k in range(1, (WS_END + st - 1) // st):
            e(f"s_mov_b32 s48, {min(k * st, WS_END - 64)}")
            e(f"s_load_dword s49, {sp(S_WS)}, s48")
        for k in range(0, XBYTES, st):
            e(f"s_mov_b32 s48, {k}")
            e(f"s_load_dword s49, {sp(S_OUT)}, s48")
        e.label(sk)

    def bar_offset(self, k, per_layer, group, dst):
        e = self
        if group:
            e(f"s_lshl_b32 s{dst}, s{S_LAYER}, 14")
            e(f"s_lshl_b32 s49, s{S_QB}, 8")
            e(f"s_add_u32 s{dst}, s{dst}, s49")
            e(f"s_add_u32 s{dst}, s{dst}, {CNT + CNT_GROUP}")
        elif per_layer:
            e(f"s_mul_i32 s{dst}, s{S_LAYER}, {3*BAR_BYTES}")
            e(f"s_add_u32 s{dst}, s{dst}, {CNT + k*BAR_BYTES}")
        else:
            e(f"s_mov_b32 s{dst}, {CNT + k*BAR_BYTES}")

    def signal(self, k=0, per_layer=False, group=False):
        e = self
        self.bar_offset(k, per_layer, group, 48)
        if not group:
            e(f"s_and_b32 s49, s2, {NSHARD-1}")
            e("s_lshl_b32 s49, s49, 8")
            e("s_add_u32 s48, s48, s49")
        e("v_mov_b32 v4, s48")
        e("v_mov_b32 v5, 1")
        e("s_mov_b64 exec, 1")
        e(f"buffer_atomic_add v5, v4, {srd(SRD_WS)}, 0 offen sc1")
        e("s_mov_b64 exec, -1")

    def arrive(self, k=0, per_layer=False, group=False, go_check=False):
        e = self
        e("s_waitcnt vmcnt(0) lgkmcnt(0)")
        e("s_barrier")
        e.stamp("drained" if not group else "drained g")
        skip = e.L("arr")
        e(f"s_cmp_lg_u32 s{S_WAVE}, 0")
        e(f"s_cbranch_scc1 {skip}")
        if go_check:
            lp, ok = e.L("go"), e.L("gook")
            e("v_readfirstlane_b32 s48, v252")
            e("s_cmp_lg_u32 s48, 0")
            e(f"s_cbranch_scc1 {ok}")
            self.make_srd(SRD_A, S_DBG, 256)
            e("v_mov_b32 v4, 0")
            e("s_mov_b32 s48, 0")
            e.label(lp)
            e(f"buffer_load_dword v5, v4, {srd(SRD_A)}, 0 offen sc1")
            e("s_waitcnt vmcnt(0)")
            e("v_cmp_eq_u32 vcc, 0, v5")
            e("s_add_u32 s48, s48, 1")
            e(f"s_cmp_gt_u32 s48, {SPIN_LIMIT}")
            e(f"s_cbranch_scc1 {ok}")
            e(f"s_cbranch_vccz {ok}")
            e("s_sleep 1")
            e(f"s_branch {lp}")
            e.label(ok)
        self.signal(k, per_layer, group)
        e.label(skip)

    def signal_word(self, off):
        e = self
        e(f"v_mov_b32 v4, {off}")
        e("v_mov_b32 v5, 1")
        e("s_mov_b64 exec, 1")
        e(f"buffer_atomic_add v5, v4, {srd(SRD_WS)}, 0 offen sc1")
        e("s_mov_b64 exec, -1")

    def wait(self, k=0, per_layer=False, group=False, target=None, word=None, first_sleep=10, poller=7):
        e = self
        done, lp = e.L("wdone"), e.L("poll")
        e(f"s_cmp_lg_u32 s{S_WAVE}, {poller}")
        e(f"s_cbranch_scc1 {done}")
        if word is not None:
            e(f"v_mov_b32 v4, {word}")
        else:
            self.bar_offset(k, per_layer, group, 48)
            if group:
                e("v_mov_b32 v4, s48")
            else:
                e(f"v_and_b32 v4, {NSHARD-1}, v{V_LANE}")
                e("v_lshlrev_b32 v4, 8, v4")
                e("v_add_u32 v4, s48, v4")
        if target is None:
            target = 4 if group else 256 // NSHARD
        e("s_mov_b32 s48, 0")
        e("s_setprio 3")
        if first_sleep == 10:
            first_sleep = self.fsleep
        if first_sleep:
            e(f"s_sleep {first_sleep}")
        e.label(lp)
        e(f"buffer_load_dword v5, v4, {srd(SRD_WS)}, 0 offen sc1")
        e("s_waitcnt vmcnt(0)")
        e(f"v_cmp_gt_u32 vcc, {target}, v5")
        e("s_add_u32 s48, s48, 1")
        e(f"s_cmp_gt_u32 s48, {SPIN_LIMIT}")
        e(f"s_cbranch_scc1 {done}")
        e(f"s_cbranch_vccz {done}")
        e(f"s_sleep {self.psleep}")
        e(f"s_branch {lp}")
        e.label(done)
        e("s_setprio 0")
        e("s_barrier")

    def load_a_frags(self, srdreg, s_tile_base, dst, ksteps=range(18), flags="", vlane16=None):
        e = self
        cur = None
        for ks in ksteps:
            hi = ks // 4
            if hi != cur:
                e(f"s_add_u32 s49, s{s_tile_base}, {hi * 4096}")
                cur = hi
            off = (ks % 4) * 1024
            o = f" offset:{off}" if off else ""
            e(f"buffer_load_dwordx4 {vr(dst + 4*ks, 4)}, v{vlane16}, {srd(srdreg)}, s49 offen{o} {flags}".rstrip())

    def g144(self, bmode, vbA, vbB, extra, after_step=None, zero_init=True, vm_fn=None, a_main=None):
        e = self
        accA, accB, accX = G_ACC, G_ACC + 4, G_ACC + 8

        def rd(ks):
            b = G_B + 8 * (ks % 3)
            if bmode == "row":
                e(f"ds_read_b128 {vr(b,4)}, v{vbA[ks & 1]} offset:{(ks >> 1)*1024}")
                e(f"ds_read_b128 {vr(b+4,4)}, v{vbB[ks & 1]} offset:{(ks >> 1)*1024}")
                return 2
            if bmode == "frag":
                e(f"ds_read_b128 {vr(b,4)}, v{vbA} offset:{ks*1024}")
                e(f"ds_read_b128 {vr(b+4,4)}, v{vbB} offset:{ks*1024}")
                return 2
            e(f"ds_read_b64 {vr(b,2)}, v{vbA} offset:{ks*2048}")
            e(f"ds_read_b64 {vr(b+2,2)}, v{vbA} offset:{ks*2048+256}")
            e(f"ds_read_b64 {vr(b+4,2)}, v{vbB} offset:{ks*2048}")
            e(f"ds_read_b64 {vr(b+6,2)}, v{vbB} offset:{ks*2048+256}")
            return 4
        per = 4 if bmode == "x" else 2
        rd(0)
        rd(1)
        for ks in range(18):
            if ks + 2 < 18:
                rd(ks + 2)
            left = min(2, 17 - ks) * per
            if vm_fn is not None:
                e(f"s_waitcnt vmcnt({vm_fn(ks, extra)}) lgkmcnt({left})")
            else:
                e(f"s_waitcnt lgkmcnt({left})")
            b = G_B + 8 * (ks % 3)
            a = a_main(ks) if a_main else G_A + 4 * ks
            cA = "0" if (ks == 0 and zero_init) else vr(accA, 4)
            cB = "0" if (ks == 0 and zero_init) else vr(accB, 4)
            cX = "0" if (ks == 0 and zero_init) else vr(accX, 4)
            e(f"v_mfma_f32_16x16x32_bf16 {vr(accA,4)}, {vr(a,4)}, {vr(b,4)}, {cA}")
            e(f"v_mfma_f32_16x16x32_bf16 {vr(accB,4)}, {vr(a,4)}, {vr(b+4,4)}, {cB}")
            if extra:
                e(f"v_mfma_f32_16x16x32_bf16 {vr(accX,4)}, {vr(G_AX+4*ks,4)}, {vr(b,4)}, {cX}")
            if after_step:
                after_step(ks)

    def g144_both(self, bmode, vbA, vbB, after_step=None, zero_init=True, vm_fn=None):
        e = self
        noex, done = e.L("g_noex"), e.L("g_done")
        e(f"s_cmp_ge_u32 s{S_WAVE}, 2")
        e(f"s_cbranch_scc1 {noex}")
        self.g144(bmode, vbA, vbB, True, after_step, zero_init, vm_fn)
        e(f"s_branch {done}")
        e.label(noex)
        self.g144(bmode, vbA, vbB, False, after_step, zero_init, vm_fn)
        e.label(done)

    def sum_over_gq(self, v, t):
        e = self
        e(f"v_mov_b32 v{t}, v{v}")
        e(f"v_permlane16_swap_b32 v{t}, v{v}")
        e(f"v_add_f32 v{v}, v{v}, v{t}")
        e(f"v_mov_b32 v{t}, v{v}")
        e(f"v_permlane32_swap_b32 v{t}, v{v}")
        e(f"v_add_f32 v{v}, v{v}, v{t}")

    def bf16_round(self, v, t):
        e = self
        e(f"v_cvt_pk_bf16_f32 v{t}, v{v}, v{v}")
        e(f"v_lshlrev_b32 v{v}, 16, v{t}")

    def inv_sigma(self, v, t, scale=None):
        e = self
        e(f"v_mul_f32 v{v}, 0x3ae38e39, v{v}")
        self.bf16_round(v, t)
        e(f"v_add_f32 v{v}, 0x3727c5ac, v{v}")
        self.bf16_round(v, t)
        e(f"v_sqrt_f32 v{v}, v{v}")
        self.bf16_round(v, t)
        e(f"v_rcp_f32 v{v}, v{v}")
        if scale is not None:
            e(f"v_mul_f32 v{v}, {scale}, v{v}")

    def xhat_epilogue(self, s_xdst, s_part, pre_store=None, post_barrier=None):
        e = self
        accA, accB, accX = G_ACC, G_ACC + 4, G_ACC + 8
        e(f"s_mul_i32 s50, s{S_QB}, 144")
        e(f"s_mul_i32 s51, s{S_HG}, 36")
        e("s_add_u32 s50, s50, s51")
        e(f"s_lshl_b32 s51, s{S_WAVE}, 2")
        e("s_add_u32 s51, s51, s50")
        e("s_lshl_b32 s51, s51, 8")
        e(f"s_add_u32 s51, s51, s{s_xdst}")
        e("s_add_u32 s52, s50, 32")
        e("s_lshl_b32 s52, s52, 8")
        e(f"s_add_u32 s52, s52, s{s_xdst}")
        e(f"s_and_b32 s53, s{S_WAVE}, 1")
        e(f"v_lshrrev_b32 v4, 1, v{V_GQ}")
        e(f"v_xor_b32 v5, s53, v4")
        e(f"v_lshlrev_b32 v6, 8, v{V_GQ}")
        e(f"v_lshl_add_u32 v6, v{V_R16}, 3, v6")
        e("v_lshl_add_u32 v7, v5, 7, v6")
        e("v_xor_b32 v8, 128, v7")
        e(f"v_mul_f32 v9, v{accA}, v{accA}")
        e(f"v_mul_f32 v10, v{accB}, v{accB}")
        e(f"v_mul_f32 v11, v{accA+1}, v{accA+1}")
        e(f"v_mul_f32 v12, v{accB+1}, v{accB+1}")
        nodc = e.L("nodc")
        e(f"s_or_b32 s53, s{S_HG}, s{S_WAVE}")
        e("s_cmp_lg_u32 s53, 0")
        e(f"s_cbranch_scc1 {nodc}")
        e(f"v_cmp_eq_u32 vcc, 0, v{V_GQ}")
        e("v_mov_b32 v13, 0")
        e("v_cndmask_b32 v11, v11, v13, vcc")
        e("v_cndmask_b32 v12, v12, v13, vcc")
        e.label(nodc)
        e("v_add_f32 v9, v9, v11")
        e("v_add_f32 v10, v10, v12")
        for r in (2, 3):
            e(f"v_fmac_f32 v9, v{accA+r}, v{accA+r}")
            e(f"v_fmac_f32 v10, v{accB+r}, v{accB+r}")
        e(f"v_cvt_pk_bf16_f32 v14, v{accA}, v{accA+1}")
        e(f"v_cvt_pk_bf16_f32 v15, v{accA+2}, v{accA+3}")
        e(f"buffer_store_dwordx2 v[14:15], v7, {srd(SRD_WS)}, s51 offen sc1")
        e(f"v_cvt_pk_bf16_f32 v52, v{accB}, v{accB+1}")
        e(f"v_cvt_pk_bf16_f32 v53, v{accB+2}, v{accB+3}")
        e(f"buffer_store_dwordx2 v[52:53], v8, {srd(SRD_WS)}, s51 offen sc1")
        if pre_store:
            pre_store()
        self.sum_over_gq(9, 13)
        self.sum_over_gq(10, 13)
        e(f"s_and_b32 s53, s{S_WAVE}, 1")
        e(f"s_lshl_b32 s54, s{S_WAVE}, 7")
        e("s_lshl_b32 s55, s53, 6")
        e("s_add_u32 s54, s54, s55")
        e(f"v_lshlrev_b32 v11, 2, v{V_R16}")
        e(f"v_add_u32 v11, s54, v11")
        e("v_xor_b32 v12, 64, v11")
        e(f"v_add_u32 v11, {L_STAT}, v11")
        e(f"v_add_u32 v12, {L_STAT}, v12")
        e("ds_write_b32 v11, v9")
        e("ds_write_b32 v12, v10")
        noex = e.L("ep_noex")
        e(f"s_cmp_ge_u32 s{S_WAVE}, 2")
        e(f"s_cbranch_scc1 {noex}")
        e(f"v_mul_f32 v9, v{accX}, v{accX}")
        for r in (1, 2, 3):
            e(f"v_fmac_f32 v9, v{accX+r}, v{accX+r}")
        e(f"v_cvt_pk_bf16_f32 v54, v{accX}, v{accX+1}")
        e(f"v_cvt_pk_bf16_f32 v55, v{accX+2}, v{accX+3}")
        e(f"buffer_store_dwordx2 v[54:55], v7, {srd(SRD_WS)}, s52 offen sc1")
        self.sum_over_gq(9, 13)
        e(f"v_lshlrev_b32 v11, 2, v{V_R16}")
        e(f"v_add_u32 v11, s55, v11")
        e(f"v_add_u32 v11, {L_STAT + 8*128}, v11")
        e("ds_write_b32 v11, v9")
        e.label(noex)
        e("s_waitcnt lgkmcnt(0)")
        e("s_barrier")
        if post_barrier:
            post_barrier()
        fin = e.L("ep_fin")
        e(f"s_cmp_lg_u32 s{S_WAVE}, 0")
        e(f"s_cbranch_scc1 {fin}")
        e(f"v_and_b32 v4, 31, v{V_LANE}")
        e("v_lshlrev_b32 v4, 2, v4")
        e(f"v_add_u32 v14, {L_STAT}, v4")
        for t in range(9):
            e(f"ds_read_b32 v{5+t}, v14 offset:{t*128}")
        e("s_waitcnt lgkmcnt(0)")
        for t in range(1, 9):
            e(f"v_add_f32 v5, v5, v{5+t}")
        e(f"s_lshl_b32 s50, s{S_HG}, 13")
        e(f"s_lshl_b32 s51, s{S_QB}, 7")
        e("s_add_u32 s50, s50, s51")
        e(f"s_add_u32 s50, s50, s{s_part}")
        e("s_mov_b32 exec_hi, 0")
        e(f"buffer_store_dword v5, v4, {srd(SRD_WS)}, s50 offen sc1")
        e("s_mov_b64 exec, -1")
        e.label(fin)
```

```python
import sys
from gen_common import *
import gen_p0, gen_fft, gen_prep, gen_attn, tables

NAME = "interleave_layers__spectral_gfnet__grouped_kv_mqa__prompt_kernel"

HEADER = """; Kernarg layout (88 bytes, ptrs only, base s[0:1]):
; @launch grid=(256,1,1) block=(512,1,1) lds=163840
.amdgcn_target "amdgcn-amd-amdhsa--gfx950"
.text
.globl {n}
.p2align 8
.type {n},@function
{n}:
"""

FOOTER = """.section .rodata,"a"
.p2align 6
.amdhsa_kernel {n}
  .amdhsa_next_free_vgpr {v}
  .amdhsa_next_free_sgpr {s}
  .amdhsa_accum_offset {v}
  .amdhsa_group_segment_fixed_size 0
  .amdhsa_kernarg_size 88
  .amdhsa_user_sgpr_count 2
  .amdhsa_user_sgpr_kernarg_segment_ptr 1
  .amdhsa_system_sgpr_workgroup_id_x 1
  .amdhsa_float_denorm_mode_32 3
.end_amdhsa_kernel
"""


DBG_SLOTS = [("p0 loaded", 1, 0), ("p0 done", 1, 0), ("bar0", 1, 0), ("s done", 1, 0), ("bar1", 1, 0), ("bar2", 1, 0),
             ("kv loaded", 1, 0), ("attn done", 1, 0), ("bar4", 1, 0), ("bar1", 1, 1), ("bar2", 1, 1), ("attn done", 1, 1),
             ("bar3", 1, 1), ("end", 1, 1)]


def build(stop=99, profile=False, dbgprof=False, **opts):
    e = Gen()
    for k_, v_ in opts.items(): setattr(e, k_, v_)
    e.profile = profile
    if dbgprof:
        e.dbgprof = DBG_SLOTS
    A = gen_attn

    def halt(k):
        if stop == k:
            e("s_branch L_fin")

    def fft_wg(fn):
        sk = e.L("fftwg")
        e("s_cmp_ge_u32 s2, 144")
        e(f"s_cbranch_scc1 {sk}")
        fn(e)
        e.label(sk)

    e.prologue(lambda: gen_p0.p0_early(e))
    e(f"s_mov_b32 s{S_X+6}, 0")
    e(f"s_mov_b32 s{A.S_WQOK}, 0")
    e.stamp('start')
    gen_p0.p0(e, lambda: fft_wg(gen_fft.tw_loads))
    e.stamp('p0 done')
    e.arrive(0, go_check=True)
    e.label("L_layer")
    nof, sdone, p5 = e.L("nofft"), e.L("sdone"), e.L("prep5")
    e("s_cmp_ge_u32 s2, 144")
    e(f"s_cbranch_scc1 {nof}")
    gen_fft.tw_powers(e)
    e.wait(0, per_layer=True)
    e.stamp('bar0')
    e(f"s_cmp_eq_u32 s{S_LAYER}, 0")
    e.sel(S_X, X0, X2)
    e.sel(S_X+1, X1, X3)
    e.sel(S_X+2, PART0, PART2)
    gen_fft.sfilter(e, S_X, S_X + 1, S_X + 2, A.S_WQOK)
    e(f"s_branch {sdone}")
    e.label(nof)
    e("s_waitcnt vmcnt(0)")
    e(f"s_cmp_lg_u32 s{S_LAYER}, 0")
    e(f"s_cbranch_scc1 {p5}")
    gen_prep.prep_phase1(e)
    e(f"s_branch {sdone}")
    e.label(p5)
    A.wq_main(e)
    e(f"s_mov_b32 s{A.S_WQOK}, 1")
    e.label(sdone)
    e.stamp('s done')
    e.arrive(1, per_layer=True)
    nsl, sl0 = e.L("nosleep"), e.L("sleep0")
    e("s_cmp_lt_u32 s2, 144")
    e(f"s_cbranch_scc1 {nsl}")
    e(f"s_cmp_lg_u32 s{S_WAVE}, 7")
    e(f"s_cbranch_scc1 {nsl}")
    e(f"s_cmp_eq_u32 s{S_LAYER}, 0")
    e(f"s_cbranch_scc1 {sl0}")
    if e.idle1: e(f"s_sleep {e.idle1}")
    e(f"s_branch {nsl}")
    e.label(sl0)
    if e.idle0: e(f"s_sleep {e.idle0}")
    e.label(nsl)
    e.wait(1, per_layer=True)
    e.stamp('bar1')
    halt(1)
    e(f"s_cmp_eq_u32 s{S_LAYER}, 0")
    e.sel(A.S_XIN, X1, X3)
    e.sel(A.S_KV, KV0, KV1)
    e.sel(A.S_OB, O0, O1)
    A.p2(e)
    e.stamp('p2 done')
    e(f"s_mov_b32 s{A.S_FB}, 0")
    e.label("L_redo")
    A.attention_setup(e)
    e.wait(2, per_layer=True, target=2 * (256 // NSHARD), first_sleep=e.f2sleep)
    e.stamp('bar2')
    halt(2)
    A.attention(e)
    e.stamp('attn done')
    e.arrive(group=True)
    last = e.L("last")
    e(f"s_cmp_lg_u32 s{S_LAYER}, 0")
    e(f"s_cbranch_scc1 {last}")
    A.tail_weights(e, True, 60)
    e.wait(group=True, first_sleep=e.gsleep)
    e.stamp('bar3')
    halt(3)
    A.p4(e)
    fft_wg(gen_fft.tw_loads)
    e(f"s_mov_b32 s{S_X}, {X2}")
    e(f"s_mov_b32 s{S_X+1}, {PART2}")
    e.xhat_epilogue(S_X, S_X + 1)
    e.stamp('p4 done')
    e.arrive(3)
    halt(4)
    e(f"s_mov_b32 s{S_LAYER}, 1")
    e("s_branch L_layer")
    e.label(last)
    A.p8_pre(e)
    e.wait(group=True, first_sleep=e.gsleep)
    e.stamp('bar3')
    A.p8(e)
    A.out_epilogue(e)
    e.label("L_fin")
    e.dump_stamps()
    e.label("L_end")
    e("s_endpgm")
    e.label("L_code_end")
    n = e.fix_hazards()
    errs = e.check_waits([(w, g) for w in (0, 1, 2, 4, 6, 7) for g in (0, 5, 150, 200)])
    for x in errs[:40]:
        print("WAITCHECK:", x, file=sys.stderr)
    mv, ms = e.max_regs()
    print(f"instructions={sum(1 for i in e.ins if i.mn)} nops_inserted={n} vgpr={mv} sgpr={ms} waiterrs={len(errs)}", file=sys.stderr)
    assert mv <= 256 and ms <= 102
    if profile:
        open("stamps.txt", "w").write("\n".join(e.stamp_names))
    return HEADER.format(n=NAME) + e.text() + FOOTER.format(n=NAME, v=256, s=102) + tables.tables()


if __name__ == "__main__":
    stop = int(sys.argv[2]) if len(sys.argv) > 2 else 99
    prof = len(sys.argv) > 3 and sys.argv[3] == "prof"
    dbg = len(sys.argv) > 3 and sys.argv[3] == "dbg"
    open(sys.argv[1], "w").write(build(stop, prof, dbg))
```
